```python
import torch

def _softmax(x, axis=-1):
    return torch.softmax(x, dim=axis)
def _gelu(x):
    return torch.nn.functional.gelu(x, approximate="tanh")
def _silu(x):
    return torch.nn.functional.silu(x)
def _sigmoid(x):
    return torch.sigmoid(x)
def _layernorm(x, axis=-1, eps=1e-5):
    m = x.mean(dim=axis, keepdim=True)
    v = x.var(dim=axis, keepdim=True, unbiased=False)
    return (x - m) / torch.sqrt(v + eps)
def _scatter_add(tgt, idx, src, axis=0):
    return tgt.clone().index_add_(axis, idx, src)
def _segment_sum(src, seg, n):
    out = torch.zeros((n,) + src.shape[1:], dtype=src.dtype)
    return out.index_add_(0, seg, src)
def _pad(x, pw):
    flat = tuple(v for pair in reversed(pw) for v in pair)
    return torch.nn.functional.pad(x, flat)

kernel_name = 'parallel_sum__linear_kernel_hedgehog__glu_gated_bilinear__prompt'

def setup_inputs():

    _w = (lambda a: (lambda t: t.to(torch.bfloat16) if t.is_floating_point() else t)(torch.as_tensor(a)))
    def _A_setup():
        B, S, D, H = 1, 2048, 640, 32
        Dh = D // H
        return {
            "x": _w((lambda *s: torch.randn(*s, dtype=torch.bfloat16) * 0.05)(B, S, D)),
            "wqkv": _w((lambda *s: torch.randn(*s, dtype=torch.bfloat16) * 0.2)(D, 3 * D)),
            "w_phi": _w((lambda *s: torch.randn(*s, dtype=torch.bfloat16) * 0.2)(H, Dh, Dh) * (Dh ** -0.5)),
            "wo": _w((lambda *s: torch.randn(*s, dtype=torch.bfloat16) * 0.05)(D, D)),
        }
    _A_in = _A_setup()

    def _B_setup():
        B, S, D, F = 1, 2048, 640, 1536
        return {
            "x": _w((lambda *s: torch.randn(*s, dtype=torch.bfloat16) * 0.05)(B, S, D)),
            "w_gate": _w((lambda *s: torch.randn(*s, dtype=torch.bfloat16) * 0.4)(D, F) * (D ** -0.5)),
            "w_up": _w((lambda *s: torch.randn(*s, dtype=torch.bfloat16) * 0.4)(D, F) * (D ** -0.5)),
            "w_down": _w((lambda *s: torch.randn(*s, dtype=torch.bfloat16) * 0.4)(F, D) * (F ** -0.5)),
        }
    _B_in = _B_setup()

    return {
        "A_x": _A_in["x"],
        "A_wqkv": _A_in["wqkv"],
        "A_w_phi": _A_in["w_phi"],
        "A_wo": _A_in["wo"],
        "B_x": _B_in["x"],
        "B_w_gate": _B_in["w_gate"],
        "B_w_up": _B_in["w_up"],
        "B_w_down": _B_in["w_down"],
    }

def reference(A_x, A_wqkv, A_w_phi, A_wo, B_x, B_w_gate, B_w_up, B_w_down):
    def _A_ref(x, wqkv, w_phi, wo):
        B, S, D = x.shape
        H = 32; Dh = D // H
        qkv = (lambda x, *d: x.permute(*d))((x @ wqkv).reshape(B, S, 3, H, Dh), 2, 0, 3, 1, 4)
        q, k, v = qkv[0], qkv[1], qkv[2]
        pq = torch.einsum("bhsd,hdf->bhsf", q, w_phi)
        pk = torch.einsum("bhsd,hdf->bhsf", k, w_phi)
        phi_q = torch.concatenate([_softmax(pq, axis=-1), _softmax(-pq, axis=-1)], axis=-1)
        phi_k = torch.concatenate([_softmax(pk, axis=-1), _softmax(-pk, axis=-1)], axis=-1)
        kv = torch.einsum("bhsf,bhsd->bhfd", phi_k, v)
        z  = torch.einsum("bhsf->bhf", phi_k)
        num = torch.einsum("bhqf,bhfd->bhqd", phi_q, kv)
        den = torch.einsum("bhqf,bhf->bhq", phi_q, z)[..., None] + 1e-6
        o = num / den
        return (lambda x, *d: x.permute(*d))(o, 0, 2, 1, 3).reshape(B, S, D) @ wo

    def _B_ref(x, w_gate, w_up, w_down):
        g = torch.einsum("bsd,df->bsf", x, w_gate)
        u = torch.einsum("bsd,df->bsf", x, w_up)
        h = g * u
        return torch.einsum("bsf,fd->bsd", h, w_down)

    x = A_x
    xn = _layernorm(x, axis=-1)
    return x + _A_ref(xn, A_wqkv, A_w_phi, A_wo) + _B_ref(xn, B_w_gate, B_w_up, B_w_down)
```

```python
class Asm:
    def __init__(self):
        self.L = []
        self.nlabel = 0
    def __call__(self, s):
        for line in s.split("\n"):
            line = line.strip()
            if line: self.L.append(line)
    def label(self, name): self.L.append(name + ":")
    def newlabel(self, p="L"):
        self.nlabel += 1
        return f"{p}_{self.nlabel}"
    def text(self): return "\n".join(self.L) + "\n"

def v(i, n=1):
    return f"v{i}" if n == 1 else f"v[{i}:{i+n-1}]"
def a(i, n=1):
    return f"a{i}" if n == 1 else f"a[{i}:{i+n-1}]"
def s(i, n=1):
    return f"s{i}" if n == 1 else f"s[{i}:{i+n-1}]"

def srd(A, dst, ptr, nbytes):
    A(f"s_mov_b32 s{dst}, s{ptr}")
    A(f"s_and_b32 s{dst+1}, s{ptr+1}, 0xffff")
    A(f"s_mov_b32 s{dst+2}, {nbytes}")
    A(f"s_mov_b32 s{dst+3}, 0x20000")

def interleave(A, mf, fill, lead=0):
    n = len(mf)
    k = 0
    for i, m in enumerate(mf):
        A(m)
        upto = (i + 1) * len(fill) // n if n else len(fill)
        while k < upto:
            f = fill[k]
            if isinstance(f, (list, tuple)):
                for x in f: A(x)
            else: A(f)
            k += 1
    while k < len(fill):
        f = fill[k]
        if isinstance(f, (list, tuple)):
            for x in f: A(x)
        else: A(f)
        k += 1

def kernel_header(A, name):
    A(f".globl {name}\n.p2align 8\n.type {name},@function\n{name}:")

def kernel_desc(name, vgpr, sgpr, accum):
    return (f'.p2align 6\n.amdhsa_kernel {name}\n  .amdhsa_next_free_vgpr {vgpr}\n  .amdhsa_next_free_sgpr {sgpr}\n'
            f'  .amdhsa_accum_offset {accum}\n  .amdhsa_group_segment_fixed_size 0\n  .amdhsa_kernarg_size 88\n'
            f'  .amdhsa_user_sgpr_count 2\n  .amdhsa_user_sgpr_kernarg_segment_ptr 1\n  .amdhsa_system_sgpr_workgroup_id_x 1\n'
            f'  .amdhsa_float_denorm_mode_32 3\n  .amdhsa_float_denorm_mode_16_64 3\n'
            f'.end_amdhsa_kernel\n')
```

```python
from asmlib import *
import gen_k1 as K1
import importlib

NAME = "parallel_sum__linear_kernel_hedgehog__glu_gated_bilinear__prompt"

HEADER = """; Kernarg layout for this problem (88 bytes, ptrs only, base s[0:1]):
"""

def build(kernels=("k1",), prof=False, rotmul=3, rotrb=1, opts=None):
    opts = opts or {}
    A = Asm()
    launches = []
    descs = []
    body = Asm()
    if "k1" in kernels:
        launches.append(f"; @launch kernel=k1_kernel grid=(256,1,1) block=(512,1,1) lds={K1.LDS_K1}")
        kernel_header(body, "k1_kernel")
        K1.prologue_common(body, prof)
        body(f"s_cmp_eq_u32 s{K1.S_TYPE}, 1")
        body("s_cbranch_scc1 L_k1_A")
        K1.f_path(body, prof)
        if prof: K1.write_stamps(body, 5)
        body("s_endpgm")
        body.label("L_k1_A")
        if hasattr(K1, "a_path") and not opts.get("noA"):
            K1.a_path(body, prof, opts)
            if prof: K1.write_stamps(body, 5)
        body("s_endpgm")
        descs.append(kernel_desc("k1_kernel", 256, 96, 256))
    for extra in ("k2", "k3"):
        if extra in kernels:
            mod = importlib.import_module("gen_" + extra)
            launches.append(mod.launch_line())
            kernel_header(body, extra + "_kernel")
            mod.emit(body, prof, opts)
            descs.append(mod.desc())
    txt = HEADER + "\n".join(launches) + "\n"
    txt += '.amdgcn_target "amdgcn-amd-amdhsa--gfx950"\n'
    txt += f".set ROTMUL, {rotmul}\n.set ROTRB, {rotrb}\n"
    txt += ".text\n" + body.text()
    txt += '.section .rodata,"a"\n' + "".join(descs)
    return txt

if __name__ == "__main__":
    import sys
    open(sys.argv[1], "w").write(build())
```

```python
from asmlib import *

WS_H    = 0
WS_O    = WS_H + 128*48*1024
WS_PQ   = WS_O + 128*20*1024
WS_KV   = WS_PQ + 64*32*2560
WS_W3   = WS_KV + 16*32*5120
WS_END  = WS_W3 + 8*68*5*1024
WS_DBG  = 24 << 20
WS_SIZE = 32 << 20

S_XP, S_QKVP = 4, 6
SRD_X, SRD_W, SRD_WS, SRD_M = 8, 12, 16, 20
S_PHIP, S_WOP, S_WGP, S_WUP, S_WDP, S_WSP = 24, 26, 28, 30, 32, 34
S_WV, S_RB, S_CB, S_ROT, S_TYPE = 36, 37, 38, 39, 40
S_WNEXT, S_WCNT, S_DSLOT, S_LDSW, S_T0, S_RSLOT, S_T, S_IDX = 41, 42, 43, 44, 45, 46, 47, 48
S_T1, S_MASK, S_ONES, S_T2, S_T3, S_WT, S_WC = 49, 50, 51, 52, 53, 54, 55
S_OOB, S_T4 = 56, 57
S_EX = 58
S_ST = 60

V_TID, V_LANE = 0, 1
V_WD = 2
V_WB, V_WA = 5, 6
V_XR = 7
V_XW = 11
V_R, V_B = 13, 15
V_T = 17
V_N = 24
V_SET = [40, 60]
V_X = 80
V_ACC = 160
V_WB1, V_WA1 = 4, 23

XSLOT = 16384
WBASE = 32768
F_SLOT = 24832
F_UP = 12320
F_R = 5
A_SLOT = 16384
A_R = 5
A_W3ST = WBASE + A_R*A_SLOT
A_PHI = A_W3ST + 40960
A_ZERO = A_PHI + 4096
LDS_K1 = 163840

def stamp(A, i, en):
    if en:
        A(f"s_memtime s[{S_ST+2*i}:{S_ST+2*i+1}]")

def dma_issue(A, nins, pitch, slot, R):
    L = []
    L.append(f"s_cmp_lt_u32 s{S_WCNT}, 20")
    L.append(f"s_cselect_b32 s{S_T0}, s{S_WNEXT}, s{S_OOB}")
    L.append(f"s_add_u32 s{S_T1}, s{S_LDSW}, s{S_DSLOT}")
    for i in range(nins):
        L.append([f"s_add_u32 m0, s{S_T1}, {i*1024}", "s_nop 0",
                  f"buffer_load_dwordx4 v{V_WD+i}, s[{SRD_W}:{SRD_W+3}], s{S_T0} offen lds"])
    L.append(f"s_add_u32 s{S_WNEXT}, s{S_WNEXT}, {32*pitch}")
    L.append(f"s_cmp_eq_u32 s{S_WNEXT}, {640*pitch}")
    L.append(f"s_cselect_b32 s{S_WNEXT}, 0, s{S_WNEXT}")
    L.append(f"s_add_u32 s{S_WCNT}, s{S_WCNT}, 1")
    L.append(f"s_add_u32 s{S_DSLOT}, s{S_DSLOT}, {slot}")
    L.append(f"s_cmp_eq_u32 s{S_DSLOT}, {slot*R}")
    L.append(f"s_cselect_b32 s{S_DSLOT}, 0, s{S_DSLOT}")
    return L

def flat(L):
    o = []
    for x in L:
        if isinstance(x, (list, tuple)): o.extend(x)
        else: o.append(x)
    return o

def norm_block(g):
    U = V_N
    P = V_N + 8
    L = []
    blk = [f"s_set_gpr_idx_on s{S_IDX}, gpr_idx(SRC1)"]
    for r in range(4):
        blk.append(f"v_lshlrev_b32 v{U+2*r}, 16, v{V_X+4*g+r}")
        blk.append(f"v_and_b32 v{U+2*r+1}, s{S_MASK}, v{V_X+4*g+r}")
    blk.append("s_set_gpr_idx_off")
    L.append(blk)
    for r in range(8):
        L.append(f"v_fma_f32 v{U+r}, v{U+r}, v{V_R+g}, v{V_B+g}")
    for r in range(4):
        L.append(f"v_cvt_pk_bf16_f32 v{P+r}, v{U+2*r}, v{U+2*r+1}")
    L.append(f"ds_write_b128 v{V_XW+g}, v[{P}:{P+3}]")
    return L

def x_reads(st, t4):
    b = V_SET[st]
    return [f"ds_read_b128 v[{b}:{b+3}], v{V_XR+t4}",
            f"ds_read_b128 v[{b+4}:{b+7}], v{V_XR+t4} offset:4096"]

def f_wreads(st, t):
    b = V_SET[st] + 8
    L = []
    for ft in range(3):
        for e2 in range(2):
            L.append(f"ds_read_b64_tr_b16 v[{b+4*ft+2*e2}:{b+4*ft+2*e2+1}], v{V_WA} offset:{t*6144+e2*1536+ft*512}")
    return L

def f_mfmas(st):
    b = V_SET[st]
    L = []
    for ft in range(3):
        for tau in range(2):
            c = V_ACC + 16*(3*tau+ft)
            L.append(f"v_mfma_f32_32x32x16_bf16 v[{c}:{c+15}], v[{b+8+4*ft}:{b+11+4*ft}], v[{b+4*tau}:{b+3+4*tau}], v[{c}:{c+15}]")
    return L

def a_wreads(st, t):
    b = V_SET[st] + 8
    L = []
    for a_ in range(2):
        for e2 in range(2):
            L.append(f"ds_read_b64_tr_b16 v[{b+4*a_+2*e2}:{b+4*a_+2*e2+1}], v{[V_WA,V_WA1][a_]} offset:{t*8192+e2*2048}")
    return L

def a_mfmas(st):
    b = V_SET[st]
    L = []
    for a_ in range(2):
        for tau in range(2):
            c = V_ACC + 16*(2*tau+a_)
            L.append(f"v_mfma_f32_32x32x16_bf16 v[{c}:{c+15}], v[{b+8+4*a_}:{b+11+4*a_}], v[{b+4*tau}:{b+3+4*tau}], v[{c}:{c+15}]")
    return L

def norm_parts(g):
    U = V_N
    P = V_N + 8 + 4*g
    L = []
    blk = [f"s_set_gpr_idx_on s{S_IDX}, gpr_idx(SRC1)"]
    for r in range(4):
        blk.append(f"v_lshlrev_b32 v{U+2*r}, 16, v{V_X+4*g+r}")
        blk.append(f"v_and_b32 v{U+2*r+1}, s{S_MASK}, v{V_X+4*g+r}")
    blk.append("s_set_gpr_idx_off")
    L.append(blk)
    for r in range(8):
        L.append(f"v_fma_f32 v{U+r}, v{U+r}, v{V_R+g}, v{V_B+g}")
    for r in range(4):
        L.append(f"v_cvt_pk_bf16_f32 v{P+r}, v{U+2*r}, v{U+2*r+1}")
    return L, f"ds_write_b128 v{V_XW+g}, v[{P}:{P+3}]"

OPT = {}
def main_loop(A, typ, prof):
    F = typ == 'F'
    nins = 3 if F else 2
    pitch = 3072 if F else 3840
    slot = F_SLOT if F else A_SLOT
    R = F_R if F else A_R
    wreads = f_wreads if F else a_wreads
    mfmas = f_mfmas if F else a_mfmas
    def rslot_adv():
        L = [f"s_add_u32 s{S_RSLOT}, s{S_RSLOT}, {slot}",
             f"s_cmp_eq_u32 s{S_RSLOT}, {slot*R}",
             f"s_cselect_b32 s{S_RSLOT}, 0, s{S_RSLOT}",
             f"v_add_u32 v{V_WA}, s{S_RSLOT}, v{V_WB}"]
        if not F: L.append(f"v_add_u32 v{V_WA1}, s{S_RSLOT}, v{V_WB1}")
        return L
    def dma():
        return [] if OPT.get("no_dma") else dma_issue(A, nins, pitch, slot, R)
    def bar():
        if not OPT.get("no_bar"): A("s_barrier")
    n0, w0 = norm_parts(0)
    n1, w1 = norm_parts(1)
    if OPT.get("no_norm"): n0, n1, w0, w1 = [], [], "s_nop 0", "s_nop 0"
    lab = f"L_{typ}_loop"
    A(f"s_mov_b32 s{S_T}, 0")
    A(f"s_mov_b32 s{S_IDX}, 8")
    A(".p2align 6")
    A.label(lab)
    vm = nins*(R-2)
    interleave(A, mfmas(0), x_reads(1, 1) + wreads(1, 1) + n0)
    A(f"s_waitcnt vmcnt({vm}) lgkmcnt(0)")
    bar()
    for x in rslot_adv(): A(x)
    interleave(A, mfmas(1), [w0] + x_reads(0, 2) + wreads(0, 0) + dma() + n1)
    A("s_waitcnt lgkmcnt(0)")
    interleave(A, mfmas(0), [w1] + x_reads(1, 3) + wreads(1, 1))
    A(f"s_waitcnt vmcnt({vm}) lgkmcnt(0)")
    bar()
    for x in rslot_adv(): A(x)
    for i in range(4): A(f"v_xor_b32 v{V_XR+i}, {XSLOT}, v{V_XR+i}")
    tail = [f"v_xor_b32 v{V_XW}, {XSLOT}, v{V_XW}", f"v_xor_b32 v{V_XW+1}, {XSLOT}, v{V_XW+1}",
            f"s_add_u32 s{S_IDX}, s{S_IDX}, 8",
            f"s_cmp_eq_u32 s{S_IDX}, 80",
            f"s_cselect_b32 s{S_IDX}, 0, s{S_IDX}"]
    interleave(A, mfmas(1), x_reads(0, 0) + wreads(0, 0) + dma() + tail)
    A("s_waitcnt lgkmcnt(0)")
    A(f"s_add_u32 s{S_T}, s{S_T}, 1")
    A(f"s_cmp_lt_u32 s{S_T}, 10")
    A(f"s_cbranch_scc1 {lab}")

def prologue_common(A, prof):
    A("s_cmp_ge_u32 s2, 256")
    A("s_cbranch_scc0 L_k1_go")
    A("s_endpgm")
    A.label("L_k1_go")
    stamp(A, 0, prof)
    A(f"s_load_dwordx4 s[{S_XP}:{S_XP+3}], s[0:1], 0")
    A(f"s_load_dwordx4 s[{S_PHIP}:{S_PHIP+3}], s[0:1], 16")
    A(f"s_load_dwordx4 s[{S_WGP}:{S_WGP+3}], s[0:1], 40")
    A(f"s_load_dwordx2 s[{S_WDP}:{S_WDP+1}], s[0:1], 56")
    A(f"s_load_dwordx2 s[{S_WSP}:{S_WSP+1}], s[0:1], 80")
    A(f"v_and_b32 v{V_LANE}, 63, v0")
    A(f"v_lshrrev_b32 v{V_T}, 6, v0")
    A(f"s_and_b32 s{S_T0}, s2, 7")
    A(f"v_readfirstlane_b32 s{S_WV}, v{V_T}")
    A(f"s_lshr_b32 s{S_T1}, s2, 3")
    A(f"s_lshr_b32 s{S_TYPE}, s{S_T1}, 4")
    A(f"s_and_b32 s{S_T2}, s{S_T1}, 7")
    A(f"s_bfe_u32 s{S_T3}, s{S_T1}, 0x10003")
    A(f"s_and_b32 s{S_RB}, s{S_T0}, 1")
    A(f"s_lshl_b32 s{S_RB}, s{S_RB}, 3")
    A(f"s_add_u32 s{S_RB}, s{S_RB}, s{S_T2}")
    A(f"s_lshr_b32 s{S_CB}, s{S_T0}, 1")
    A(f"s_lshl_b32 s{S_CB}, s{S_CB}, 1")
    A(f"s_add_u32 s{S_CB}, s{S_CB}, s{S_T3}")
    A(f"s_lshl_b32 s{S_T4}, s{S_TYPE}, 1")
    A(f"s_add_u32 s{S_T4}, s{S_T4}, s{S_T3}")
    A(f"s_mul_i32 s{S_T4}, s{S_T4}, ROTMUL")
    A(f"s_mul_i32 s{S_T2}, s{S_T2}, ROTRB")
    A(f"s_add_u32 s{S_ROT}, s{S_T4}, s{S_T2}")
    A(f"s_cmp_ge_u32 s{S_ROT}, 10")
    A(f"s_cselect_b32 s{S_T4}, 10, 0")
    A(f"s_sub_u32 s{S_ROT}, s{S_ROT}, s{S_T4}")
    A(f"s_mov_b32 s{S_MASK}, 0xffff0000")
    A(f"s_mov_b32 s{S_ONES}, 0x3f803f80")
    A(f"s_mov_b32 s{S_OOB}, 0x7f000000")
    A(f"s_lshr_b32 s{S_WT}, s{S_WV}, 2")
    A(f"s_and_b32 s{S_WC}, s{S_WV}, 3")
    A(f"v_lshrrev_b32 v{V_T}, 3, v{V_LANE}")
    A(f"s_lshl_b32 s{S_T0}, s{S_WV}, 4")
    A(f"v_add_u32 v{V_T}, s{S_T0}, v{V_T}")
    A(f"v_mul_u32_u24 v{V_T+1}, 1280, v{V_T}")
    A(f"v_and_b32 v{V_T+2}, 7, v{V_LANE}")
    A(f"v_lshl_add_u32 v{V_T+1}, v{V_T+2}, 4, v{V_T+1}")
    A(f"v_add_u32 v{V_T+3}, 10240, v{V_T+1}")
    A(f"v_bfe_u32 v{V_T+4}, v{V_T}, 1, 3")
    A(f"v_xor_b32 v{V_T+4}, v{V_T+4}, v{V_T+2}")
    A(f"v_lshlrev_b32 v{V_T+4}, 4, v{V_T+4}")
    A(f"v_lshl_add_u32 v{V_XW}, v{V_T}, 7, v{V_T+4}")
    A(f"v_xor_b32 v{V_XW+1}, 64, v{V_XW}")
    A(f"v_add_u32 v{V_XW+1}, 1024, v{V_XW+1}")
    A("s_waitcnt lgkmcnt(0)")
    srd(A, SRD_X, S_XP, 2048*1280)
    srd(A, SRD_WS, S_WSP, WS_SIZE)
    A(f"s_mul_i32 s{S_T0}, s{S_RB}, 163840")
    A(f"s_lshl_b32 s{S_T1}, s{S_ROT}, 7")
    for t in range(10):
        A(f"s_add_u32 s{S_T2}, s{S_T0}, s{S_T1}")
        for g in range(2):
            r = V_X + 8*t + 4*g
            A(f"buffer_load_dwordx4 v[{r}:{r+3}], v{V_T+1+2*g}, s[{SRD_X}:{SRD_X+3}], s{S_T2} offen")
        if t < 9:
            A(f"s_add_u32 s{S_T1}, s{S_T1}, 128")
            A(f"s_cmp_eq_u32 s{S_T1}, 1280")
            A(f"s_cselect_b32 s{S_T1}, 0, s{S_T1}")
    A(f"v_and_b32 v{V_T}, 31, v{V_LANE}")
    A(f"v_lshrrev_b32 v{V_T+2}, 5, v{V_LANE}")
    A(f"v_bfe_u32 v{V_T+4}, v{V_T}, 1, 3")
    A(f"v_xor_b32 v{V_T+4}, v{V_T+4}, v{V_T+2}")
    A(f"v_lshlrev_b32 v{V_T+4}, 4, v{V_T+4}")
    A(f"s_lshl_b32 s{S_T0}, s{S_WT}, 13")
    A(f"v_lshl_add_u32 v{V_T+4}, v{V_T}, 7, v{V_T+4}")
    A(f"v_add_u32 v{V_XR}, s{S_T0}, v{V_T+4}")
    for t4 in range(1, 4):
        A(f"v_xor_b32 v{V_XR+t4}, {32*t4}, v{V_XR}")

def stats(A, n_after):
    S0 = V_N
    for i in range(8): A(f"v_mov_b32 v{S0+i}, 0")
    for t in range(10):
        A(f"s_waitcnt vmcnt({min(63, n_after + 2*(9-t))})")
        for g in range(2):
            for r in range(4):
                x = V_X + 8*t + 4*g + r
                A(f"v_dot2_f32_bf16 v{S0+4*g+(r&1)}, v{x}, s{S_ONES}, v{S0+4*g+(r&1)}")
                A(f"v_dot2_f32_bf16 v{S0+4*g+2+(r&1)}, v{x}, v{x}, v{S0+4*g+2+(r&1)}")
    for g in range(2):
        A(f"v_add_f32 v{S0+4*g}, v{S0+4*g}, v{S0+4*g+1}")
        A(f"v_add_f32 v{S0+4*g+2}, v{S0+4*g+2}, v{S0+4*g+3}")
    regs = [S0, S0+2, S0+4, S0+6]
    for mode in ("quad_perm:[1,0,3,2]", "quad_perm:[2,3,0,1]", "row_half_mirror"):
        A("s_nop 1")
        for r in regs:
            A(f"v_add_f32_dpp v{r}, v{r}, v{r} {mode} row_mask:0xf bank_mask:0xf")
    A(f"s_mov_b32 s{S_T0}, 0x3acccccd")
    A(f"s_mov_b32 s{S_T1}, 0x3727c5ac")
    for g in range(2):
        m, q = S0+4*g, S0+4*g+2
        A(f"v_mul_f32 v{m}, s{S_T0}, v{m}")
        A(f"v_mul_f32 v{q}, s{S_T0}, v{q}")
        A(f"v_fma_f32 v{q}, -v{m}, v{m}, v{q}")
        A(f"v_max_f32 v{q}, 0, v{q}")
        A(f"v_add_f32 v{q}, s{S_T1}, v{q}")
        A(f"v_rsq_f32 v{V_R+g}, v{q}")
        A("s_nop 0")
        A(f"v_mul_f32 v{V_B+g}, v{m}, v{V_R+g}")
        A(f"v_sub_f32 v{V_B+g}, 0, v{V_B+g}")

def first_norm(A):
    A(f"s_mov_b32 s{S_IDX}, 0")
    for g in range(2):
        for x in flat(norm_block(g)): A(x)
    A(f"v_xor_b32 v{V_XW}, {XSLOT}, v{V_XW}")
    A(f"v_xor_b32 v{V_XW+1}, {XSLOT}, v{V_XW+1}")

def f_path(A, prof):
    A(f"s_cmp_lt_u32 s{S_WV}, 4")
    A(f"s_cselect_b32 s{S_T0}, s{S_WGP}, s{S_WUP}")
    A(f"s_cselect_b32 s{S_T1}, s{S_WGP+1}, s{S_WUP+1}")
    A(f"s_mov_b32 s{SRD_W}, s{S_T0}")
    A(f"s_and_b32 s{SRD_W+1}, s{S_T1}, 0xffff")
    A(f"s_mov_b32 s{SRD_W+2}, {640*3072}")
    A(f"s_mov_b32 s{SRD_W+3}, 0x20000")
    A(f"v_lshrrev_b32 v{V_T}, 4, v{V_LANE}")
    A(f"v_bfe_u32 v{V_T+1}, v{V_LANE}, 2, 2")
    A(f"v_and_b32 v{V_T+2}, 3, v{V_LANE}")
    A(f"s_mul_i32 s{S_T0}, s{S_WC}, 12")
    A(f"s_mul_i32 s{S_T1}, s{S_CB}, 384")
    for i in range(3):
        A(f"v_add_u32 v{V_T+3}, s{S_T0}, v{V_T}")
        if i: A(f"v_add_u32 v{V_T+3}, {4*i}, v{V_T+3}")
        A(f"v_mul_u32_u24 v{V_T+4}, 43, v{V_T+3}")
        A(f"v_lshrrev_b32 v{V_T+4}, 8, v{V_T+4}")
        A(f"v_mul_u32_u24 v{V_T+5}, 6, v{V_T+4}")
        A(f"v_sub_u32 v{V_T+5}, v{V_T+3}, v{V_T+5}")
        A(f"v_lshl_add_u32 v{V_T+4}, v{V_T+4}, 2, v{V_T+1}")
        A(f"v_mul_u32_u24 v{V_T+4}, 3072, v{V_T+4}")
        A(f"v_lshl_add_u32 v{V_T+4}, v{V_T+5}, 6, v{V_T+4}")
        A(f"v_lshl_add_u32 v{V_T+4}, v{V_T+2}, 4, v{V_T+4}")
        A(f"v_add_u32 v{V_WD+i}, s{S_T1}, v{V_T+4}")
    A(f"s_mul_i32 s{S_T0}, s{S_WT}, {F_UP}")
    A(f"s_mul_i32 s{S_T1}, s{S_WC}, 3072")
    A(f"s_add_u32 s{S_LDSW}, s{S_T0}, s{S_T1}")
    A(f"s_add_u32 s{S_LDSW}, s{S_LDSW}, {WBASE}")
    A(f"s_mul_i32 s{S_WNEXT}, s{S_ROT}, {64*3072}")
    A(f"s_mov_b32 s{S_WCNT}, 0")
    A(f"s_mov_b32 s{S_DSLOT}, 0")
    npre = OPT.get("npre", 2)
    for st in range(npre):
        for x in flat(dma_issue(A, 3, 3072, F_SLOT, F_R)): A(x)
    A(f"v_bfe_u32 v{V_T}, v{V_LANE}, 4, 1")
    A(f"v_mul_u32_u24 v{V_T}, {F_UP}, v{V_T}")
    A(f"v_lshrrev_b32 v{V_T+1}, 5, v{V_LANE}")
    A(f"v_mul_u32_u24 v{V_T+1}, 3072, v{V_T+1}")
    A(f"v_add_u32 v{V_T}, v{V_T}, v{V_T+1}")
    A(f"v_bfe_u32 v{V_T+1}, v{V_LANE}, 2, 2")
    A(f"v_lshl_add_u32 v{V_T}, v{V_T+1}, 6, v{V_T}")
    A(f"v_and_b32 v{V_T+1}, 3, v{V_LANE}")
    A(f"v_lshl_add_u32 v{V_T}, v{V_T+1}, 3, v{V_T}")
    A(f"s_lshr_b32 s{S_T0}, s{S_WC}, 1")
    A(f"s_lshl_b32 s{S_T0}, s{S_T0}, 8")
    A(f"s_and_b32 s{S_T1}, s{S_WC}, 1")
    A(f"s_lshl_b32 s{S_T1}, s{S_T1}, 5")
    A(f"s_add_u32 s{S_T0}, s{S_T0}, s{S_T1}")
    A(f"s_add_u32 s{S_T0}, s{S_T0}, {WBASE}")
    A(f"v_add_u32 v{V_WB}, s{S_T0}, v{V_T}")
    A(f"v_mov_b32 v{V_WA}, v{V_WB}")
    A(f"s_mov_b32 s{S_RSLOT}, 0")
    for i in range(96): A(f"v_mov_b32 v{V_ACC+i}, 0")
    stats(A, 3*npre)
    stamp(A, 1, prof)
    first_norm(A)
    A(f"s_waitcnt vmcnt({3*(npre-1)}) lgkmcnt(0)")
    A("s_barrier")
    for st in range(npre, F_R):
        for x in flat(dma_issue(A, 3, 3072, F_SLOT, F_R)): A(x)
    for x in x_reads(0, 0) + f_wreads(0, 0): A(x)
    A("s_waitcnt lgkmcnt(0)")
    stamp(A, 2, prof)
    main_loop(A, 'F', prof)
    stamp(A, 3, prof)
    A(f"v_bfe_u32 v{V_T}, v{V_LANE}, 4, 1")
    A(f"v_mul_u32_u24 v{V_T}, 49152, v{V_T}")
    A(f"v_lshrrev_b32 v{V_T+1}, 5, v{V_LANE}")
    A(f"v_lshl_add_u32 v{V_T}, v{V_T+1}, 8, v{V_T}")
    A(f"v_and_b32 v{V_T+1}, 15, v{V_LANE}")
    A(f"v_lshl_add_u32 v{V_T}, v{V_T+1}, 4, v{V_T}")
    A(f"s_lshl_b32 s{S_T0}, s{S_RB}, 3")
    A(f"s_lshl_b32 s{S_T1}, s{S_WT}, 2")
    A(f"s_add_u32 s{S_T0}, s{S_T0}, s{S_T1}")
    A(f"s_mul_i32 s{S_T0}, s{S_T0}, 48")
    A(f"s_mul_i32 s{S_T1}, s{S_CB}, 6")
    A(f"s_add_u32 s{S_T0}, s{S_T0}, s{S_T1}")
    A(f"s_lshr_b32 s{S_T1}, s{S_WC}, 1")
    A(f"s_add_u32 s{S_T0}, s{S_T0}, s{S_T1}")
    A(f"s_lshl_b32 s{S_T0}, s{S_T0}, 10")
    A(f"s_and_b32 s{S_T1}, s{S_WC}, 1")
    A(f"s_lshl_b32 s{S_T1}, s{S_T1}, 9")
    A(f"s_add_u32 s{S_T0}, s{S_T0}, s{S_T1}")
    if WS_H: A(f"s_add_u32 s{S_T0}, s{S_T0}, {WS_H}")
    A("s_nop 7")
    A("s_nop 3")
    for tau in range(2):
        for ft in range(3):
            c = V_ACC + 16*(3*tau+ft)
            P = V_N + 4*((3*tau+ft) & 3)
            for r in range(8):
                A(f"v_mul_f32 v{c+r}, v{c+r}, v{c+8+r}")
            for r in range(4):
                A(f"v_cvt_pk_bf16_f32 v{P+r}, v{c+2*r}, v{c+2*r+1}")
            A(f"s_add_u32 s{S_T1}, s{S_T0}, {tau*2*49152 + ft*2048}")
            A(f"buffer_store_dwordx4 v[{P}:{P+3}], v{V_T}, s[{SRD_WS}:{SRD_WS+3}], s{S_T1} offen")
    stamp(A, 4, prof)

def write_stamps(A, n):
    A("s_waitcnt vmcnt(0) lgkmcnt(0)")
    A(f"s_cmp_eq_u32 s{S_WV}, 0")
    l = A.newlabel("L_st")
    A(f"s_cbranch_scc0 {l}")
    A(f"s_lshl_b32 s{S_T0}, s2, 6")
    A(f"s_add_u32 s{S_T0}, s{S_T0}, {WS_DBG}")
    A(f"v_mov_b32 v{V_T}, 0")
    A(f"v_cmp_eq_u32 vcc, 0, v{V_LANE}")
    A(f"s_and_saveexec_b64 s[{S_EX}:{S_EX+1}], vcc")
    for i in range(n):
        A(f"v_mov_b32 v{V_N}, s{S_ST+2*i}")
        A(f"buffer_store_dword v{V_N}, v{V_T}, s[{SRD_WS}:{SRD_WS+3}], s{S_T0} offen offset:{4*i}")
        A("s_nop 1")
    A("s_waitcnt vmcnt(0)")
    A.label(l)


L2E = 0x3fb8aa3b

def a_tr_addr(A, a_, dst):
    T = V_T
    A(f"v_and_b32 v{T}, 3, v{V_LANE}")
    A(f"v_bfe_u32 v{T+1}, v{V_LANE}, 4, 1")
    A(f"v_lshrrev_b32 v{T+2}, 1, v{T}")
    A(f"v_lshl_add_u32 v{T+2}, v{T+1}, 1, v{T+2}")
    A(f"v_and_b32 v{T+3}, 1, v{T}")
    A(f"s_mul_i32 s{S_T0}, s{S_WC}, 5")
    if a_ == 0:
        A(f"v_add_u32 v{T+4}, s{S_T0}, v{T+2}")
        A(f"v_mul_u32_u24 v{T+5}, 10, v{T+3}")
    else:
        A(f"v_mul_u32_u24 v{T+4}, 3, v{T+3}")
        A(f"v_add_u32 v{T+4}, v{T+4}, v{T+2}")
        A(f"v_subrev_u32 v{T+4}, 1, v{T+4}")
        A(f"v_min_u32 v{T+4}, 4, v{T+4}")
        A(f"v_mul_u32_u24 v{T+5}, 10, v{T+3}")
        A(f"v_cmp_eq_u32 vcc, 0, v{T+2}")
        A(f"v_mov_b32 v{T+6}, 21")
        A("s_nop 0")
        A(f"v_cndmask_b32 v{T+4}, v{T+4}, 4, vcc")
        A(f"v_cndmask_b32 v{T+5}, v{T+6}, v{T+5}, vcc")
        A(f"v_add_u32 v{T+4}, s{S_T0}, v{T+4}")
    A(f"v_lshrrev_b32 v{T+6}, 1, v{T+4}")
    A(f"v_add_u32 v{T+5}, v{T+5}, v{T+6}")
    A(f"v_and_b32 v{T+4}, 1, v{T+4}")
    A(f"v_lshlrev_b32 v{T+4}, 3, v{T+4}")
    A(f"v_and_b32 v{T+6}, 3, v{T+5}")
    A(f"v_lshl_add_u32 v{T+4}, v{T+6}, 4, v{T+4}")
    A(f"v_lshrrev_b32 v{T+5}, 2, v{T+5}")
    A(f"v_lshl_add_u32 v{T+4}, v{T+5}, 8, v{T+4}")
    A(f"v_bfe_u32 v{T+5}, v{V_LANE}, 2, 2")
    A(f"v_lshl_add_u32 v{T+4}, v{T+5}, 6, v{T+4}")
    A(f"v_lshrrev_b32 v{T+5}, 5, v{V_LANE}")
    A(f"v_lshl_add_u32 v{T+4}, v{T+5}, 12, v{T+4}")
    A(f"v_add_u32 v{dst}, {WBASE}, v{T+4}")

def a_path(A, prof, opts):
    T = V_T
    srd(A, SRD_W, S_QKVP, 640*3840)
    A(f"v_lshrrev_b32 v{T}, 4, v{V_LANE}")
    A(f"v_and_b32 v{T+1}, 3, v{V_LANE}")
    A(f"v_lshl_add_u32 v{T}, v{T}, 2, v{T+1}")
    A(f"v_bfe_u32 v{T+1}, v{V_LANE}, 2, 2")
    A(f"s_lshl_b32 s{S_T0}, s{S_WV}, 2")
    A(f"v_add_u32 v{T+1}, s{S_T0}, v{T+1}")
    A(f"v_mul_u32_u24 v{T+1}, 3840, v{T+1}")
    A(f"s_mul_i32 s{S_T1}, s{S_CB}, 160")
    A(f"v_add_u32 v{T+1}, s{S_T1}, v{T+1}")
    A(f"v_cmp_gt_u32 vcc, 10, v{T}")
    A(f"v_mov_b32 v{T+2}, 1120")
    A(f"v_lshl_add_u32 v{T+3}, v{T}, 4, v{T+1}")
    A(f"v_cndmask_b32 v{T+2}, v{T+2}, 0, vcc")
    A(f"v_add_u32 v{V_WD}, v{T+3}, v{T+2}")
    A(f"v_min_u32 v{T+4}, 14, v{T}")
    A(f"v_cmp_eq_u32 vcc, 4, v{T}")
    A(f"v_mov_b32 v{T+5}, 3")
    A("s_nop 0")
    A(f"v_cndmask_b32 v{T+4}, v{T+4}, v{T+5}, vcc")
    A(f"v_cmp_gt_u32 vcc, 5, v{T}")
    A(f"v_mov_b32 v{T+5}, 2480")
    A(f"v_mov_b32 v{T+6}, 1376")
    A(f"v_cndmask_b32 v{T+5}, v{T+5}, v{T+6}, vcc")
    A(f"v_lshl_add_u32 v{T+4}, v{T+4}, 4, v{T+1}")
    A(f"v_add_u32 v{V_WD+1}, v{T+4}, v{T+5}")
    A(f"s_lshl_b32 s{S_LDSW}, s{S_WV}, 11")
    A(f"s_add_u32 s{S_LDSW}, s{S_LDSW}, {WBASE}")
    A(f"s_mul_i32 s{S_WNEXT}, s{S_ROT}, {64*3840}")
    A(f"s_mov_b32 s{S_WCNT}, 0")
    A(f"s_mov_b32 s{S_DSLOT}, 0")
    srd(A, SRD_M, S_PHIP, 25600)
    A(f"v_lshlrev_b32 v{T}, 4, v{V_LANE}")
    A(f"s_mul_i32 s{S_T0}, s{S_CB}, 3200")
    A(f"s_lshl_b32 s{S_T1}, s{S_WC}, 10")
    A(f"s_add_u32 s{S_T0}, s{S_T0}, s{S_T1}")
    A(f"s_add_u32 m0, s{S_T1}, {A_PHI}")
    A("s_nop 0")
    A(f"buffer_load_dwordx4 v{T}, s[{SRD_M}:{SRD_M+3}], s{S_T0} offen lds")
    npre = OPT.get("npre", 2)
    for st in range(npre):
        for x in flat(dma_issue(A, 2, 3840, A_SLOT, A_R)): A(x)
    a_tr_addr(A, 0, V_WB)
    a_tr_addr(A, 1, V_WB1)
    A(f"v_mov_b32 v{V_WA}, v{V_WB}")
    A(f"v_mov_b32 v{V_WA1}, v{V_WB1}")
    A(f"s_mov_b32 s{S_RSLOT}, 0")
    for i in range(64): A(f"v_mov_b32 v{V_ACC+i}, 0")
    A(f"v_lshlrev_b32 v{T}, 4, v{V_LANE}")
    A(f"v_add_u32 v{T}, {A_ZERO}, v{T}")
    A(f"ds_write_b128 v{T}, v[{V_ACC}:{V_ACC+3}]")
    stats(A, 2*npre + 1)
    stamp(A, 1, prof)
    first_norm(A)
    A(f"s_waitcnt vmcnt({2*(npre-1)}) lgkmcnt(0)")
    A("s_barrier")
    for st in range(npre, A_R):
        for x in flat(dma_issue(A, 2, 3840, A_SLOT, A_R)): A(x)
    for x in x_reads(0, 0) + a_wreads(0, 0): A(x)
    A("s_waitcnt lgkmcnt(0)")
    stamp(A, 2, prof)
    main_loop(A, 'A', prof)
    stamp(A, 3, prof)
    A("s_waitcnt vmcnt(0)")
    A("s_barrier")
    if not opts.get("noW3"):
        w3_stage_loads(A)
    a_epilogue(A, prof, opts)
    if not opts.get("noW3"):
        A("s_waitcnt vmcnt(0)")
        A("s_barrier")
        w3_relayout(A)
    stamp(A, 4, prof)

def w3_stage_loads(A):
    T = V_T
    A(f"s_lshl_b32 s{S_T0}, s{S_CB}, 4")
    A(f"s_add_u32 s{S_T4}, s{S_T0}, s{S_RB}")
    A(f"s_cmp_lt_u32 s{S_T4}, 48")
    A(f"s_cselect_b32 s{S_T0}, s{S_WDP}, s{S_WOP}")
    A(f"s_cselect_b32 s{S_T1}, s{S_WDP+1}, s{S_WOP+1}")
    A(f"s_mov_b32 s{S_T2}, {640*1280}")
    A(f"s_cselect_b32 s{S_T2}, {1536*1280}, s{S_T2}")
    A(f"s_cselect_b32 s{S_T3}, 0, 48")
    A(f"s_mov_b32 s{SRD_M}, s{S_T0}")
    A(f"s_and_b32 s{SRD_M+1}, s{S_T1}, 0xffff")
    A(f"s_mov_b32 s{SRD_M+2}, s{S_T2}")
    A(f"s_mov_b32 s{SRD_M+3}, 0x20000")
    A(f"s_sub_u32 s{S_T0}, s{S_T4}, s{S_T3}")
    A(f"s_mul_i32 s{S_T0}, s{S_T0}, 40960")
    A(f"s_mul_i32 s{S_T1}, s{S_WV}, 5120")
    A(f"s_add_u32 s{S_T0}, s{S_T0}, s{S_T1}")
    A(f"v_lshlrev_b32 v{T}, 4, v{V_LANE}")
    for i in range(5):
        A(f"s_add_u32 s{S_T2}, s{S_T1}, {A_W3ST + i*1024}")
        A(f"s_mov_b32 m0, s{S_T2}")
        A(f"s_add_u32 s{S_T3}, s{S_T0}, {i*1024}")
        A(f"buffer_load_dwordx4 v{T}, s[{SRD_M}:{SRD_M+3}], s{S_T3} offen lds")
    return 5

def w3_relayout(A):
    T = V_T
    l = A.newlabel("L_w3skip")
    A(f"s_lshl_b32 s{S_T0}, s{S_CB}, 4")
    A(f"s_add_u32 s{S_T4}, s{S_T0}, s{S_RB}")
    A(f"s_cmp_ge_u32 s{S_T4}, 68")
    A(f"s_cbranch_scc1 {l}")
    A(f"v_lshrrev_b32 v{T}, 4, v{V_LANE}")
    A(f"v_bfe_u32 v{T+1}, v{V_LANE}, 2, 2")
    A(f"v_lshrrev_b32 v{T+2}, 1, v{T}")
    A(f"v_lshlrev_b32 v{T+2}, 4, v{T+2}")
    A(f"v_and_b32 v{T+3}, 1, v{T}")
    A(f"v_lshl_add_u32 v{T+2}, v{T+3}, 2, v{T+2}")
    A(f"v_lshlrev_b32 v{T+3}, 3, v{T}")
    A(f"s_cmp_lt_u32 s{S_T4}, 48")
    A(f"s_cselect_b64 vcc, -1, 0")
    A(f"s_mov_b32 s{S_T1}, {4*1280}")
    A(f"s_cselect_b32 s{S_T1}, {8*1280}, s{S_T1}")
    A(f"v_cndmask_b32 v{T+2}, v{T+3}, v{T+2}, vcc")
    A(f"v_add_u32 v{T+2}, v{T+2}, v{T+1}")
    A(f"v_mul_u32_u24 v{T+2}, 1280, v{T+2}")
    A(f"v_and_b32 v{T+3}, 3, v{V_LANE}")
    A(f"v_lshl_add_u32 v{T+2}, v{T+3}, 3, v{T+2}")
    A(f"s_mul_i32 s{S_T0}, s{S_WV}, 160")
    A(f"s_add_u32 s{S_T0}, s{S_T0}, {A_W3ST}")
    A(f"v_add_u32 v{T+2}, s{S_T0}, v{T+2}")
    A(f"v_add_u32 v{T+3}, s{S_T1}, v{T+2}")
    for ct in range(5):
        r = V_SET[0] + 4*ct
        A(f"ds_read_b64_tr_b16 v[{r}:{r+1}], v{T+2} offset:{32*ct}")
        A(f"ds_read_b64_tr_b16 v[{r+2}:{r+3}], v{T+3} offset:{32*ct}")
    A(f"s_mul_i32 s{S_T0}, s{S_WV}, 68")
    A(f"s_add_u32 s{S_T0}, s{S_T0}, s{S_T4}")
    A(f"s_mul_i32 s{S_T0}, s{S_T0}, 5120")
    A(f"s_add_u32 s{S_T0}, s{S_T0}, {WS_W3}")
    A(f"v_lshlrev_b32 v{T}, 4, v{V_LANE}")
    A("s_waitcnt lgkmcnt(0)")
    for ct in range(5):
        r = V_SET[0] + 4*ct
        A(f"s_add_u32 s{S_T1}, s{S_T0}, {1024*ct}")
        A(f"buffer_store_dwordx4 v[{r}:{r+3}], v{T}, s[{SRD_WS}:{SRD_WS+3}], s{S_T1} offen")
    A.label(l)

V_WP = 80
V_QB = 104
V_P0 = 224
V_P1 = 240
V_E = 116
V_PH = 40
V_PV = 60
V_EA = 24

def a_epilogue(A, prof, opts):
    T = V_T
    EX = 0
    A(f"v_and_b32 v{T}, 3, v{V_LANE}")
    A(f"v_bfe_u32 v{T+1}, v{V_LANE}, 4, 1")
    A(f"v_lshrrev_b32 v{T+2}, 1, v{T}")
    A(f"v_lshl_add_u32 v{T+2}, v{T+1}, 1, v{T+2}")
    A(f"v_and_b32 v{T+3}, 1, v{T}")
    A(f"v_lshrrev_b32 v{T+4}, 5, v{V_LANE}")
    A(f"v_bfe_u32 v{T+5}, v{V_LANE}, 2, 2")
    A(f"v_mul_u32_u24 v{T+5}, 40, v{T+5}")
    A(f"v_lshl_add_u32 v{T+5}, v{T+2}, 3, v{T+5}")
    A(f"s_mul_i32 s{S_T0}, s{S_WC}, 800")
    A(f"s_add_u32 s{S_T0}, s{S_T0}, {A_PHI}")
    A(f"v_add_u32 v{T+5}, s{S_T0}, v{T+5}")
    A(f"v_mov_b32 v{T+6}, {A_ZERO}")
    A(f"v_cmp_eq_u32 vcc, v{T+3}, v{T+4}")
    A("s_nop 1")
    A(f"v_cndmask_b32 v{V_EA}, v{T+6}, v{T+5}, vcc")
    A(f"v_cmp_eq_u32 vcc, 0, v{T+2}")
    A("s_nop 1")
    A(f"v_cndmask_b32 v{V_EA+1}, v{T+6}, v{V_EA}, vcc")
    for o in range(2):
        for s_ in range(3):
            r = V_WP + 4*(3*o+s_)
            A(f"ds_read_b64_tr_b16 v[{r}:{r+1}], v{V_EA+o} offset:{320*s_+32*o}")
            if s_ < 2:
                A(f"ds_read_b64_tr_b16 v[{r+2}:{r+3}], v{V_EA+o} offset:{320*s_+160+32*o}")
            else:
                A(f"v_mov_b32 v{r+2}, 0")
                A(f"v_mov_b32 v{r+3}, 0")
    A(f"v_mov_b32 v{V_QB+10}, 0")
    A(f"v_mov_b32 v{V_QB+11}, 0")
    A(f"v_and_b32 v{T}, 31, v{V_LANE}")
    A(f"v_lshlrev_b32 v{V_EA+2}, 4, v{T}")
    A(f"s_lshl_b32 s{S_T0}, s{S_RB}, 2")
    A(f"s_lshl_b32 s{S_T1}, s{S_WT}, 1")
    A(f"s_add_u32 s{S_T0}, s{S_T0}, s{S_T1}")
    A(f"s_lshl_b32 s{S_T0}, s{S_T0}, 5")
    A(f"s_lshl_b32 s{S_T1}, s{S_CB}, 2")
    A(f"s_add_u32 s{S_T0}, s{S_T0}, s{S_T1}")
    A(f"s_add_u32 s{S_T0}, s{S_T0}, s{S_WC}")
    A(f"s_mul_i32 s{S_T0}, s{S_T0}, 2560")
    A(f"s_add_u32 s{S_T4}, s{S_T0}, {WS_PQ}")
    A(f"v_bfe_u32 v{T+1}, v{T}, 1, 1")
    A(f"v_lshlrev_b32 v{T+1}, 2, v{T+1}")
    A(f"v_bfe_u32 v{T+2}, v{T}, 2, 1")
    A(f"v_lshl_or_b32 v{T+1}, v{T+2}, 1, v{T+1}")
    A(f"v_and_b32 v{T+2}, 1, v{T}")
    A(f"v_or_b32 v{T+1}, v{T+1}, v{T+2}")
    A(f"v_lshlrev_b32 v{T+1}, 4, v{T+1}")
    A(f"s_lshl_b32 s{S_T0}, s{S_WC}, 14")
    A(f"s_lshl_b32 s{S_T1}, s{S_WT}, 13")
    A(f"s_add_u32 s{S_T0}, s{S_T0}, s{S_T1}")
    A(f"v_lshlrev_b32 v{T+2}, 7, v{T}")
    A(f"v_add_u32 v{T+2}, s{S_T0}, v{T+2}")
    for c in range(5):
        A(f"v_xor_b32 v{T+3}, {16*c}, v{T+1}")
        A(f"v_add_u32 v{V_EA+3+c}, v{T+2}, v{T+3}")
    A(f"v_lshrrev_b32 v{T+4}, 5, v{V_LANE}")
    A(f"v_add_u32 v{T+3}, 5, v{T+4}")
    A(f"v_lshlrev_b32 v{T+3}, 4, v{T+3}")
    A(f"v_xor_b32 v{T+3}, v{T+3}, v{T+1}")
    A(f"v_add_u32 v{V_EA+8}, v{T+2}, v{T+3}")
    A(f"v_xor_b32 v{T+3}, {16*7}, v{T+1}")
    A(f"v_add_u32 v{T+3}, v{T+2}, v{T+3}")
    A(f"v_lshl_add_u32 v{V_EA+9}, v{T+4}, 3, v{T+3}")
    A(f"v_cmp_lt_u32 s[{S_EX+10}:{S_EX+11}], v{V_LANE}, 32") if False else None
    A(f"s_mov_b32 s{S_T2}, {L2E}")
    A("s_waitcnt lgkmcnt(0)")
    lab = "L_A_epi"
    A(f"s_mov_b32 s{S_T}, 0")
    A.label(lab)
    a0, a1 = V_ACC, V_ACC+16
    for j in range(8): A(f"v_cvt_pk_bf16_f32 v{V_QB+j}, v{a0+2*j}, v{a0+2*j+1}")
    for j in range(2): A(f"v_cvt_pk_bf16_f32 v{V_QB+8+j}, v{a1+2*j}, v{a1+2*j+1}")
    for j in range(6): A(f"v_cvt_pk_bf16_f32 v{V_PV+j}, v{a1+4+2*j}, v{a1+5+2*j}")
    A("s_nop 1")
    for o, P in ((0, V_P0), (1, V_P1)):
        for s_ in range(3):
            c = "0" if s_ == 0 else f"v[{P}:{P+15}]"
            A(f"v_mfma_f32_32x32x16_bf16 v[{P}:{P+15}], v[{V_WP+4*(3*o+s_)}:{V_WP+4*(3*o+s_)+3}], v[{V_QB+4*s_}:{V_QB+4*s_+3}], {c}")
    A(f"s_mov_b32 exec_lo, 0")
    A(f"v_mov_b32 v{V_PV+4}, 0x3f80")
    A(f"v_mov_b32 v{V_PV+5}, 0")
    A(f"s_mov_b32 exec_lo, -1")
    A(f"ds_write_b128 v{V_EA+8}, v[{V_PV}:{V_PV+3}]")
    A(f"ds_write_b64 v{V_EA+9}, v[{V_PV+4}:{V_PV+5}]")
    A("s_nop 7")
    A("s_nop 1")
    p = [V_P0+i for i in range(16)] + [V_P1+i for i in range(4)]
    MX, MN = T, T+1
    A(f"v_max3_f32 v{MX}, v{p[0]}, v{p[1]}, v{p[2]}")
    A(f"v_min3_f32 v{MN}, v{p[0]}, v{p[1]}, v{p[2]}")
    for i in range(3, 19, 2):
        A(f"v_max3_f32 v{MX}, v{MX}, v{p[i]}, v{p[i+1]}")
        A(f"v_min3_f32 v{MN}, v{MN}, v{p[i]}, v{p[i+1]}")
    A(f"v_max_f32 v{MX}, v{MX}, v{p[19]}")
    A(f"v_min_f32 v{MN}, v{MN}, v{p[19]}")
    A(f"v_mul_f32 v{MX}, s{S_T2}, v{MX}")
    A(f"v_mul_f32 v{MN}, s{S_T2}, v{MN}")
    for i in range(20):
        A(f"v_fma_f32 v{V_E+i}, v{p[i]}, s{S_T2}, -v{MX}")
        A(f"v_fma_f32 v{V_E+20+i}, -v{p[i]}, s{S_T2}, v{MN}")
    for i in range(40):
        A(f"v_exp_f32 v{V_E+i}, v{V_E+i}")
    SP, SN = T+2, T+4
    A("s_nop 0")
    A(f"v_pk_add_f32 v[{SP+1}:{SP+2}], v[{V_E}:{V_E+1}], v[{V_E+2}:{V_E+3}]")
    A(f"v_pk_add_f32 v[{SP+3}:{SP+4}], v[{V_E+20}:{V_E+21}], v[{V_E+22}:{V_E+23}]")
    for i in range(4, 20, 2):
        A(f"v_pk_add_f32 v[{SP+1}:{SP+2}], v[{SP+1}:{SP+2}], v[{V_E+i}:{V_E+i+1}]")
        A(f"v_pk_add_f32 v[{SP+3}:{SP+4}], v[{SP+3}:{SP+4}], v[{V_E+20+i}:{V_E+20+i+1}]")
    A(f"v_add_f32 v{SP+1}, v{SP+1}, v{SP+2}")
    A(f"v_add_f32 v{SP+3}, v{SP+3}, v{SP+4}")
    A(f"v_rcp_f32 v{SP+1}, v{SP+1}")
    A(f"v_rcp_f32 v{SP+3}, v{SP+3}")
    A("s_nop 0")
    for i in range(0, 20, 2):
        A(f"v_pk_mul_f32 v[{V_E+i}:{V_E+i+1}], v[{V_E+i}:{V_E+i+1}], v[{SP+1}:{SP+2}] op_sel_hi:[1,0]")
        A(f"v_pk_mul_f32 v[{V_E+20+i}:{V_E+20+i+1}], v[{V_E+20+i}:{V_E+20+i+1}], v[{SP+3}:{SP+4}] op_sel_hi:[1,0]")
    for i in range(20):
        A(f"v_cvt_pk_bf16_f32 v{V_PH+i}, v{V_E+2*i}, v{V_E+2*i+1}")
    A("s_mov_b32 exec_hi, 0")
    if opts.get("dbg") == "q":
        for c in range(3):
            A(f"buffer_store_dwordx4 v[{V_QB+4*c}:{V_QB+4*c+3}], v{V_EA+2}, s[{SRD_WS}:{SRD_WS+3}], s{S_T4} offen offset:{512*c}")
    elif opts.get("dbg") == "p":
        for c in range(5):
            A(f"buffer_store_dwordx4 v[{V_P0+4*c}:{V_P0+4*c+3}], v{V_EA+2}, s[{SRD_WS}:{SRD_WS+3}], s{S_T4} offen offset:{512*c}")
    elif opts.get("dbg") == "wp":
        A("s_mov_b32 exec_hi, -1")
        A(f"v_lshlrev_b32 v{V_T+6}, 4, v{V_LANE}")
        for c in range(2):
            A(f"buffer_store_dwordx4 v[{V_WP+4*c}:{V_WP+4*c+3}], v{V_T+6}, s[{SRD_WS}:{SRD_WS+3}], s{S_T4} offen offset:{1024*c}")
    else:
      for c in range(5):
        A(f"buffer_store_dwordx4 v[{V_PH+4*c}:{V_PH+4*c+3}], v{V_EA+2}, s[{SRD_WS}:{SRD_WS+3}], s{S_T4} offen offset:{512*c}")
    A("s_mov_b32 exec_hi, -1")
    A("s_mov_b32 exec_lo, 0")
    for c in range(5):
        A(f"ds_write_b128 v{V_EA+3+c}, v[{V_PH+4*c}:{V_PH+4*c+3}]")
    A("s_mov_b32 exec_lo, -1")
    A(f"s_add_u32 s{S_T}, s{S_T}, 1")
    A(f"s_cmp_eq_u32 s{S_T}, 2")
    A(f"s_cbranch_scc1 L_A_epi_done")
    for i in range(32): A(f"v_mov_b32 v{V_ACC+i}, v{V_ACC+32+i}")
    A(f"s_add_u32 s{S_T4}, s{S_T4}, {32*2560}")
    for i in range(3, 10): A(f"v_add_u32 v{V_EA+i}, 4096, v{V_EA+i}")
    A(f"s_branch {lab}")
    A.label("L_A_epi_done")
    A("s_waitcnt lgkmcnt(0)")
    A("s_barrier")
    A(f"v_bfe_u32 v{T}, v{V_LANE}, 2, 2")
    A(f"v_lshrrev_b32 v{T+1}, 1, v{T}")
    A(f"v_lshlrev_b32 v{T+1}, 2, v{T+1}")
    A(f"v_and_b32 v{T+2}, 1, v{T}")
    A(f"v_or_b32 v{T+1}, v{T+1}, v{T+2}")
    A(f"v_lshrrev_b32 v{T+2}, 5, v{V_LANE}")
    A(f"v_lshl_add_u32 v{T+2}, v{T+2}, 3, v{T}")
    A(f"v_lshlrev_b32 v{T+2}, 7, v{T+2}")
    A(f"s_lshl_b32 s{S_T0}, s{S_WC}, 14")
    A(f"v_add_u32 v{T+2}, s{S_T0}, v{T+2}")
    A(f"v_bfe_u32 v{T+3}, v{V_LANE}, 4, 1")
    A(f"v_and_b32 v{T+4}, 3, v{V_LANE}")
    A(f"v_lshl_add_u32 v{T+3}, v{T+3}, 2, v{T+4}")
    A(f"v_and_b32 v{T+4}, 4, v{T+3}")
    A(f"v_and_b32 v{T+5}, 1, v{T+3}")
    A(f"v_lshl_add_u32 v{T+4}, v{T+5}, 1, v{T+4}")
    A(f"v_bfe_u32 v{T+5}, v{T+3}, 1, 1")
    A(f"v_add_u32 v{T+4}, v{T+4}, v{T+5}")
    A(f"v_and_b32 v{T+5}, 1, v{T+3}")
    A(f"v_add_u32 v{T+5}, 8, v{T+5}")
    A(f"s_cmp_eq_u32 s{S_WT}, 0")
    A(f"s_cselect_b64 vcc, -1, 0")
    A(f"v_cndmask_b32 v{T+4}, v{T+5}, v{T+4}, vcc")
    def piece_addr(grp_chunk_e_reg_chunk, e_reg, dst0, dst1):
        pass
    A(f"v_lshrrev_b32 v{T+5}, 1, v{T+4}")
    A(f"v_and_b32 v{T+4}, 1, v{T+4}")
    A(f"v_xor_b32 v{T+6}, v{T+5}, v{T+1}")
    A(f"v_lshlrev_b32 v{T+6}, 4, v{T+6}")
    A(f"v_lshl_add_u32 v{T+6}, v{T+4}, 3, v{T+6}")
    A(f"v_add_u32 v{V_EA}, v{T+2}, v{T+6}")
    A(f"v_xor_b32 v{T+6}, 32, v{T+6}")
    A(f"v_add_u32 v{V_EA+1}, v{T+2}, v{T+6}")
    A(f"v_add_u32 v{V_EA+1}, 512, v{V_EA+1}")
    A(f"s_mov_b32 s{S_T1}, 0xfffdceba")
    A(f"v_lshlrev_b32 v{T+4}, 2, v{T+3}")
    A(f"v_lshrrev_b32 v{T+4}, v{T+4}, s{S_T1}")
    A(f"v_and_b32 v{T+4}, 15, v{T+4}")
    A(f"v_lshrrev_b32 v{T+5}, 1, v{T+4}")
    A(f"v_and_b32 v{T+4}, 1, v{T+4}")
    A(f"v_xor_b32 v{T+6}, v{T+5}, v{T+1}")
    A(f"v_lshlrev_b32 v{T+6}, 4, v{T+6}")
    A(f"v_lshl_add_u32 v{T+6}, v{T+4}, 3, v{T+6}")
    A(f"v_add_u32 v{V_EA+2}, v{T+2}, v{T+6}")
    A(f"v_xor_b32 v{T+6}, 32, v{T+6}")
    A(f"v_add_u32 v{V_EA+3}, v{T+2}, v{T+6}")
    A(f"v_add_u32 v{V_EA+3}, 512, v{V_EA+3}")
    FR = 80
    for ks in range(8):
        r = FR + 8*ks
        A(f"ds_read_b64_tr_b16 v[{r}:{r+1}], v{V_EA} offset:{2048*ks}")
        A(f"ds_read_b64_tr_b16 v[{r+2}:{r+3}], v{V_EA+1} offset:{2048*ks}")
        A(f"ds_read_b64_tr_b16 v[{r+4}:{r+5}], v{V_EA+2} offset:{2048*ks}")
        A(f"ds_read_b64_tr_b16 v[{r+6}:{r+7}], v{V_EA+3} offset:{2048*ks}")
    for ks in range(8):
        r = FR + 8*ks
        if ks % 2 == 0: A(f"s_waitcnt lgkmcnt({max(0, 32-4*(ks+2)) if 32-4*(ks+2) <= 15 else 15})")
        c = "0" if ks == 0 else f"v[{V_P0}:{V_P0+15}]"
        A(f"v_mfma_f32_32x32x16_bf16 v[{V_P0}:{V_P0+15}], v[{r}:{r+3}], v[{r+4}:{r+7}], {c}")
    A(f"s_lshl_b32 s{S_T0}, s{S_RB}, 5")
    A(f"s_lshl_b32 s{S_T1}, s{S_CB}, 2")
    A(f"s_add_u32 s{S_T0}, s{S_T0}, s{S_T1}")
    A(f"s_add_u32 s{S_T0}, s{S_T0}, s{S_WC}")
    A(f"s_mul_i32 s{S_T0}, s{S_T0}, 5120")
    A(f"s_lshl_b32 s{S_T1}, s{S_WT}, 12")
    A(f"s_add_u32 s{S_T0}, s{S_T0}, s{S_T1}")
    A(f"s_add_u32 s{S_T0}, s{S_T0}, {WS_KV}")
    A(f"v_lshlrev_b32 v{T}, 4, v{V_LANE}")
    A(f"v_and_b32 v{T+1}, 31, v{V_LANE}")
    A(f"v_cmp_gt_u32 vcc, 21, v{T+1}")
    A("s_nop 7")
    A("s_nop 3")
    A(f"s_and_saveexec_b64 s[{S_EX}:{S_EX+1}], vcc")
    A(f"buffer_store_dwordx4 v[{V_P0}:{V_P0+3}], v{T}, s[{SRD_WS}:{SRD_WS+3}], s{S_T0} offen")
    A(f"s_cmp_eq_u32 s{S_WT}, 0")
    l = A.newlabel("L_kvskip")
    A(f"s_cbranch_scc0 {l}")
    for g in range(1, 4):
        A(f"buffer_store_dwordx4 v[{V_P0+4*g}:{V_P0+4*g+3}], v{T}, s[{SRD_WS}:{SRD_WS+3}], s{S_T0} offen offset:{1024*g}")
    A.label(l)
    A(f"s_mov_b64 exec, s[{S_EX}:{S_EX+1}]")
```

```python
import build, re
base = build.build(kernels=('k1','k2','k3'))
def add_empty(txt, n_end=0, n_begin=0):
    lines = txt.split("\n")
    idx = [i for i,l in enumerate(lines) if l.startswith("; @launch")]
    e = "; @launch kernel=e_kernel grid=(256,1,1) block=(256,1,1) lds=0"
    lines[idx[-1]+1:idx[-1]+1] = [e]*n_end
    lines[idx[0]:idx[0]] = [e]*n_begin
    txt = "\n".join(lines)
    txt = txt.replace('.section .rodata,"a"', '.globl e_kernel\n.p2align 8\n.type e_kernel,@function\ne_kernel:\ns_endpgm\n.section .rodata,"a"')
    txt += """.p2align 6
.amdhsa_kernel e_kernel
  .amdhsa_next_free_vgpr 8
  .amdhsa_next_free_sgpr 16
  .amdhsa_accum_offset 8
  .amdhsa_group_segment_fixed_size 0
  .amdhsa_kernarg_size 88
  .amdhsa_user_sgpr_count 2
  .amdhsa_user_sgpr_kernarg_segment_ptr 1
  .amdhsa_system_sgpr_workgroup_id_x 1
.end_amdhsa_kernel
"""
    return txt
open('v0.s','w').write(base)
open('v1.s','w').write(add_empty(base, n_end=1))
open('v2.s','w').write(add_empty(base, n_end=3))
open('v3.s','w').write(add_empty(base, n_begin=1))
```

```python
from asmlib import *
import gen_k1 as K1
import importlib

NAME = "parallel_sum__linear_kernel_hedgehog__glu_gated_bilinear__prompt"

HEADER = """; Kernarg layout for this problem (88 bytes, ptrs only, base s[0:1]):
"""

def build(kernels=("k1",), prof=False, rotmul=3, rotrb=1, opts=None):
    opts = opts or {}
    A = Asm()
    launches = []
    descs = []
    body = Asm()
    if "k1u" in kernels or "k1v" in kernels:
        import gen_k1u as P
        if "k1v" in kernels:
            import gen_k1v as P
            K1.OPT["no_touch"] = 1
        launches.append(f"; @launch kernel=k1_kernel grid=(256,1,1) block=(512,1,1) lds={P.LDS_K1}")
        kernel_header(body, "k1_kernel")
        P.prologue_head(body, prof)
        body(f"s_cmp_eq_u32 s{K1.S_TYPE}, 1")
        body("s_cbranch_scc1 L_k1_A")
        P.f_path(body, prof)
        if prof: P.write_stamps(body, 5)
        body("s_endpgm")
        body.label("L_k1_A")
        P.a_path(body, prof, opts)
        if prof: P.write_stamps(body, 5)
        body("s_endpgm")
        body.label("L_k1_end")
        descs.append(kernel_desc("k1_kernel", 256, 100, 256))
        rotmul = opts.get("rotmul", 5)
    if "k1p" in kernels:
        import gen_k1p as P
        launches.append(f"; @launch kernel=k1_kernel grid=(256,1,1) block=(512,1,1) lds={P.LDS_K1}")
        kernel_header(body, "k1_kernel")
        P.prologue_head(body, prof)
        body(f"s_cmp_eq_u32 s{K1.S_TYPE}, 1")
        body("s_cbranch_scc1 L_k1_A")
        P.f_path(body, prof)
        if prof: P.write_stamps(body, 5)
        body("s_endpgm")
        body.label("L_k1_A")
        P.a_path(body, prof, opts)
        if prof: P.write_stamps(body, 5)
        body("s_endpgm")
        descs.append(kernel_desc("k1_kernel", 256, 96, 256))
    if "k1" in kernels:
        launches.append(f"; @launch kernel=k1_kernel grid=(256,1,1) block=(512,1,1) lds={K1.LDS_K1}")
        kernel_header(body, "k1_kernel")
        K1.prologue_common(body, prof)
        body(f"s_cmp_eq_u32 s{K1.S_TYPE}, 1")
        body("s_cbranch_scc1 L_k1_A")
        K1.f_path(body, prof)
        if prof: K1.write_stamps(body, 5)
        body("s_endpgm")
        body.label("L_k1_A")
        if hasattr(K1, "a_path") and not opts.get("noA"):
            K1.a_path(body, prof, opts)
            if prof: K1.write_stamps(body, 5)
        body("s_endpgm")
        descs.append(kernel_desc("k1_kernel", 256, 96, 256))
    for extra in ("k2", "k2b", "k3", "k3f", "k3g", "k3h", "k3s", "k3i"):
        if extra in kernels:
            mod = importlib.import_module("gen_" + extra)
            launches.append(mod.launch_line())
            kernel_header(body, extra[:2] + "_kernel")
            mod.emit(body, prof, opts)
            descs.append(mod.desc())
    txt = HEADER + "\n".join(launches) + "\n"
    txt += '.amdgcn_target "amdgcn-amd-amdhsa--gfx950"\n'
    txt += f".set ROTMUL, {rotmul}\n.set ROTRB, {rotrb}\n"
    body.label("L_text_end")
    txt += ".text\n" + body.text()
    txt += '.section .rodata,"a"\n' + "".join(descs)
    return txt

if __name__ == "__main__":
    import sys
    open(sys.argv[1], "w").write(build())
```

```python
from asmlib import *

WS_H    = 0
WS_O    = WS_H + 128*48*1024
WS_PQ   = WS_O + 128*24*1024
WS_KV   = WS_PQ + 64*32*2560
WS_W3   = WS_KV + 16*32*5120
WS_FLAG = WS_W3 + 8*72*5*1024
WS_END  = WS_FLAG + 1024
WS_DBG  = 24 << 20
WS_SIZE = 32 << 20

S_XP, S_QKVP = 4, 6
SRD_X, SRD_W, SRD_WS, SRD_M = 8, 12, 16, 20
S_PHIP, S_WOP, S_WGP, S_WUP, S_WDP, S_WSP = 24, 26, 28, 30, 32, 34
S_WV, S_RB, S_CB, S_ROT, S_TYPE = 36, 37, 38, 39, 40
S_WNEXT, S_WCNT, S_DSLOT, S_LDSW, S_T0, S_RSLOT, S_T, S_IDX = 41, 42, 43, 44, 45, 46, 47, 48
S_T1, S_MASK, S_ONES, S_T2, S_T3, S_WT, S_WC = 49, 50, 51, 52, 53, 54, 55
S_OOB, S_T4 = 56, 57
S_EX = 58
S_ST = 60

V_TID, V_LANE = 0, 1
V_WD = 2
V_WB, V_WA = 5, 6
V_XR = 7
V_XW = 11
V_R, V_B = 13, 15
V_T = 17
V_N = 24
V_SET = [40, 60]
V_X = 80
V_ACC = 160
V_WB1, V_WA1 = 4, 23

XSLOT = 16384
WBASE = 32768
F_SLOT = 24832
F_UP = 12320
F_R = 5
A_SLOT = 16384
A_R = 5
A_W3ST = WBASE + A_R*A_SLOT
A_PHI = A_W3ST + 40960
A_ZERO = A_PHI + 4096
LDS_K1 = 163840

def stamp(A, i, en):
    if en:
        A(f"s_memtime s[{S_ST+2*i}:{S_ST+2*i+1}]")

def dma_issue(A, nins, pitch, slot, R):
    L = []
    L.append(f"s_cmp_lt_u32 s{S_WCNT}, 20")
    L.append(f"s_cselect_b32 s{S_T0}, s{S_WNEXT}, s{S_OOB}")
    L.append(f"s_add_u32 s{S_T1}, s{S_LDSW}, s{S_DSLOT}")
    for i in range(nins):
        L.append([f"s_add_u32 m0, s{S_T1}, {i*1024}", "s_nop 0",
                  f"buffer_load_dwordx4 v{V_WD+i}, s[{SRD_W}:{SRD_W+3}], s{S_T0} offen lds"])
    L.append(f"s_add_u32 s{S_WNEXT}, s{S_WNEXT}, {32*pitch}")
    L.append(f"s_cmp_eq_u32 s{S_WNEXT}, {640*pitch}")
    L.append(f"s_cselect_b32 s{S_WNEXT}, 0, s{S_WNEXT}")
    L.append(f"s_add_u32 s{S_WCNT}, s{S_WCNT}, 1")
    L.append(f"s_add_u32 s{S_DSLOT}, s{S_DSLOT}, {slot}")
    L.append(f"s_cmp_eq_u32 s{S_DSLOT}, {slot*R}")
    L.append(f"s_cselect_b32 s{S_DSLOT}, 0, s{S_DSLOT}")
    return L

def flat(L):
    o = []
    for x in L:
        if isinstance(x, (list, tuple)): o.extend(x)
        else: o.append(x)
    return o

def norm_block(g):
    U = V_N
    P = V_N + 8
    L = []
    blk = [f"s_set_gpr_idx_on s{S_IDX}, gpr_idx(SRC1)"]
    for r in range(4):
        blk.append(f"v_lshlrev_b32 v{U+2*r}, 16, v{V_X+4*g+r}")
        blk.append(f"v_and_b32 v{U+2*r+1}, s{S_MASK}, v{V_X+4*g+r}")
    blk.append("s_set_gpr_idx_off")
    L.append(blk)
    for r in range(8):
        L.append(f"v_fma_f32 v{U+r}, v{U+r}, v{V_R+g}, v{V_B+g}")
    for r in range(4):
        L.append(f"v_cvt_pk_bf16_f32 v{P+r}, v{U+2*r}, v{U+2*r+1}")
    L.append(f"ds_write_b128 v{V_XW+g}, v[{P}:{P+3}]")
    return L

def x_reads(st, t4):
    b = V_SET[st]
    return [f"ds_read_b128 v[{b}:{b+3}], v{V_XR+t4}",
            f"ds_read_b128 v[{b+4}:{b+7}], v{V_XR+t4} offset:4096"]

def f_wreads(st, t):
    b = V_SET[st] + 8
    L = []
    for ft in range(3):
        for e2 in range(2):
            L.append(f"ds_read_b64_tr_b16 v[{b+4*ft+2*e2}:{b+4*ft+2*e2+1}], v{V_WA} offset:{t*6144+e2*1536+ft*512}")
    return L

def f_mfmas(st):
    b = V_SET[st]
    L = []
    for ft in range(3):
        for tau in range(2):
            c = V_ACC + 16*(3*tau+ft)
            L.append(f"v_mfma_f32_32x32x16_bf16 v[{c}:{c+15}], v[{b+8+4*ft}:{b+11+4*ft}], v[{b+4*tau}:{b+3+4*tau}], v[{c}:{c+15}]")
    return L

def a_wreads(st, t):
    b = V_SET[st] + 8
    L = []
    for a_ in range(2):
        for e2 in range(2):
            L.append(f"ds_read_b64_tr_b16 v[{b+4*a_+2*e2}:{b+4*a_+2*e2+1}], v{[V_WA,V_WA1][a_]} offset:{t*8192+e2*2048}")
    return L

def a_mfmas(st):
    b = V_SET[st]
    L = []
    for a_ in range(2):
        for tau in range(2):
            c = V_ACC + 16*(2*tau+a_)
            L.append(f"v_mfma_f32_32x32x16_bf16 v[{c}:{c+15}], v[{b+8+4*a_}:{b+11+4*a_}], v[{b+4*tau}:{b+3+4*tau}], v[{c}:{c+15}]")
    return L

def norm_parts(g):
    U = V_N
    P = V_N + 8 + 4*g
    L = []
    blk = [f"s_set_gpr_idx_on s{S_IDX}, gpr_idx(SRC1)"]
    for r in range(4):
        blk.append(f"v_lshlrev_b32 v{U+2*r}, 16, v{V_X+4*g+r}")
        blk.append(f"v_and_b32 v{U+2*r+1}, s{S_MASK}, v{V_X+4*g+r}")
    blk.append("s_set_gpr_idx_off")
    L.append(blk)
    for r in range(8):
        L.append(f"v_fma_f32 v{U+r}, v{U+r}, v{V_R+g}, v{V_B+g}")
    for r in range(4):
        L.append(f"v_cvt_pk_bf16_f32 v{P+r}, v{U+2*r}, v{U+2*r+1}")
    return L, f"ds_write_b128 v{V_XW+g}, v[{P}:{P+3}]"

OPT = {}
def main_loop(A, typ, prof):
    F = typ == 'F'
    nins = 3 if F else 2
    pitch = 3072 if F else 3840
    slot = F_SLOT if F else A_SLOT
    R = F_R if F else A_R
    wreads = f_wreads if F else a_wreads
    mfmas = f_mfmas if F else a_mfmas
    def rslot_adv():
        L = [f"s_add_u32 s{S_RSLOT}, s{S_RSLOT}, {slot}",
             f"s_cmp_eq_u32 s{S_RSLOT}, {slot*R}",
             f"s_cselect_b32 s{S_RSLOT}, 0, s{S_RSLOT}",
             f"v_add_u32 v{V_WA}, s{S_RSLOT}, v{V_WB}"]
        if not F: L.append(f"v_add_u32 v{V_WA1}, s{S_RSLOT}, v{V_WB1}")
        return L
    def dma():
        return [] if OPT.get("no_dma") else dma_issue(A, nins, pitch, slot, R)
    def bar():
        if not OPT.get("no_bar"): A("s_barrier")
    n0, w0 = norm_parts(0)
    n1, w1 = norm_parts(1)
    if OPT.get("no_norm"): n0, n1, w0, w1 = [], [], "s_nop 0", "s_nop 0"
    lab = f"L_{typ}_loop"
    A(f"s_mov_b32 s{S_T}, 0")
    A(f"s_mov_b32 s{S_IDX}, 8")
    A(".p2align 6")
    A.label(lab)
    vm = nins*(R-2)
    interleave(A, mfmas(0), x_reads(1, 1) + wreads(1, 1) + n0)
    A(f"s_waitcnt vmcnt({vm}) lgkmcnt(0)")
    bar()
    for x in rslot_adv(): A(x)
    interleave(A, mfmas(1), [w0] + x_reads(0, 2) + wreads(0, 0) + dma() + n1)
    A("s_waitcnt lgkmcnt(0)")
    interleave(A, mfmas(0), [w1] + x_reads(1, 3) + wreads(1, 1))
    A(f"s_waitcnt vmcnt({vm}) lgkmcnt(0)")
    bar()
    for x in rslot_adv(): A(x)
    for i in range(4): A(f"v_xor_b32 v{V_XR+i}, {XSLOT}, v{V_XR+i}")
    tail = [f"v_xor_b32 v{V_XW}, {XSLOT}, v{V_XW}", f"v_xor_b32 v{V_XW+1}, {XSLOT}, v{V_XW+1}",
            f"s_add_u32 s{S_IDX}, s{S_IDX}, 8",
            f"s_cmp_eq_u32 s{S_IDX}, 80",
            f"s_cselect_b32 s{S_IDX}, 0, s{S_IDX}"]
    interleave(A, mfmas(1), x_reads(0, 0) + wreads(0, 0) + dma() + tail)
    A("s_waitcnt lgkmcnt(0)")
    A(f"s_add_u32 s{S_T}, s{S_T}, 1")
    A(f"s_cmp_lt_u32 s{S_T}, 10")
    A(f"s_cbranch_scc1 {lab}")

def prologue_common(A, prof):
    A("s_cmp_ge_u32 s2, 256")
    A("s_cbranch_scc0 L_k1_go")
    A("s_endpgm")
    A.label("L_k1_go")
    stamp(A, 0, prof)
    A(f"s_load_dwordx4 s[{S_XP}:{S_XP+3}], s[0:1], 0")
    A(f"s_load_dwordx4 s[{S_PHIP}:{S_PHIP+3}], s[0:1], 16")
    A(f"s_load_dwordx4 s[{S_WGP}:{S_WGP+3}], s[0:1], 40")
    A(f"s_load_dwordx2 s[{S_WDP}:{S_WDP+1}], s[0:1], 56")
    A(f"s_load_dwordx2 s[{S_WSP}:{S_WSP+1}], s[0:1], 80")
    A(f"v_and_b32 v{V_LANE}, 63, v0")
    A(f"v_lshrrev_b32 v{V_T}, 6, v0")
    A(f"s_and_b32 s{S_T0}, s2, 7")
    A(f"v_readfirstlane_b32 s{S_WV}, v{V_T}")
    A(f"s_lshr_b32 s{S_T1}, s2, 3")
    A(f"s_lshr_b32 s{S_TYPE}, s{S_T1}, 4")
    A(f"s_and_b32 s{S_T2}, s{S_T1}, 7")
    A(f"s_bfe_u32 s{S_T3}, s{S_T1}, 0x10003")
    A(f"s_and_b32 s{S_RB}, s{S_T0}, 1")
    A(f"s_lshl_b32 s{S_RB}, s{S_RB}, 3")
    A(f"s_add_u32 s{S_RB}, s{S_RB}, s{S_T2}")
    A(f"s_lshr_b32 s{S_CB}, s{S_T0}, 1")
    A(f"s_lshl_b32 s{S_CB}, s{S_CB}, 1")
    A(f"s_add_u32 s{S_CB}, s{S_CB}, s{S_T3}")
    A(f"s_lshl_b32 s{S_T4}, s{S_TYPE}, 1")
    A(f"s_add_u32 s{S_T4}, s{S_T4}, s{S_T3}")
    A(f"s_mul_i32 s{S_T4}, s{S_T4}, ROTMUL")
    A(f"s_mul_i32 s{S_T2}, s{S_T2}, ROTRB")
    A(f"s_add_u32 s{S_ROT}, s{S_T4}, s{S_T2}")
    A(f"s_cmp_ge_u32 s{S_ROT}, 10")
    A(f"s_cselect_b32 s{S_T4}, 10, 0")
    A(f"s_sub_u32 s{S_ROT}, s{S_ROT}, s{S_T4}")
    A(f"s_mov_b32 s{S_MASK}, 0xffff0000")
    A(f"s_mov_b32 s{S_ONES}, 0x3f803f80")
    A(f"s_mov_b32 s{S_OOB}, 0x7f000000")
    A(f"s_lshr_b32 s{S_WT}, s{S_WV}, 2")
    A(f"s_and_b32 s{S_WC}, s{S_WV}, 3")
    A(f"v_lshrrev_b32 v{V_T}, 3, v{V_LANE}")
    A(f"s_lshl_b32 s{S_T0}, s{S_WV}, 4")
    A(f"v_add_u32 v{V_T}, s{S_T0}, v{V_T}")
    A(f"v_mul_u32_u24 v{V_T+1}, 1280, v{V_T}")
    A(f"v_and_b32 v{V_T+2}, 7, v{V_LANE}")
    A(f"v_lshl_add_u32 v{V_T+1}, v{V_T+2}, 4, v{V_T+1}")
    A(f"v_add_u32 v{V_T+3}, 10240, v{V_T+1}")
    A(f"v_bfe_u32 v{V_T+4}, v{V_T}, 1, 3")
    A(f"v_xor_b32 v{V_T+4}, v{V_T+4}, v{V_T+2}")
    A(f"v_lshlrev_b32 v{V_T+4}, 4, v{V_T+4}")
    A(f"v_lshl_add_u32 v{V_XW}, v{V_T}, 7, v{V_T+4}")
    A(f"v_xor_b32 v{V_XW+1}, 64, v{V_XW}")
    A(f"v_add_u32 v{V_XW+1}, 1024, v{V_XW+1}")
    A("s_waitcnt lgkmcnt(0)")
    srd(A, SRD_X, S_XP, 2048*1280)
    srd(A, SRD_WS, S_WSP, WS_SIZE)
    A(f"s_mul_i32 s{S_T0}, s{S_RB}, 163840")
    A(f"s_lshl_b32 s{S_T1}, s{S_ROT}, 7")
    for t in range(10):
        A(f"s_add_u32 s{S_T2}, s{S_T0}, s{S_T1}")
        for g in range(2):
            r = V_X + 8*t + 4*g
            A(f"buffer_load_dwordx4 v[{r}:{r+3}], v{V_T+1+2*g}, s[{SRD_X}:{SRD_X+3}], s{S_T2} offen")
        if t == OPT.get("xsplit", -1):
            A("s_waitcnt vmcnt(0)")
        if t < 9:
            A(f"s_add_u32 s{S_T1}, s{S_T1}, 128")
            A(f"s_cmp_eq_u32 s{S_T1}, 1280")
            A(f"s_cselect_b32 s{S_T1}, 0, s{S_T1}")
    A(f"v_and_b32 v{V_T}, 31, v{V_LANE}")
    A(f"v_lshrrev_b32 v{V_T+2}, 5, v{V_LANE}")
    A(f"v_bfe_u32 v{V_T+4}, v{V_T}, 1, 3")
    A(f"v_xor_b32 v{V_T+4}, v{V_T+4}, v{V_T+2}")
    A(f"v_lshlrev_b32 v{V_T+4}, 4, v{V_T+4}")
    A(f"s_lshl_b32 s{S_T0}, s{S_WT}, 13")
    A(f"v_lshl_add_u32 v{V_T+4}, v{V_T}, 7, v{V_T+4}")
    A(f"v_add_u32 v{V_XR}, s{S_T0}, v{V_T+4}")
    for t4 in range(1, 4):
        A(f"v_xor_b32 v{V_XR+t4}, {32*t4}, v{V_XR}")

def stats(A, n_after):
    S0 = V_N
    for i in range(8): A(f"v_mov_b32 v{S0+i}, 0")
    for t in range(10):
        A(f"s_waitcnt vmcnt({min(63, n_after + 2*(9-t))})")
        for g in range(2):
            for r in range(4):
                x = V_X + 8*t + 4*g + r
                A(f"v_dot2_f32_bf16 v{S0+4*g+(r&1)}, v{x}, s{S_ONES}, v{S0+4*g+(r&1)}")
                A(f"v_dot2_f32_bf16 v{S0+4*g+2+(r&1)}, v{x}, v{x}, v{S0+4*g+2+(r&1)}")
    for g in range(2):
        A(f"v_add_f32 v{S0+4*g}, v{S0+4*g}, v{S0+4*g+1}")
        A(f"v_add_f32 v{S0+4*g+2}, v{S0+4*g+2}, v{S0+4*g+3}")
    regs = [S0, S0+2, S0+4, S0+6]
    for mode in ("quad_perm:[1,0,3,2]", "quad_perm:[2,3,0,1]", "row_half_mirror"):
        A("s_nop 1")
        for r in regs:
            A(f"v_add_f32_dpp v{r}, v{r}, v{r} {mode} row_mask:0xf bank_mask:0xf")
    A(f"s_mov_b32 s{S_T0}, 0x3acccccd")
    A(f"s_mov_b32 s{S_T1}, 0x3727c5ac")
    for g in range(2):
        m, q = S0+4*g, S0+4*g+2
        A(f"v_mul_f32 v{m}, s{S_T0}, v{m}")
        A(f"v_mul_f32 v{q}, s{S_T0}, v{q}")
        A(f"v_fma_f32 v{q}, -v{m}, v{m}, v{q}")
        A(f"v_max_f32 v{q}, 0, v{q}")
        A(f"v_add_f32 v{q}, s{S_T1}, v{q}")
        A(f"v_rsq_f32 v{V_R+g}, v{q}")
        A("s_nop 0")
        A(f"v_mul_f32 v{V_B+g}, v{m}, v{V_R+g}")
        A(f"v_sub_f32 v{V_B+g}, 0, v{V_B+g}")

def first_norm(A):
    A(f"s_mov_b32 s{S_IDX}, 0")
    for g in range(2):
        for x in flat(norm_block(g)): A(x)
    A(f"v_xor_b32 v{V_XW}, {XSLOT}, v{V_XW}")
    A(f"v_xor_b32 v{V_XW+1}, {XSLOT}, v{V_XW+1}")

def f_path(A, prof):
    A(f"s_cmp_lt_u32 s{S_WV}, 4")
    A(f"s_cselect_b32 s{S_T0}, s{S_WGP}, s{S_WUP}")
    A(f"s_cselect_b32 s{S_T1}, s{S_WGP+1}, s{S_WUP+1}")
    A(f"s_mov_b32 s{SRD_W}, s{S_T0}")
    A(f"s_and_b32 s{SRD_W+1}, s{S_T1}, 0xffff")
    A(f"s_mov_b32 s{SRD_W+2}, {640*3072}")
    A(f"s_mov_b32 s{SRD_W+3}, 0x20000")
    A(f"v_lshrrev_b32 v{V_T}, 4, v{V_LANE}")
    A(f"v_bfe_u32 v{V_T+1}, v{V_LANE}, 2, 2")
    A(f"v_and_b32 v{V_T+2}, 3, v{V_LANE}")
    A(f"s_mul_i32 s{S_T0}, s{S_WC}, 12")
    A(f"s_mul_i32 s{S_T1}, s{S_CB}, 384")
    for i in range(3):
        A(f"v_add_u32 v{V_T+3}, s{S_T0}, v{V_T}")
        if i: A(f"v_add_u32 v{V_T+3}, {4*i}, v{V_T+3}")
        A(f"v_mul_u32_u24 v{V_T+4}, 43, v{V_T+3}")
        A(f"v_lshrrev_b32 v{V_T+4}, 8, v{V_T+4}")
        A(f"v_mul_u32_u24 v{V_T+5}, 6, v{V_T+4}")
        A(f"v_sub_u32 v{V_T+5}, v{V_T+3}, v{V_T+5}")
        A(f"v_lshl_add_u32 v{V_T+4}, v{V_T+4}, 2, v{V_T+1}")
        A(f"v_mul_u32_u24 v{V_T+4}, 3072, v{V_T+4}")
        A(f"v_lshl_add_u32 v{V_T+4}, v{V_T+5}, 6, v{V_T+4}")
        A(f"v_lshl_add_u32 v{V_T+4}, v{V_T+2}, 4, v{V_T+4}")
        A(f"v_add_u32 v{V_WD+i}, s{S_T1}, v{V_T+4}")
    A(f"s_mul_i32 s{S_T0}, s{S_WT}, {F_UP}")
    A(f"s_mul_i32 s{S_T1}, s{S_WC}, 3072")
    A(f"s_add_u32 s{S_LDSW}, s{S_T0}, s{S_T1}")
    A(f"s_add_u32 s{S_LDSW}, s{S_LDSW}, {WBASE}")
    A(f"s_mul_i32 s{S_WNEXT}, s{S_ROT}, {64*3072}")
    A(f"s_mov_b32 s{S_WCNT}, 0")
    A(f"s_mov_b32 s{S_DSLOT}, 0")
    npre = OPT.get("npre", 2)
    for st in range(npre):
        for x in flat(dma_issue(A, 3, 3072, F_SLOT, F_R)): A(x)
    A(f"v_bfe_u32 v{V_T}, v{V_LANE}, 4, 1")
    A(f"v_mul_u32_u24 v{V_T}, {F_UP}, v{V_T}")
    A(f"v_lshrrev_b32 v{V_T+1}, 5, v{V_LANE}")
    A(f"v_mul_u32_u24 v{V_T+1}, 3072, v{V_T+1}")
    A(f"v_add_u32 v{V_T}, v{V_T}, v{V_T+1}")
    A(f"v_bfe_u32 v{V_T+1}, v{V_LANE}, 2, 2")
    A(f"v_lshl_add_u32 v{V_T}, v{V_T+1}, 6, v{V_T}")
    A(f"v_and_b32 v{V_T+1}, 3, v{V_LANE}")
    A(f"v_lshl_add_u32 v{V_T}, v{V_T+1}, 3, v{V_T}")
    A(f"s_lshr_b32 s{S_T0}, s{S_WC}, 1")
    A(f"s_lshl_b32 s{S_T0}, s{S_T0}, 8")
    A(f"s_and_b32 s{S_T1}, s{S_WC}, 1")
    A(f"s_lshl_b32 s{S_T1}, s{S_T1}, 5")
    A(f"s_add_u32 s{S_T0}, s{S_T0}, s{S_T1}")
    A(f"s_add_u32 s{S_T0}, s{S_T0}, {WBASE}")
    A(f"v_add_u32 v{V_WB}, s{S_T0}, v{V_T}")
    A(f"v_mov_b32 v{V_WA}, v{V_WB}")
    A(f"s_mov_b32 s{S_RSLOT}, 0")
    for i in range(96): A(f"v_mov_b32 v{V_ACC+i}, 0")
    stats(A, 3*npre)
    stamp(A, 1, prof)
    first_norm(A)
    A(f"s_waitcnt vmcnt({3*(npre-1)}) lgkmcnt(0)")
    A("s_barrier")
    for st in range(npre, F_R):
        for x in flat(dma_issue(A, 3, 3072, F_SLOT, F_R)): A(x)
    for x in x_reads(0, 0) + f_wreads(0, 0): A(x)
    A("s_waitcnt lgkmcnt(0)")
    stamp(A, 2, prof)
    main_loop(A, 'F', prof)
    stamp(A, 3, prof)
    A(f"v_bfe_u32 v{V_T}, v{V_LANE}, 4, 1")
    A(f"v_mul_u32_u24 v{V_T}, 49152, v{V_T}")
    A(f"v_lshrrev_b32 v{V_T+1}, 5, v{V_LANE}")
    A(f"v_lshl_add_u32 v{V_T}, v{V_T+1}, 8, v{V_T}")
    A(f"v_and_b32 v{V_T+1}, 15, v{V_LANE}")
    A(f"v_lshl_add_u32 v{V_T}, v{V_T+1}, 4, v{V_T}")
    A(f"s_lshl_b32 s{S_T0}, s{S_RB}, 3")
    A(f"s_lshl_b32 s{S_T1}, s{S_WT}, 2")
    A(f"s_add_u32 s{S_T0}, s{S_T0}, s{S_T1}")
    A(f"s_mul_i32 s{S_T0}, s{S_T0}, 48")
    A(f"s_mul_i32 s{S_T1}, s{S_CB}, 6")
    A(f"s_add_u32 s{S_T0}, s{S_T0}, s{S_T1}")
    A(f"s_lshr_b32 s{S_T1}, s{S_WC}, 1")
    A(f"s_add_u32 s{S_T0}, s{S_T0}, s{S_T1}")
    A(f"s_lshl_b32 s{S_T0}, s{S_T0}, 10")
    A(f"s_and_b32 s{S_T1}, s{S_WC}, 1")
    A(f"s_lshl_b32 s{S_T1}, s{S_T1}, 9")
    A(f"s_add_u32 s{S_T0}, s{S_T0}, s{S_T1}")
    if WS_H: A(f"s_add_u32 s{S_T0}, s{S_T0}, {WS_H}")
    A("s_nop 7")
    A("s_nop 3")
    for tau in range(2):
        for ft in range(3):
            c = V_ACC + 16*(3*tau+ft)
            P = V_N + 4*((3*tau+ft) & 3)
            for r in range(8):
                A(f"v_mul_f32 v{c+r}, v{c+r}, v{c+8+r}")
            for r in range(4):
                A(f"v_cvt_pk_bf16_f32 v{P+r}, v{c+2*r}, v{c+2*r+1}")
            A(f"s_add_u32 s{S_T1}, s{S_T0}, {tau*2*49152 + ft*2048}")
            A(f"buffer_store_dwordx4 v[{P}:{P+3}], v{V_T}, s[{SRD_WS}:{SRD_WS+3}], s{S_T1} offen")
    stamp(A, 4, prof)

def write_stamps(A, n):
    A("s_waitcnt vmcnt(0) lgkmcnt(0)")
    A(f"s_cmp_eq_u32 s{S_WV}, 0")
    l = A.newlabel("L_st")
    A(f"s_cbranch_scc0 {l}")
    A(f"s_lshl_b32 s{S_T0}, s2, 6")
    A(f"s_add_u32 s{S_T0}, s{S_T0}, {WS_DBG}")
    A(f"v_mov_b32 v{V_T}, 0")
    A(f"v_cmp_eq_u32 vcc, 0, v{V_LANE}")
    A(f"s_and_saveexec_b64 s[{S_EX}:{S_EX+1}], vcc")
    for i in range(n):
        A(f"v_mov_b32 v{V_N}, s{S_ST+2*i}")
        A(f"buffer_store_dword v{V_N}, v{V_T}, s[{SRD_WS}:{SRD_WS+3}], s{S_T0} offen offset:{4*i}")
        A("s_nop 1")
    A("s_waitcnt vmcnt(0)")
    A.label(l)


L2E = 0x3fb8aa3b

def a_tr_addr(A, a_, dst):
    T = V_T
    A(f"v_and_b32 v{T}, 3, v{V_LANE}")
    A(f"v_bfe_u32 v{T+1}, v{V_LANE}, 4, 1")
    A(f"v_lshrrev_b32 v{T+2}, 1, v{T}")
    A(f"v_lshl_add_u32 v{T+2}, v{T+1}, 1, v{T+2}")
    A(f"v_and_b32 v{T+3}, 1, v{T}")
    A(f"s_mul_i32 s{S_T0}, s{S_WC}, 5")
    if a_ == 0:
        A(f"v_add_u32 v{T+4}, s{S_T0}, v{T+2}")
        A(f"v_mul_u32_u24 v{T+5}, 10, v{T+3}")
    else:
        A(f"v_mul_u32_u24 v{T+4}, 3, v{T+3}")
        A(f"v_add_u32 v{T+4}, v{T+4}, v{T+2}")
        A(f"v_subrev_u32 v{T+4}, 1, v{T+4}")
        A(f"v_min_u32 v{T+4}, 4, v{T+4}")
        A(f"v_mul_u32_u24 v{T+5}, 10, v{T+3}")
        A(f"v_cmp_eq_u32 vcc, 0, v{T+2}")
        A(f"v_mov_b32 v{T+6}, 21")
        A("s_nop 0")
        A(f"v_cndmask_b32 v{T+4}, v{T+4}, 4, vcc")
        A(f"v_cndmask_b32 v{T+5}, v{T+6}, v{T+5}, vcc")
        A(f"v_add_u32 v{T+4}, s{S_T0}, v{T+4}")
    A(f"v_lshrrev_b32 v{T+6}, 1, v{T+4}")
    A(f"v_add_u32 v{T+5}, v{T+5}, v{T+6}")
    A(f"v_and_b32 v{T+4}, 1, v{T+4}")
    A(f"v_lshlrev_b32 v{T+4}, 3, v{T+4}")
    A(f"v_and_b32 v{T+6}, 3, v{T+5}")
    A(f"v_lshl_add_u32 v{T+4}, v{T+6}, 4, v{T+4}")
    A(f"v_lshrrev_b32 v{T+5}, 2, v{T+5}")
    A(f"v_lshl_add_u32 v{T+4}, v{T+5}, 8, v{T+4}")
    A(f"v_bfe_u32 v{T+5}, v{V_LANE}, 2, 2")
    A(f"v_lshl_add_u32 v{T+4}, v{T+5}, 6, v{T+4}")
    A(f"v_lshrrev_b32 v{T+5}, 5, v{V_LANE}")
    A(f"v_lshl_add_u32 v{T+4}, v{T+5}, 12, v{T+4}")
    A(f"v_add_u32 v{dst}, {WBASE}, v{T+4}")

def a_path(A, prof, opts):
    T = V_T
    srd(A, SRD_W, S_QKVP, 640*3840)
    A(f"v_lshrrev_b32 v{T}, 4, v{V_LANE}")
    A(f"v_and_b32 v{T+1}, 3, v{V_LANE}")
    A(f"v_lshl_add_u32 v{T}, v{T}, 2, v{T+1}")
    A(f"v_bfe_u32 v{T+1}, v{V_LANE}, 2, 2")
    A(f"s_lshl_b32 s{S_T0}, s{S_WV}, 2")
    A(f"v_add_u32 v{T+1}, s{S_T0}, v{T+1}")
    A(f"v_mul_u32_u24 v{T+1}, 3840, v{T+1}")
    A(f"s_mul_i32 s{S_T1}, s{S_CB}, 160")
    A(f"v_add_u32 v{T+1}, s{S_T1}, v{T+1}")
    A(f"v_cmp_gt_u32 vcc, 10, v{T}")
    A(f"v_mov_b32 v{T+2}, 1120")
    A(f"v_lshl_add_u32 v{T+3}, v{T}, 4, v{T+1}")
    A(f"v_cndmask_b32 v{T+2}, v{T+2}, 0, vcc")
    A(f"v_add_u32 v{V_WD}, v{T+3}, v{T+2}")
    A(f"v_min_u32 v{T+4}, 14, v{T}")
    A(f"v_cmp_eq_u32 vcc, 4, v{T}")
    A(f"v_mov_b32 v{T+5}, 3")
    A("s_nop 0")
    A(f"v_cndmask_b32 v{T+4}, v{T+4}, v{T+5}, vcc")
    A(f"v_cmp_gt_u32 vcc, 5, v{T}")
    A(f"v_mov_b32 v{T+5}, 2480")
    A(f"v_mov_b32 v{T+6}, 1376")
    A(f"v_cndmask_b32 v{T+5}, v{T+5}, v{T+6}, vcc")
    A(f"v_lshl_add_u32 v{T+4}, v{T+4}, 4, v{T+1}")
    A(f"v_add_u32 v{V_WD+1}, v{T+4}, v{T+5}")
    A(f"s_lshl_b32 s{S_LDSW}, s{S_WV}, 11")
    A(f"s_add_u32 s{S_LDSW}, s{S_LDSW}, {WBASE}")
    A(f"s_mul_i32 s{S_WNEXT}, s{S_ROT}, {64*3840}")
    A(f"s_mov_b32 s{S_WCNT}, 0")
    A(f"s_mov_b32 s{S_DSLOT}, 0")
    srd(A, SRD_M, S_PHIP, 25600)
    A(f"v_lshlrev_b32 v{T}, 4, v{V_LANE}")
    A(f"s_mul_i32 s{S_T0}, s{S_CB}, 3200")
    A(f"s_lshl_b32 s{S_T1}, s{S_WC}, 10")
    A(f"s_add_u32 s{S_T0}, s{S_T0}, s{S_T1}")
    A(f"s_add_u32 m0, s{S_T1}, {A_PHI}")
    A("s_nop 0")
    A(f"buffer_load_dwordx4 v{T}, s[{SRD_M}:{SRD_M+3}], s{S_T0} offen lds")
    npre = OPT.get("npre", 2)
    for st in range(npre):
        for x in flat(dma_issue(A, 2, 3840, A_SLOT, A_R)): A(x)
    a_tr_addr(A, 0, V_WB)
    a_tr_addr(A, 1, V_WB1)
    A(f"v_mov_b32 v{V_WA}, v{V_WB}")
    A(f"v_mov_b32 v{V_WA1}, v{V_WB1}")
    A(f"s_mov_b32 s{S_RSLOT}, 0")
    for i in range(64): A(f"v_mov_b32 v{V_ACC+i}, 0")
    A(f"v_lshlrev_b32 v{T}, 4, v{V_LANE}")
    A(f"v_add_u32 v{T}, {A_ZERO}, v{T}")
    A(f"ds_write_b128 v{T}, v[{V_ACC}:{V_ACC+3}]")
    stats(A, 2*npre + 1)
    stamp(A, 1, prof)
    first_norm(A)
    A(f"s_waitcnt vmcnt({2*(npre-1)}) lgkmcnt(0)")
    A("s_barrier")
    for st in range(npre, A_R):
        for x in flat(dma_issue(A, 2, 3840, A_SLOT, A_R)): A(x)
    for x in x_reads(0, 0) + a_wreads(0, 0): A(x)
    A("s_waitcnt lgkmcnt(0)")
    stamp(A, 2, prof)
    main_loop(A, 'A', prof)
    stamp(A, 3, prof)
    A("s_waitcnt vmcnt(0)")
    A("s_barrier")
    if not opts.get("noW3"):
        w3_stage_loads(A)
    a_epilogue(A, prof, opts)
    if not opts.get("noW3"):
        A("s_waitcnt vmcnt(0)")
        A("s_barrier")
        w3_relayout(A)
    stamp(A, 4, prof)

def w3_stage_loads(A):
    T = V_T
    A(f"s_lshl_b32 s{S_T0}, s{S_CB}, 4")
    A(f"s_add_u32 s{S_T4}, s{S_T0}, s{S_RB}")
    A(f"s_cmp_lt_u32 s{S_T4}, 48")
    A(f"s_cselect_b32 s{S_T0}, s{S_WDP}, s{S_WOP}")
    A(f"s_cselect_b32 s{S_T1}, s{S_WDP+1}, s{S_WOP+1}")
    A(f"s_mov_b32 s{S_T2}, {640*1280}")
    A(f"s_cselect_b32 s{S_T2}, {1536*1280}, s{S_T2}")
    A(f"s_cselect_b32 s{S_T3}, 0, 48")
    A(f"s_mov_b32 s{SRD_M}, s{S_T0}")
    A(f"s_and_b32 s{SRD_M+1}, s{S_T1}, 0xffff")
    A(f"s_mov_b32 s{SRD_M+2}, s{S_T2}")
    A(f"s_mov_b32 s{SRD_M+3}, 0x20000")
    A(f"s_sub_u32 s{S_T0}, s{S_T4}, s{S_T3}")
    A(f"s_mul_i32 s{S_T0}, s{S_T0}, 40960")
    A(f"s_mul_i32 s{S_T1}, s{S_WV}, 5120")
    A(f"s_add_u32 s{S_T0}, s{S_T0}, s{S_T1}")
    A(f"v_lshlrev_b32 v{T}, 4, v{V_LANE}")
    for i in range(5):
        A(f"s_add_u32 s{S_T2}, s{S_T1}, {A_W3ST + i*1024}")
        A(f"s_mov_b32 m0, s{S_T2}")
        A(f"s_add_u32 s{S_T3}, s{S_T0}, {i*1024}")
        A(f"buffer_load_dwordx4 v{T}, s[{SRD_M}:{SRD_M+3}], s{S_T3} offen lds")
    return 5

def w3_relayout(A):
    T = V_T
    l = A.newlabel("L_w3skip")
    A(f"s_lshl_b32 s{S_T0}, s{S_CB}, 4")
    A(f"s_add_u32 s{S_T4}, s{S_T0}, s{S_RB}")
    A(f"s_cmp_ge_u32 s{S_T4}, 68")
    A(f"s_cbranch_scc1 {l}")
    A(f"v_lshrrev_b32 v{T}, 4, v{V_LANE}")
    A(f"v_bfe_u32 v{T+1}, v{V_LANE}, 2, 2")
    A(f"v_lshrrev_b32 v{T+2}, 1, v{T}")
    A(f"v_lshlrev_b32 v{T+2}, 4, v{T+2}")
    A(f"v_and_b32 v{T+3}, 1, v{T}")
    A(f"v_lshl_add_u32 v{T+2}, v{T+3}, 2, v{T+2}")
    A(f"v_lshlrev_b32 v{T+3}, 3, v{T}")
    A(f"s_cmp_lt_u32 s{S_T4}, 48")
    A(f"s_cselect_b64 vcc, -1, 0")
    A(f"s_mov_b32 s{S_T1}, {4*1280}")
    A(f"s_cselect_b32 s{S_T1}, {8*1280}, s{S_T1}")
    A(f"v_cndmask_b32 v{T+2}, v{T+3}, v{T+2}, vcc")
    A(f"v_add_u32 v{T+2}, v{T+2}, v{T+1}")
    A(f"v_mul_u32_u24 v{T+2}, 1280, v{T+2}")
    A(f"v_and_b32 v{T+3}, 3, v{V_LANE}")
    A(f"v_lshl_add_u32 v{T+2}, v{T+3}, 3, v{T+2}")
    A(f"s_mul_i32 s{S_T0}, s{S_WV}, 160")
    A(f"s_add_u32 s{S_T0}, s{S_T0}, {A_W3ST}")
    A(f"v_add_u32 v{T+2}, s{S_T0}, v{T+2}")
    A(f"v_add_u32 v{T+3}, s{S_T1}, v{T+2}")
    for ct in range(5):
        r = V_SET[0] + 4*ct
        A(f"ds_read_b64_tr_b16 v[{r}:{r+1}], v{T+2} offset:{32*ct}")
        A(f"ds_read_b64_tr_b16 v[{r+2}:{r+3}], v{T+3} offset:{32*ct}")
    A(f"s_mul_i32 s{S_T0}, s{S_WV}, 68")
    A(f"s_add_u32 s{S_T0}, s{S_T0}, s{S_T4}")
    A(f"s_mul_i32 s{S_T0}, s{S_T0}, 5120")
    A(f"s_add_u32 s{S_T0}, s{S_T0}, {WS_W3}")
    A(f"v_lshlrev_b32 v{T}, 4, v{V_LANE}")
    A("s_waitcnt lgkmcnt(0)")
    for ct in range(5):
        r = V_SET[0] + 4*ct
        A(f"s_add_u32 s{S_T1}, s{S_T0}, {1024*ct}")
        A(f"buffer_store_dwordx4 v[{r}:{r+3}], v{T}, s[{SRD_WS}:{SRD_WS+3}], s{S_T1} offen")
    A.label(l)

V_WP = 80
V_QB = 104
V_P0 = 224
V_P1 = 240
V_E = 116
V_PH = 40
V_PV = 60
V_EA = 24

def a_epilogue(A, prof, opts):
    T = V_T
    EX = 0
    A(f"v_and_b32 v{T}, 3, v{V_LANE}")
    A(f"v_bfe_u32 v{T+1}, v{V_LANE}, 4, 1")
    A(f"v_lshrrev_b32 v{T+2}, 1, v{T}")
    A(f"v_lshl_add_u32 v{T+2}, v{T+1}, 1, v{T+2}")
    A(f"v_and_b32 v{T+3}, 1, v{T}")
    A(f"v_lshrrev_b32 v{T+4}, 5, v{V_LANE}")
    A(f"v_bfe_u32 v{T+5}, v{V_LANE}, 2, 2")
    A(f"v_mul_u32_u24 v{T+5}, 40, v{T+5}")
    A(f"v_lshl_add_u32 v{T+5}, v{T+2}, 3, v{T+5}")
    A(f"s_mul_i32 s{S_T0}, s{S_WC}, 800")
    A(f"s_add_u32 s{S_T0}, s{S_T0}, {A_PHI}")
    A(f"v_add_u32 v{T+5}, s{S_T0}, v{T+5}")
    A(f"v_mov_b32 v{T+6}, {A_ZERO}")
    A(f"v_cmp_eq_u32 vcc, v{T+3}, v{T+4}")
    A("s_nop 1")
    A(f"v_cndmask_b32 v{V_EA}, v{T+6}, v{T+5}, vcc")
    A(f"v_cmp_eq_u32 vcc, 0, v{T+2}")
    A("s_nop 1")
    A(f"v_cndmask_b32 v{V_EA+1}, v{T+6}, v{V_EA}, vcc")
    for o in range(2):
        for s_ in range(3):
            r = V_WP + 4*(3*o+s_)
            A(f"ds_read_b64_tr_b16 v[{r}:{r+1}], v{V_EA+o} offset:{320*s_+32*o}")
            if s_ < 2:
                A(f"ds_read_b64_tr_b16 v[{r+2}:{r+3}], v{V_EA+o} offset:{320*s_+160+32*o}")
            else:
                A(f"v_mov_b32 v{r+2}, 0")
                A(f"v_mov_b32 v{r+3}, 0")
    A(f"v_mov_b32 v{V_QB+10}, 0")
    A(f"v_mov_b32 v{V_QB+11}, 0")
    A(f"v_and_b32 v{T}, 31, v{V_LANE}")
    A(f"v_lshlrev_b32 v{V_EA+2}, 4, v{T}")
    A(f"s_lshl_b32 s{S_T0}, s{S_RB}, 2")
    A(f"s_lshl_b32 s{S_T1}, s{S_WT}, 1")
    A(f"s_add_u32 s{S_T0}, s{S_T0}, s{S_T1}")
    A(f"s_lshl_b32 s{S_T0}, s{S_T0}, 5")
    A(f"s_lshl_b32 s{S_T1}, s{S_CB}, 2")
    A(f"s_add_u32 s{S_T0}, s{S_T0}, s{S_T1}")
    A(f"s_add_u32 s{S_T0}, s{S_T0}, s{S_WC}")
    A(f"s_mul_i32 s{S_T0}, s{S_T0}, 2560")
    A(f"s_add_u32 s{S_T4}, s{S_T0}, {WS_PQ}")
    A(f"v_bfe_u32 v{T+1}, v{T}, 1, 1")
    A(f"v_lshlrev_b32 v{T+1}, 2, v{T+1}")
    A(f"v_bfe_u32 v{T+2}, v{T}, 2, 1")
    A(f"v_lshl_or_b32 v{T+1}, v{T+2}, 1, v{T+1}")
    A(f"v_and_b32 v{T+2}, 1, v{T}")
    A(f"v_or_b32 v{T+1}, v{T+1}, v{T+2}")
    A(f"v_lshlrev_b32 v{T+1}, 4, v{T+1}")
    A(f"s_lshl_b32 s{S_T0}, s{S_WC}, 14")
    A(f"s_lshl_b32 s{S_T1}, s{S_WT}, 13")
    A(f"s_add_u32 s{S_T0}, s{S_T0}, s{S_T1}")
    A(f"v_lshlrev_b32 v{T+2}, 7, v{T}")
    A(f"v_add_u32 v{T+2}, s{S_T0}, v{T+2}")
    for c in range(5):
        A(f"v_xor_b32 v{T+3}, {16*c}, v{T+1}")
        A(f"v_add_u32 v{V_EA+3+c}, v{T+2}, v{T+3}")
    A(f"v_lshrrev_b32 v{T+4}, 5, v{V_LANE}")
    A(f"v_add_u32 v{T+3}, 5, v{T+4}")
    A(f"v_lshlrev_b32 v{T+3}, 4, v{T+3}")
    A(f"v_xor_b32 v{T+3}, v{T+3}, v{T+1}")
    A(f"v_add_u32 v{V_EA+8}, v{T+2}, v{T+3}")
    A(f"v_xor_b32 v{T+3}, {16*7}, v{T+1}")
    A(f"v_add_u32 v{T+3}, v{T+2}, v{T+3}")
    A(f"v_lshl_add_u32 v{V_EA+9}, v{T+4}, 3, v{T+3}")
    A(f"v_cmp_lt_u32 s[{S_EX+10}:{S_EX+11}], v{V_LANE}, 32") if False else None
    A(f"s_mov_b32 s{S_T2}, {L2E}")
    A("s_waitcnt lgkmcnt(0)")
    if opts.get("est"): opts["est"](A, 1)
    lab = "L_A_epi"
    A(f"s_mov_b32 s{S_T}, 0")
    A.label(lab)
    a0, a1 = V_ACC, V_ACC+16
    for j in range(8): A(f"v_cvt_pk_bf16_f32 v{V_QB+j}, v{a0+2*j}, v{a0+2*j+1}")
    for j in range(2): A(f"v_cvt_pk_bf16_f32 v{V_QB+8+j}, v{a1+2*j}, v{a1+2*j+1}")
    for j in range(6): A(f"v_cvt_pk_bf16_f32 v{V_PV+j}, v{a1+4+2*j}, v{a1+5+2*j}")
    A("s_nop 1")
    for o, P in ((0, V_P0), (1, V_P1)):
        for s_ in range(3):
            c = "0" if s_ == 0 else f"v[{P}:{P+15}]"
            A(f"v_mfma_f32_32x32x16_bf16 v[{P}:{P+15}], v[{V_WP+4*(3*o+s_)}:{V_WP+4*(3*o+s_)+3}], v[{V_QB+4*s_}:{V_QB+4*s_+3}], {c}")
    A(f"s_mov_b32 exec_lo, 0")
    A(f"v_mov_b32 v{V_PV+4}, 0x3f80")
    A(f"v_mov_b32 v{V_PV+5}, 0")
    A(f"s_mov_b32 exec_lo, -1")
    A(f"ds_write_b128 v{V_EA+8}, v[{V_PV}:{V_PV+3}]")
    A(f"ds_write_b64 v{V_EA+9}, v[{V_PV+4}:{V_PV+5}]")
    A("s_nop 7")
    A("s_nop 1")
    p = [V_P0+i for i in range(16)] + [V_P1+i for i in range(4)]
    MX, MN = T, T+1
    A(f"v_max3_f32 v{MX}, v{p[0]}, v{p[1]}, v{p[2]}")
    A(f"v_min3_f32 v{MN}, v{p[0]}, v{p[1]}, v{p[2]}")
    for i in range(3, 19, 2):
        A(f"v_max3_f32 v{MX}, v{MX}, v{p[i]}, v{p[i+1]}")
        A(f"v_min3_f32 v{MN}, v{MN}, v{p[i]}, v{p[i+1]}")
    A(f"v_max_f32 v{MX}, v{MX}, v{p[19]}")
    A(f"v_min_f32 v{MN}, v{MN}, v{p[19]}")
    A(f"v_mul_f32 v{MX}, s{S_T2}, v{MX}")
    A(f"v_mul_f32 v{MN}, s{S_T2}, v{MN}")
    for i in range(20):
        A(f"v_fma_f32 v{V_E+i}, v{p[i]}, s{S_T2}, -v{MX}")
        A(f"v_fma_f32 v{V_E+20+i}, -v{p[i]}, s{S_T2}, v{MN}")
    for i in range(40):
        A(f"v_exp_f32 v{V_E+i}, v{V_E+i}")
    SP, SN = T+2, T+4
    A("s_nop 0")
    A(f"v_pk_add_f32 v[{SP+1}:{SP+2}], v[{V_E}:{V_E+1}], v[{V_E+2}:{V_E+3}]")
    A(f"v_pk_add_f32 v[{SP+3}:{SP+4}], v[{V_E+20}:{V_E+21}], v[{V_E+22}:{V_E+23}]")
    for i in range(4, 20, 2):
        A(f"v_pk_add_f32 v[{SP+1}:{SP+2}], v[{SP+1}:{SP+2}], v[{V_E+i}:{V_E+i+1}]")
        A(f"v_pk_add_f32 v[{SP+3}:{SP+4}], v[{SP+3}:{SP+4}], v[{V_E+20+i}:{V_E+20+i+1}]")
    A(f"v_add_f32 v{SP+1}, v{SP+1}, v{SP+2}")
    A(f"v_add_f32 v{SP+3}, v{SP+3}, v{SP+4}")
    A(f"v_rcp_f32 v{SP+1}, v{SP+1}")
    A(f"v_rcp_f32 v{SP+3}, v{SP+3}")
    A("s_nop 0")
    for i in range(0, 20, 2):
        A(f"v_pk_mul_f32 v[{V_E+i}:{V_E+i+1}], v[{V_E+i}:{V_E+i+1}], v[{SP+1}:{SP+2}] op_sel_hi:[1,0]")
        A(f"v_pk_mul_f32 v[{V_E+20+i}:{V_E+20+i+1}], v[{V_E+20+i}:{V_E+20+i+1}], v[{SP+3}:{SP+4}] op_sel_hi:[1,0]")
    for i in range(20):
        A(f"v_cvt_pk_bf16_f32 v{V_PH+i}, v{V_E+2*i}, v{V_E+2*i+1}")
    A("s_mov_b32 exec_hi, 0")
    if opts.get("dbg") == "q":
        for c in range(3):
            A(f"buffer_store_dwordx4 v[{V_QB+4*c}:{V_QB+4*c+3}], v{V_EA+2}, s[{SRD_WS}:{SRD_WS+3}], s{S_T4} offen offset:{512*c}")
    elif opts.get("dbg") == "p":
        for c in range(5):
            A(f"buffer_store_dwordx4 v[{V_P0+4*c}:{V_P0+4*c+3}], v{V_EA+2}, s[{SRD_WS}:{SRD_WS+3}], s{S_T4} offen offset:{512*c}")
    elif opts.get("dbg") == "wp":
        A("s_mov_b32 exec_hi, -1")
        A(f"v_lshlrev_b32 v{V_T+6}, 4, v{V_LANE}")
        for c in range(2):
            A(f"buffer_store_dwordx4 v[{V_WP+4*c}:{V_WP+4*c+3}], v{V_T+6}, s[{SRD_WS}:{SRD_WS+3}], s{S_T4} offen offset:{1024*c}")
    else:
      for c in range(5):
        A(f"buffer_store_dwordx4 v[{V_PH+4*c}:{V_PH+4*c+3}], v{V_EA+2}, s[{SRD_WS}:{SRD_WS+3}], s{S_T4} offen offset:{512*c}")
    A("s_mov_b32 exec_hi, -1")
    A("s_mov_b32 exec_lo, 0")
    for c in range(5):
        A(f"ds_write_b128 v{V_EA+3+c}, v[{V_PH+4*c}:{V_PH+4*c+3}]")
    A("s_mov_b32 exec_lo, -1")
    A(f"s_add_u32 s{S_T}, s{S_T}, 1")
    A(f"s_cmp_eq_u32 s{S_T}, 2")
    A(f"s_cbranch_scc1 L_A_epi_done")
    for i in range(32): A(f"v_mov_b32 v{V_ACC+i}, v{V_ACC+32+i}")
    A(f"s_add_u32 s{S_T4}, s{S_T4}, {32*2560}")
    for i in range(3, 10): A(f"v_add_u32 v{V_EA+i}, 4096, v{V_EA+i}")
    A(f"s_branch {lab}")
    A.label("L_A_epi_done")
    if opts.get("est"): opts["est"](A, 2)
    A("s_waitcnt lgkmcnt(0)")
    A("s_barrier")
    A(f"v_bfe_u32 v{T}, v{V_LANE}, 2, 2")
    A(f"v_lshrrev_b32 v{T+1}, 1, v{T}")
    A(f"v_lshlrev_b32 v{T+1}, 2, v{T+1}")
    A(f"v_and_b32 v{T+2}, 1, v{T}")
    A(f"v_or_b32 v{T+1}, v{T+1}, v{T+2}")
    A(f"v_lshrrev_b32 v{T+2}, 5, v{V_LANE}")
    A(f"v_lshl_add_u32 v{T+2}, v{T+2}, 3, v{T}")
    A(f"v_lshlrev_b32 v{T+2}, 7, v{T+2}")
    A(f"s_lshl_b32 s{S_T0}, s{S_WC}, 14")
    A(f"v_add_u32 v{T+2}, s{S_T0}, v{T+2}")
    A(f"v_bfe_u32 v{T+3}, v{V_LANE}, 4, 1")
    A(f"v_and_b32 v{T+4}, 3, v{V_LANE}")
    A(f"v_lshl_add_u32 v{T+3}, v{T+3}, 2, v{T+4}")
    A(f"v_and_b32 v{T+4}, 4, v{T+3}")
    A(f"v_and_b32 v{T+5}, 1, v{T+3}")
    A(f"v_lshl_add_u32 v{T+4}, v{T+5}, 1, v{T+4}")
    A(f"v_bfe_u32 v{T+5}, v{T+3}, 1, 1")
    A(f"v_add_u32 v{T+4}, v{T+4}, v{T+5}")
    A(f"v_and_b32 v{T+5}, 1, v{T+3}")
    A(f"v_add_u32 v{T+5}, 8, v{T+5}")
    A(f"s_cmp_eq_u32 s{S_WT}, 0")
    A(f"s_cselect_b64 vcc, -1, 0")
    A(f"v_cndmask_b32 v{T+4}, v{T+5}, v{T+4}, vcc")
    def piece_addr(grp_chunk_e_reg_chunk, e_reg, dst0, dst1):
        pass
    A(f"v_lshrrev_b32 v{T+5}, 1, v{T+4}")
    A(f"v_and_b32 v{T+4}, 1, v{T+4}")
    A(f"v_xor_b32 v{T+6}, v{T+5}, v{T+1}")
    A(f"v_lshlrev_b32 v{T+6}, 4, v{T+6}")
    A(f"v_lshl_add_u32 v{T+6}, v{T+4}, 3, v{T+6}")
    A(f"v_add_u32 v{V_EA}, v{T+2}, v{T+6}")
    A(f"v_xor_b32 v{T+6}, 32, v{T+6}")
    A(f"v_add_u32 v{V_EA+1}, v{T+2}, v{T+6}")
    A(f"v_add_u32 v{V_EA+1}, 512, v{V_EA+1}")
    A(f"s_mov_b32 s{S_T1}, 0xfffdceba")
    A(f"v_lshlrev_b32 v{T+4}, 2, v{T+3}")
    A(f"v_lshrrev_b32 v{T+4}, v{T+4}, s{S_T1}")
    A(f"v_and_b32 v{T+4}, 15, v{T+4}")
    A(f"v_lshrrev_b32 v{T+5}, 1, v{T+4}")
    A(f"v_and_b32 v{T+4}, 1, v{T+4}")
    A(f"v_xor_b32 v{T+6}, v{T+5}, v{T+1}")
    A(f"v_lshlrev_b32 v{T+6}, 4, v{T+6}")
    A(f"v_lshl_add_u32 v{T+6}, v{T+4}, 3, v{T+6}")
    A(f"v_add_u32 v{V_EA+2}, v{T+2}, v{T+6}")
    A(f"v_xor_b32 v{T+6}, 32, v{T+6}")
    A(f"v_add_u32 v{V_EA+3}, v{T+2}, v{T+6}")
    A(f"v_add_u32 v{V_EA+3}, 512, v{V_EA+3}")
    FR = 80
    for ks in range(8):
        r = FR + 8*ks
        A(f"ds_read_b64_tr_b16 v[{r}:{r+1}], v{V_EA} offset:{2048*ks}")
        A(f"ds_read_b64_tr_b16 v[{r+2}:{r+3}], v{V_EA+1} offset:{2048*ks}")
        A(f"ds_read_b64_tr_b16 v[{r+4}:{r+5}], v{V_EA+2} offset:{2048*ks}")
        A(f"ds_read_b64_tr_b16 v[{r+6}:{r+7}], v{V_EA+3} offset:{2048*ks}")
    for ks in range(8):
        r = FR + 8*ks
        if ks % 2 == 0: A(f"s_waitcnt lgkmcnt({max(0, 32-4*(ks+2)) if 32-4*(ks+2) <= 15 else 15})")
        c = "0" if ks == 0 else f"v[{V_P0}:{V_P0+15}]"
        A(f"v_mfma_f32_32x32x16_bf16 v[{V_P0}:{V_P0+15}], v[{r}:{r+3}], v[{r+4}:{r+7}], {c}")
    A(f"s_lshl_b32 s{S_T0}, s{S_RB}, 5")
    A(f"s_lshl_b32 s{S_T1}, s{S_CB}, 2")
    A(f"s_add_u32 s{S_T0}, s{S_T0}, s{S_T1}")
    A(f"s_add_u32 s{S_T0}, s{S_T0}, s{S_WC}")
    A(f"s_mul_i32 s{S_T0}, s{S_T0}, 5120")
    A(f"s_lshl_b32 s{S_T1}, s{S_WT}, 12")
    A(f"s_add_u32 s{S_T0}, s{S_T0}, s{S_T1}")
    A(f"s_add_u32 s{S_T0}, s{S_T0}, {WS_KV}")
    A(f"v_lshlrev_b32 v{T}, 4, v{V_LANE}")
    A(f"v_and_b32 v{T+1}, 31, v{V_LANE}")
    A(f"v_cmp_gt_u32 vcc, 21, v{T+1}")
    A("s_nop 7")
    A("s_nop 3")
    A(f"s_and_saveexec_b64 s[{S_EX}:{S_EX+1}], vcc")
    A(f"buffer_store_dwordx4 v[{V_P0}:{V_P0+3}], v{T}, s[{SRD_WS}:{SRD_WS+3}], s{S_T0} offen")
    A(f"s_cmp_eq_u32 s{S_WT}, 0")
    l = A.newlabel("L_kvskip")
    A(f"s_cbranch_scc0 {l}")
    for g in range(1, 4):
        A(f"buffer_store_dwordx4 v[{V_P0+4*g}:{V_P0+4*g+3}], v{T}, s[{SRD_WS}:{SRD_WS+3}], s{S_T0} offen offset:{1024*g}")
    A.label(l)
    A(f"s_mov_b64 exec, s[{S_EX}:{S_EX+1}]")
```

```python
from asmlib import *
import gen_k1 as G
from gen_k1 import *

OPT = G.OPT
S_TNEXT, S_TCNT, S_RBL, S_T5 = 60, 61, 62, 63
G.S_ST = 70
S_ST = 70
V_TCH, V_DUM = 22, 21
LDS_K1 = 163840
A_R2 = 3
A_DSLOT = 32768
G.A_PHI = WBASE + A_R2*A_DSLOT
G.A_ZERO = G.A_PHI + 4096
G.A_W3ST = 65536
A_OP = [40, 56, 224, 240]
F_OP = [40, 60]

def stamp(A, i, en):
    if en: A(f"s_memtime s[{S_ST+2*i}:{S_ST+2*i+1}]")

def adv(reg, step, lim):
    return [f"s_add_u32 s{reg}, s{reg}, {step}", f"s_cmp_eq_u32 s{reg}, {lim}", f"s_cselect_b32 s{reg}, 0, s{reg}"]

def dma_group(F):
    pitch = 3072 if F else 3840
    rows = 32 if F else 64
    nst = 20 if F else 10
    slot = F_SLOT if F else A_DSLOT
    R = F_R if F else A_R2
    L = [f"s_cmp_lt_u32 s{S_WCNT}, {nst}",
         f"s_cselect_b32 s{S_T0}, s{S_WNEXT}, s{S_OOB}",
         f"s_cmp_lt_u32 s{S_TCNT}, {nst}",
         f"s_cselect_b32 s{S_T5}, s{S_TNEXT}, s{S_OOB}",
         f"s_add_u32 s{S_T1}, s{S_LDSW}, s{S_DSLOT}"]
    if F:
        for i in range(3):
            L += [f"s_add_u32 m0, s{S_T1}, {i*1024}", "s_nop 0",
                  f"buffer_load_dwordx4 v{V_WD+i}, s[{SRD_W}:{SRD_W+3}], s{S_T0} offen lds"]
    else:
        L += [f"s_add_u32 s{S_T2}, s{S_T0}, {32*pitch}"]
        for b in range(2):
            for i in range(2):
                L += [f"s_add_u32 m0, s{S_T1}, {b*16384+i*1024}", "s_nop 0",
                      f"buffer_load_dwordx4 v{V_WD+i}, s[{SRD_W}:{SRD_W+3}], s{[S_T0,S_T2][b]} offen lds"]
    L.append(f"buffer_load_dword v{V_DUM}, v{V_TCH}, s[{SRD_W}:{SRD_W+3}], s{S_T5} offen")
    L += adv(S_WNEXT, rows*pitch, 640*pitch)
    L += [f"s_add_u32 s{S_WCNT}, s{S_WCNT}, 1"]
    L += adv(S_DSLOT, slot, slot*R)
    L += adv(S_TNEXT, rows*pitch, 640*pitch)
    L += [f"s_add_u32 s{S_TCNT}, s{S_TCNT}, 1"]
    return L

def fix_f_dma(L):
    return L

def norm_valu(g): return G.norm_parts(g)

def xr(dst, t4):
    return [f"ds_read_b128 v[{dst}:{dst+3}], v{V_XR+t4}", f"ds_read_b128 v[{dst+4}:{dst+7}], v{V_XR+t4} offset:4096"]

def f_L(A, par):
    L = []
    for j in range(2):
        b = F_OP[j]
        L += xr(b, 2*par+j)
        for ft in range(3):
            for e2 in range(2):
                L.append(f"ds_read_b64_tr_b16 v[{b+8+4*ft+2*e2}:{b+8+4*ft+2*e2+1}], v{V_WA} offset:{j*6144+e2*1536+ft*512}")
    if not OPT.get("no_dma"): L += dma_group(True)
    n, w = norm_valu(par)
    if not OPT.get("no_norm"): L += flat(n) + [w]
    L += adv(S_RSLOT, F_SLOT, F_SLOT*F_R) + [f"v_add_u32 v{V_WA}, s{S_RSLOT}, v{V_WB}"]
    if par == 1:
        L += [f"v_xor_b32 v{V_XR+i}, {XSLOT}, v{V_XR+i}" for i in range(4)]
        L += [f"v_xor_b32 v{V_XW+i}, {XSLOT}, v{V_XW+i}" for i in range(2)]
        L += adv(S_IDX, 8, 80)
    for x in L: A(x)
    A(f"s_waitcnt vmcnt({1 + 4*(F_R-2)}) lgkmcnt(0)")

def f_C(A):
    if OPT.get("prio"): A("s_setprio 1")
    for j in range(2):
        b = F_OP[j]
        for ft in range(3):
            for tau in range(2):
                c = V_ACC + 16*(3*tau+ft)
                A(f"v_mfma_f32_32x32x16_bf16 v[{c}:{c+15}], v[{b+8+4*ft}:{b+11+4*ft}], v[{b+4*tau}:{b+3+4*tau}], v[{c}:{c+15}]")
    if OPT.get("prio"): A("s_setprio 0")

def a_L(A):
    L = []
    for j in range(4):
        b = A_OP[j]
        L += xr(b, j)
        for a_ in range(2):
            for e2 in range(2):
                L.append(f"ds_read_b64_tr_b16 v[{b+8+4*a_+2*e2}:{b+8+4*a_+2*e2+1}], v{[V_WA,V_WA1][a_]} offset:{(j>>1)*16384+(j&1)*8192+e2*2048}")
    if not OPT.get("no_dma"): L += dma_group(False)
    for g in range(2):
        n, w = norm_valu(g)
        if not OPT.get("no_norm"): L += flat(n) + [w]
    L += adv(S_RSLOT, A_DSLOT, A_DSLOT*A_R2) + [f"v_add_u32 v{V_WA}, s{S_RSLOT}, v{V_WB}", f"v_add_u32 v{V_WA1}, s{S_RSLOT}, v{V_WB1}"]
    L += [f"v_xor_b32 v{V_XR+i}, {XSLOT}, v{V_XR+i}" for i in range(4)]
    L += [f"v_xor_b32 v{V_XW+i}, {XSLOT}, v{V_XW+i}" for i in range(2)]
    L += adv(S_IDX, 8, 80)
    for x in L: A(x)
    A(f"s_waitcnt vmcnt({1 + 5*(A_R2-2)}) lgkmcnt(0)")

def a_C(A):
    if OPT.get("prio"): A("s_setprio 1")
    for j in range(4):
        b = A_OP[j]
        for a_ in range(2):
            for tau in range(2):
                c = V_ACC + 16*(2*tau+a_)
                A(f"v_mfma_f32_32x32x16_bf16 v[{c}:{c+15}], v[{b+8+4*a_}:{b+11+4*a_}], v[{b+4*tau}:{b+3+4*tau}], v[{c}:{c+15}]")
    if OPT.get("prio"): A("s_setprio 0")

def pp_loop(A, F):
    typ = "F" if F else "A"
    lab = f"L_{typ}_loop"
    l1 = A.newlabel("L_g0")
    A(f"s_cmp_eq_u32 s{S_WT}, 0")
    A(f"s_cbranch_scc1 {l1}")
    A("s_barrier")
    A.label(l1)
    A(f"s_mov_b32 s{S_T}, 0")
    A(f"s_mov_b32 s{S_IDX}, 8")
    A(".p2align 6")
    A.label(lab)
    if F:
        for par in range(2):
            A("s_barrier"); f_L(A, par); A("s_barrier"); f_C(A)
    else:
        A("s_barrier"); a_L(A); A("s_barrier"); a_C(A)
    A(f"s_add_u32 s{S_T}, s{S_T}, 1")
    A(f"s_cmp_lt_u32 s{S_T}, 10")
    A(f"s_cbranch_scc1 {lab}")
    l2 = A.newlabel("L_g1")
    A(f"s_cmp_eq_u32 s{S_WT}, 0")
    A(f"s_cbranch_scc0 {l2}")
    A("s_barrier")
    A.label(l2)

def prologue_head(A, prof):
    A("s_cmp_ge_u32 s2, 256")
    A("s_cbranch_scc0 L_k1_go")
    A("s_endpgm")
    A.label("L_k1_go")
    stamp(A, 0, prof)
    A(f"s_load_dwordx4 s[{S_XP}:{S_XP+3}], s[0:1], 0")
    A(f"s_load_dwordx4 s[{S_PHIP}:{S_PHIP+3}], s[0:1], 16")
    A(f"s_load_dwordx4 s[{S_WGP}:{S_WGP+3}], s[0:1], 40")
    A(f"s_load_dwordx2 s[{S_WDP}:{S_WDP+1}], s[0:1], 56")
    A(f"s_load_dwordx2 s[{S_WSP}:{S_WSP+1}], s[0:1], 80")
    A(f"v_and_b32 v{V_LANE}, 63, v0")
    A(f"v_lshrrev_b32 v{V_T}, 6, v0")
    A(f"s_and_b32 s{S_T0}, s2, 7")
    A(f"v_readfirstlane_b32 s{S_WV}, v{V_T}")
    A(f"s_lshr_b32 s{S_T1}, s2, 3")
    A(f"s_lshr_b32 s{S_TYPE}, s{S_T1}, 4")
    A(f"s_and_b32 s{S_RBL}, s{S_T1}, 7")
    A(f"s_bfe_u32 s{S_T3}, s{S_T1}, 0x10003")
    A(f"s_and_b32 s{S_RB}, s{S_T0}, 1")
    A(f"s_lshl_b32 s{S_RB}, s{S_RB}, 3")
    A(f"s_add_u32 s{S_RB}, s{S_RB}, s{S_RBL}")
    A(f"s_lshr_b32 s{S_CB}, s{S_T0}, 1")
    A(f"s_lshl_b32 s{S_CB}, s{S_CB}, 1")
    A(f"s_add_u32 s{S_CB}, s{S_CB}, s{S_T3}")
    A(f"s_lshl_b32 s{S_T4}, s{S_TYPE}, 1")
    A(f"s_add_u32 s{S_T4}, s{S_T4}, s{S_T3}")
    A(f"s_mul_i32 s{S_ROT}, s{S_T4}, ROTMUL")
    A(f"s_mov_b32 s{S_MASK}, 0xffff0000")
    A(f"s_mov_b32 s{S_ONES}, 0x3f803f80")
    A(f"s_mov_b32 s{S_OOB}, 0x7f000000")
    A(f"s_lshr_b32 s{S_WT}, s{S_WV}, 2")
    A(f"s_and_b32 s{S_WC}, s{S_WV}, 3")
    T = V_T
    A(f"v_lshrrev_b32 v{T}, 3, v{V_LANE}")
    A(f"s_lshl_b32 s{S_T0}, s{S_WV}, 4")
    A(f"v_add_u32 v{T}, s{S_T0}, v{T}")
    A(f"v_mul_u32_u24 v{T+1}, 1280, v{T}")
    A(f"v_and_b32 v{T+2}, 7, v{V_LANE}")
    A(f"v_lshl_add_u32 v38, v{T+2}, 4, v{T+1}")
    A(f"v_add_u32 v39, 10240, v38")
    A(f"v_bfe_u32 v{T+4}, v{T}, 1, 3")
    A(f"v_xor_b32 v{T+4}, v{T+4}, v{T+2}")
    A(f"v_lshlrev_b32 v{T+4}, 4, v{T+4}")
    A(f"v_lshl_add_u32 v{V_XW}, v{T}, 7, v{T+4}")
    A(f"v_xor_b32 v{V_XW+1}, 64, v{V_XW}")
    A(f"v_add_u32 v{V_XW+1}, 1024, v{V_XW+1}")
    A(f"v_and_b32 v{T}, 31, v{V_LANE}")
    A(f"v_lshrrev_b32 v{T+2}, 5, v{V_LANE}")
    A(f"v_bfe_u32 v{T+4}, v{T}, 1, 3")
    A(f"v_xor_b32 v{T+4}, v{T+4}, v{T+2}")
    A(f"v_lshlrev_b32 v{T+4}, 4, v{T+4}")
    A(f"s_lshl_b32 s{S_T0}, s{S_WT}, 13")
    A(f"v_lshl_add_u32 v{T+4}, v{T}, 7, v{T+4}")
    A(f"v_add_u32 v{V_XR}, s{S_T0}, v{T+4}")
    for t4 in range(1, 4):
        A(f"v_xor_b32 v{V_XR+t4}, {32*t4}, v{V_XR}")
    A("s_waitcnt lgkmcnt(0)")
    srd(A, SRD_X, S_XP, 2048*1280)
    srd(A, SRD_WS, S_WSP, WS_SIZE)

def x_loads(A, t0, t1):
    if t0 == 0:
        A(f"s_mul_i32 s{S_T3}, s{S_RB}, 163840")
        A(f"s_lshl_b32 s{S_T4}, s{S_ROT}, 7")
    for t in range(t0, t1):
        A(f"s_add_u32 s{S_T2}, s{S_T3}, s{S_T4}")
        for g in range(2):
            r = V_X + 8*t + 4*g
            A(f"buffer_load_dwordx4 v[{r}:{r+3}], v{38+g}, s[{SRD_X}:{SRD_X+3}], s{S_T2} offen")
        A(f"s_add_u32 s{S_T4}, s{S_T4}, 128")
        A(f"s_cmp_eq_u32 s{S_T4}, 1280")
        A(f"s_cselect_b32 s{S_T4}, 0, s{S_T4}")

def stats_p(A, tsplit, n_after):
    S0 = V_N
    for i in range(8): A(f"v_mov_b32 v{S0+i}, 0")
    for t in range(10):
        if t >= tsplit: A(f"s_waitcnt vmcnt({n_after + 2*(9-t)})")
        for g in range(2):
            for r in range(4):
                x = V_X + 8*t + 4*g + r
                A(f"v_dot2_f32_bf16 v{S0+4*g+(r&1)}, v{x}, s{S_ONES}, v{S0+4*g+(r&1)}")
                A(f"v_dot2_f32_bf16 v{S0+4*g+2+(r&1)}, v{x}, v{x}, v{S0+4*g+2+(r&1)}")
    for g in range(2):
        A(f"v_add_f32 v{S0+4*g}, v{S0+4*g}, v{S0+4*g+1}")
        A(f"v_add_f32 v{S0+4*g+2}, v{S0+4*g+2}, v{S0+4*g+3}")
    regs = [S0, S0+2, S0+4, S0+6]
    for mode in ("quad_perm:[1,0,3,2]", "quad_perm:[2,3,0,1]", "row_half_mirror"):
        A("s_nop 1")
        for r in regs:
            A(f"v_add_f32_dpp v{r}, v{r}, v{r} {mode} row_mask:0xf bank_mask:0xf")
    A(f"s_mov_b32 s{S_T0}, 0x3acccccd")
    A(f"s_mov_b32 s{S_T1}, 0x3727c5ac")
    for g in range(2):
        m, q = S0+4*g, S0+4*g+2
        A(f"v_mul_f32 v{m}, s{S_T0}, v{m}")
        A(f"v_mul_f32 v{q}, s{S_T0}, v{q}")
        A(f"v_fma_f32 v{q}, -v{m}, v{m}, v{q}")
        A(f"v_max_f32 v{q}, 0, v{q}")
        A(f"v_add_f32 v{q}, s{S_T1}, v{q}")
        A(f"v_rsq_f32 v{V_R+g}, v{q}")
        A("s_nop 0")
        A(f"v_mul_f32 v{V_B+g}, v{m}, v{V_R+g}")
        A(f"v_sub_f32 v{V_B+g}, 0, v{V_B+g}")

def first_norm_p(A):
    A(f"s_mov_b32 s{S_IDX}, 0")
    for g in range(2):
        n, w = norm_valu(g)
        for x in flat(n): A(x)
        A(w)
    A(f"v_xor_b32 v{V_XW}, {XSLOT}, v{V_XW}")
    A(f"v_xor_b32 v{V_XW+1}, {XSLOT}, v{V_XW+1}")

XS = 3

def init_stream(A, F):
    pitch = 3072 if F else 3840
    A(f"s_mul_i32 s{S_WNEXT}, s{S_ROT}, {64*pitch}")
    A(f"s_mov_b32 s{S_WCNT}, 0")
    A(f"s_mov_b32 s{S_DSLOT}, 0")
    A(f"s_mov_b32 s{S_RSLOT}, 0")
    A(f"s_add_u32 s{S_TNEXT}, s{S_WNEXT}, {(64 if F else 128)*pitch}")
    A(f"s_cmp_ge_u32 s{S_TNEXT}, {640*pitch}")
    A(f"s_cselect_b32 s{S_T0}, {640*pitch}, 0")
    A(f"s_sub_u32 s{S_TNEXT}, s{S_TNEXT}, s{S_T0}")
    A(f"s_mov_b32 s{S_TCNT}, 2")

def f_path(A, prof):
    T = V_T
    A(f"s_cmp_lt_u32 s{S_WV}, 4")
    A(f"s_cselect_b32 s{S_T0}, s{S_WGP}, s{S_WUP}")
    A(f"s_cselect_b32 s{S_T1}, s{S_WGP+1}, s{S_WUP+1}")
    A(f"s_mov_b32 s{SRD_W}, s{S_T0}")
    A(f"s_and_b32 s{SRD_W+1}, s{S_T1}, 0xffff")
    A(f"s_mov_b32 s{SRD_W+2}, {640*3072}")
    A(f"s_mov_b32 s{SRD_W+3}, 0x20000")
    A(f"s_lshl_b32 s{S_T0}, s{S_RBL}, 2")
    A(f"s_add_u32 s{S_T0}, s{S_T0}, s{S_WC}")
    A(f"s_mul_i32 s{S_T0}, s{S_T0}, 3072")
    A(f"s_mul_i32 s{S_T1}, s{S_CB}, 384")
    A(f"s_add_u32 s{S_T0}, s{S_T0}, s{S_T1}")
    A(f"v_and_b32 v{T}, 3, v{V_LANE}")
    A(f"v_min_u32 v{T}, 2, v{T}")
    A(f"v_lshlrev_b32 v{T}, 7, v{T}")
    A(f"v_add_u32 v{V_TCH}, s{S_T0}, v{T}")
    A(f"v_lshrrev_b32 v{T}, 2, v{V_LANE}")
    A(f"v_min_u32 v{T}, 5, v{T}")
    A(f"s_lshl_b32 s{S_T0}, s{S_ROT}, 1")
    A(f"v_add_u32 v{T}, s{S_T0}, v{T}")
    A(f"v_cmp_le_u32 vcc, 20, v{T}")
    A(f"v_subrev_u32 v{T+1}, 20, v{T}")
    A(f"s_nop 0")
    A(f"v_cndmask_b32 v{T}, v{T}, v{T+1}, vcc")
    A(f"v_mul_u32_u24 v{T}, {32*3072//16}, v{T}")
    A(f"v_lshl_add_u32 v{T}, v{T}, 4, v{V_TCH}")
    if not OPT.get("no_touch0"):
        A(f"buffer_load_dword v{V_DUM}, v{T}, s[{SRD_W}:{SRD_W+3}], 0 offen")
    x_loads(A, 0, XS)
    A(f"v_lshrrev_b32 v{T}, 4, v{V_LANE}")
    A(f"v_bfe_u32 v{T+1}, v{V_LANE}, 2, 2")
    A(f"v_and_b32 v{T+2}, 3, v{V_LANE}")
    A(f"s_mul_i32 s{S_T0}, s{S_WC}, 12")
    A(f"s_mul_i32 s{S_T1}, s{S_CB}, 384")
    for i in range(3):
        A(f"v_add_u32 v{T+3}, s{S_T0}, v{T}")
        if i: A(f"v_add_u32 v{T+3}, {4*i}, v{T+3}")
        A(f"v_mul_u32_u24 v24, 43, v{T+3}")
        A(f"v_lshrrev_b32 v24, 8, v24")
        A(f"v_mul_u32_u24 v25, 6, v24")
        A(f"v_sub_u32 v25, v{T+3}, v25")
        A(f"v_lshl_add_u32 v24, v24, 2, v{T+1}")
        A(f"v_mul_u32_u24 v24, 3072, v24")
        A(f"v_lshl_add_u32 v24, v25, 6, v24")
        A(f"v_lshl_add_u32 v24, v{T+2}, 4, v24")
        A(f"v_add_u32 v{V_WD+i}, s{S_T1}, v24")
    A(f"s_mul_i32 s{S_T0}, s{S_WT}, {F_UP}")
    A(f"s_mul_i32 s{S_T1}, s{S_WC}, 3072")
    A(f"s_add_u32 s{S_LDSW}, s{S_T0}, s{S_T1}")
    A(f"s_add_u32 s{S_LDSW}, s{S_LDSW}, {WBASE}")
    init_stream(A, True)
    A(f"v_bfe_u32 v{T}, v{V_LANE}, 4, 1")
    A(f"v_mul_u32_u24 v{T}, {F_UP}, v{T}")
    A(f"v_lshrrev_b32 v{T+1}, 5, v{V_LANE}")
    A(f"v_mul_u32_u24 v{T+1}, 3072, v{T+1}")
    A(f"v_add_u32 v{T}, v{T}, v{T+1}")
    A(f"v_bfe_u32 v{T+1}, v{V_LANE}, 2, 2")
    A(f"v_lshl_add_u32 v{T}, v{T+1}, 6, v{T}")
    A(f"v_and_b32 v{T+1}, 3, v{V_LANE}")
    A(f"v_lshl_add_u32 v{T}, v{T+1}, 3, v{T}")
    A(f"s_lshr_b32 s{S_T0}, s{S_WC}, 1")
    A(f"s_lshl_b32 s{S_T0}, s{S_T0}, 8")
    A(f"s_and_b32 s{S_T1}, s{S_WC}, 1")
    A(f"s_lshl_b32 s{S_T1}, s{S_T1}, 5")
    A(f"s_add_u32 s{S_T0}, s{S_T0}, s{S_T1}")
    A(f"s_add_u32 s{S_T0}, s{S_T0}, {WBASE}")
    A(f"v_add_u32 v{V_WB}, s{S_T0}, v{T}")
    A(f"v_mov_b32 v{V_WA}, v{V_WB}")
    for i in range(96): A(f"v_mov_b32 v{V_ACC+i}, 0")
    A("s_waitcnt vmcnt(0)")
    stamp(A, 1, prof)
    for x in dma_group(True): A(x)
    x_loads(A, XS, 10)
    for x in dma_group(True): A(x)
    stats_p(A, XS, 4)
    first_norm_p(A)
    for x in dma_group(True): A(x)
    for x in dma_group(True): A(x)
    A("s_waitcnt lgkmcnt(0)")
    stamp(A, 2, prof)
    pp_loop(A, True)
    stamp(A, 3, prof)
    f_epilogue(A)
    stamp(A, 4, prof)

def f_epilogue(A):
    T = V_T
    A(f"v_bfe_u32 v{T}, v{V_LANE}, 4, 1")
    A(f"v_mul_u32_u24 v{T}, 49152, v{T}")
    A(f"v_lshrrev_b32 v{T+1}, 5, v{V_LANE}")
    A(f"v_lshl_add_u32 v{T}, v{T+1}, 8, v{T}")
    A(f"v_and_b32 v{T+1}, 15, v{V_LANE}")
    A(f"v_lshl_add_u32 v{T}, v{T+1}, 4, v{T}")
    A(f"s_lshl_b32 s{S_T0}, s{S_RB}, 3")
    A(f"s_lshl_b32 s{S_T1}, s{S_WT}, 2")
    A(f"s_add_u32 s{S_T0}, s{S_T0}, s{S_T1}")
    A(f"s_mul_i32 s{S_T0}, s{S_T0}, 48")
    A(f"s_mul_i32 s{S_T1}, s{S_CB}, 6")
    A(f"s_add_u32 s{S_T0}, s{S_T0}, s{S_T1}")
    A(f"s_lshr_b32 s{S_T1}, s{S_WC}, 1")
    A(f"s_add_u32 s{S_T0}, s{S_T0}, s{S_T1}")
    A(f"s_lshl_b32 s{S_T0}, s{S_T0}, 10")
    A(f"s_and_b32 s{S_T1}, s{S_WC}, 1")
    A(f"s_lshl_b32 s{S_T1}, s{S_T1}, 9")
    A(f"s_add_u32 s{S_T0}, s{S_T0}, s{S_T1}")
    if WS_H: A(f"s_add_u32 s{S_T0}, s{S_T0}, {WS_H}")
    A("s_nop 7")
    A("s_nop 3")
    st = OPT.get("stflags", "")
    for tau in range(2):
        for ft in range(3):
            c = V_ACC + 16*(3*tau+ft)
            P = V_N + 4*((3*tau+ft) & 3)
            for r in range(8):
                A(f"v_mul_f32 v{c+r}, v{c+r}, v{c+8+r}")
            for r in range(4):
                A(f"v_cvt_pk_bf16_f32 v{P+r}, v{c+2*r}, v{c+2*r+1}")
            A(f"s_add_u32 s{S_T1}, s{S_T0}, {tau*2*49152 + ft*2048}")
            A(f"buffer_store_dwordx4 v[{P}:{P+3}], v{T}, s[{SRD_WS}:{SRD_WS+3}], s{S_T1} offen {st}")

def a_path(A, prof, opts):
    T = V_T
    srd(A, SRD_W, S_QKVP, 640*3840)
    A(f"s_lshl_b32 s{S_T0}, s{S_RBL}, 3")
    A(f"s_add_u32 s{S_T0}, s{S_T0}, s{S_WV}")
    A(f"s_mul_i32 s{S_T0}, s{S_T0}, 3840")
    A(f"s_mul_i32 s{S_T1}, s{S_CB}, 160")
    A(f"s_and_b32 s{S_T1}, s{S_T1}, 0xffffff80")
    A(f"s_add_u32 s{S_T0}, s{S_T0}, s{S_T1}")
    A(f"v_and_b32 v{T}, 7, v{V_LANE}")
    A(f"v_min_u32 v{T}, 5, v{T}")
    A(f"v_lshrrev_b32 v{T+1}, 1, v{T}")
    A(f"v_mul_u32_u24 v{T+1}, 1280, v{T+1}")
    A(f"v_and_b32 v{T}, 1, v{T}")
    A(f"v_lshl_add_u32 v{T}, v{T}, 7, v{T+1}")
    A(f"v_add_u32 v{V_TCH}, s{S_T0}, v{T}")
    A(f"v_lshrrev_b32 v{T}, 3, v{V_LANE}")
    A(f"v_min_u32 v{T}, 3, v{T}")
    A(f"v_add_u32 v{T}, s{S_ROT}, v{T}")
    A(f"v_cmp_le_u32 vcc, 10, v{T}")
    A(f"v_subrev_u32 v{T+1}, 10, v{T}")
    A(f"s_nop 0")
    A(f"v_cndmask_b32 v{T}, v{T}, v{T+1}, vcc")
    A(f"v_mul_u32_u24 v{T}, {64*3840//16}, v{T}")
    A(f"v_lshl_add_u32 v{T}, v{T}, 4, v{V_TCH}")
    if not OPT.get("no_touch0"):
        A(f"buffer_load_dword v{V_DUM}, v{T}, s[{SRD_W}:{SRD_W+3}], 0 offen")
    x_loads(A, 0, XS)
    srd(A, SRD_M, S_PHIP, 25600)
    A(f"v_lshlrev_b32 v{T}, 4, v{V_LANE}")
    A(f"s_mul_i32 s{S_T0}, s{S_CB}, 3200")
    A(f"s_lshl_b32 s{S_T1}, s{S_WC}, 10")
    A(f"s_add_u32 s{S_T0}, s{S_T0}, s{S_T1}")
    A(f"s_add_u32 m0, s{S_T1}, {G.A_PHI}")
    A("s_nop 0")
    A(f"buffer_load_dwordx4 v{T}, s[{SRD_M}:{SRD_M+3}], s{S_T0} offen lds")
    A(f"v_lshrrev_b32 v{T}, 4, v{V_LANE}")
    A(f"v_and_b32 v{T+1}, 3, v{V_LANE}")
    A(f"v_lshl_add_u32 v{T}, v{T}, 2, v{T+1}")
    A(f"v_bfe_u32 v{T+1}, v{V_LANE}, 2, 2")
    A(f"s_lshl_b32 s{S_T0}, s{S_WV}, 2")
    A(f"v_add_u32 v{T+1}, s{S_T0}, v{T+1}")
    A(f"v_mul_u32_u24 v{T+1}, 3840, v{T+1}")
    A(f"s_mul_i32 s{S_T1}, s{S_CB}, 160")
    A(f"v_add_u32 v{T+1}, s{S_T1}, v{T+1}")
    A(f"v_cmp_gt_u32 vcc, 10, v{T}")
    A(f"v_mov_b32 v{T+2}, 1120")
    A(f"v_lshl_add_u32 v{T+3}, v{T}, 4, v{T+1}")
    A(f"v_cndmask_b32 v{T+2}, v{T+2}, 0, vcc")
    A(f"v_add_u32 v{V_WD}, v{T+3}, v{T+2}")
    A(f"v_min_u32 v24, 14, v{T}")
    A(f"v_cmp_eq_u32 vcc, 4, v{T}")
    A(f"v_mov_b32 v25, 3")
    A("s_nop 0")
    A(f"v_cndmask_b32 v24, v24, v25, vcc")
    A(f"v_cmp_gt_u32 vcc, 5, v{T}")
    A(f"v_mov_b32 v25, 2480")
    A(f"v_mov_b32 v26, 1376")
    A(f"v_cndmask_b32 v25, v25, v26, vcc")
    A(f"v_lshl_add_u32 v24, v24, 4, v{T+1}")
    A(f"v_add_u32 v{V_WD+1}, v24, v25")
    A(f"s_lshl_b32 s{S_LDSW}, s{S_WV}, 11")
    A(f"s_add_u32 s{S_LDSW}, s{S_LDSW}, {WBASE}")
    init_stream(A, False)
    A(f"v_mov_b32 v27, v{V_TCH}")
    A("s_waitcnt vmcnt(0)")
    G.a_tr_addr(A, 0, V_WB)
    G.a_tr_addr(A, 1, V_WB1)
    A(f"v_mov_b32 v{V_TCH}, v27")
    A(f"v_mov_b32 v{V_WA}, v{V_WB}")
    A(f"v_mov_b32 v{V_WA1}, v{V_WB1}")
    stamp(A, 1, prof)
    for x in dma_group(False): A(x)
    x_loads(A, XS, 10)
    for i in range(64): A(f"v_mov_b32 v{V_ACC+i}, 0")
    A(f"v_lshlrev_b32 v{T}, 4, v{V_LANE}")
    A(f"v_add_u32 v{T}, {G.A_ZERO}, v{T}")
    A(f"ds_write_b128 v{T}, v[{V_ACC}:{V_ACC+3}]")
    for x in dma_group(False): A(x)
    stats_p(A, XS, 5)
    first_norm_p(A)
    A("s_waitcnt lgkmcnt(0)")
    stamp(A, 2, prof)
    pp_loop(A, False)
    stamp(A, 3, prof)
    A("s_waitcnt vmcnt(0)")
    A("s_barrier")
    if not opts.get("noW3"):
        G.w3_stage_loads(A)
    G.a_epilogue(A, prof, opts)
    if not opts.get("noW3"):
        A("s_waitcnt vmcnt(0)")
        A("s_barrier")
        G.w3_relayout(A)
    stamp(A, 4, prof)

def write_stamps(A, n):
    A("s_waitcnt vmcnt(0) lgkmcnt(0)")
    A(f"s_and_b32 s{S_T1}, s{S_WV}, 3")
    A(f"s_cmp_eq_u32 s{S_T1}, 0")
    l = A.newlabel("L_st")
    A(f"s_cbranch_scc0 {l}")
    A(f"s_lshl_b32 s{S_T0}, s2, 6")
    A(f"s_lshl_b32 s{S_T1}, s{S_WT}, 5")
    A(f"s_add_u32 s{S_T0}, s{S_T0}, s{S_T1}")
    A(f"s_add_u32 s{S_T0}, s{S_T0}, {WS_DBG}")
    A(f"v_mov_b32 v{V_T}, 0")
    A(f"v_cmp_eq_u32 vcc, 0, v{V_LANE}")
    A(f"s_and_saveexec_b64 s[{S_EX}:{S_EX+1}], vcc")
    for i in range(n):
        A(f"v_mov_b32 v{V_N}, s{S_ST+2*i}")
        A(f"buffer_store_dword v{V_N}, v{V_T}, s[{SRD_WS}:{SRD_WS+3}], s{S_T0} offen offset:{4*i}")
        A("s_nop 1")
    A("s_waitcnt vmcnt(0)")
    A.label(l)
```

```python
from asmlib import *
import gen_k1 as G
from gen_k1 import (WS_H, WS_O, WS_PQ, WS_KV, WS_W3, WS_SIZE, WS_DBG, S_XP, S_QKVP, SRD_X, SRD_W, SRD_WS, SRD_M,
    S_PHIP, S_WOP, S_WGP, S_WUP, S_WDP, S_WSP, S_WV, S_RB, S_CB, S_ROT, S_TYPE, S_LDSW, S_T0, S_T1, S_MASK, S_ONES,
    S_T2, S_T3, S_WT, S_WC, S_T4, S_EX, V_LANE, V_T, V_N, V_X, V_ACC, V_R, V_B, XSLOT, WBASE, F_SLOT, F_UP, F_R, flat)

OPT = G.OPT
S_RBL, S_T5 = 41, 42
S_TAB = 64
S_ST = 84
LDS_K1 = 163840
A_R2 = 3
A_DSLOT = 32768
G.A_PHI = WBASE + A_R2*A_DSLOT
G.A_ZERO = G.A_PHI + 4096
G.A_W3ST = 65536
A_OP = [40, 56, 224, 240]
F_OP = [40, 60]
V_WD = 2
V_WB = 6
V_XR = 10
V_XW = 14
V_RR, V_BB = 16, 36
V_TCH, V_DUM = 22, 21
VR = [18, 19]; VB = [20, 23]
U = 24
PK = [32, 36]

def stamp(A, i, en):
    if en:
        if OPT.get("rt"): A(f"s_memrealtime s[{S_ST+2*i}:{S_ST+2*i+1}]")
        else: A(f"s_memtime s[{S_ST+2*i}:{S_ST+2*i+1}]")

def norm_valu(t, g):
    x = V_X + 8*t + 4*g
    L = []
    for r in range(4):
        L.append(f"v_lshlrev_b32 v{U+2*r}, 16, v{x+r}")
        L.append(f"v_and_b32 v{U+2*r+1}, s{S_MASK}, v{x+r}")
    for r in range(8):
        L.append(f"v_fma_f32 v{U+r}, v{U+r}, v{VR[g]}, v{VB[g]}")
    for r in range(4):
        L.append(f"v_cvt_pk_bf16_f32 v{PK[g]+r}, v{U+2*r}, v{U+2*r+1}")
    return L
def norm_write(t, g):
    return f"ds_write_b128 v{V_XW+g}, v[{PK[g]}:{PK[g]+3}] offset:{(t&1)*XSLOT}"

def xr(dst, t, t4):
    o = (t&1)*XSLOT
    return [f"ds_read_b128 v[{dst}:{dst+3}], v{V_XR+t4} offset:{o}", f"ds_read_b128 v[{dst+4}:{dst+7}], v{V_XR+t4} offset:{o+4096}"]

def f_dma(s):
    if s >= 20: return []
    L = []
    for i in range(3):
        L.append([f"s_add_u32 m0, s{S_LDSW}, {(s % F_R)*F_SLOT + i*1024}"])
        L.append([f"buffer_load_dwordx4 v{V_WD+i}, s[{SRD_W}:{SRD_W+3}], s{S_TAB+s} offen lds"])
    out = []
    for i in range(3):
        out += [L[2*i][0], "s_nop 0", L[2*i+1][0]]
    return out
def f_touch(s):
    if s >= 20: return []
    return [f"buffer_load_dword v{V_DUM}, v{V_TCH}, s[{SRD_W}:{SRD_W+3}], s{S_TAB+s} offen"]
def f_wreads(s, j, b):
    sl = s % F_R
    base = V_WB + (sl >> 1)
    o = (sl & 1)*F_SLOT
    return [f"ds_read_b64_tr_b16 v[{b+8+4*ft+2*e2}:{b+8+4*ft+2*e2+1}], v{base} offset:{o+j*6144+e2*1536+ft*512}" for ft in range(3) for e2 in range(2)]

TD = 6
def vm_ops_F(s):
    return (3 if 0 <= s+4 < 20 else 0) + (1 if (s+TD < 20 and not OPT.get("no_touch")) else 0)

def a_dma(S):
    if S >= 10: return []
    out = []
    for b in range(2):
        for i in range(2):
            out += [f"s_add_u32 m0, s{S_LDSW}, {(S % A_R2)*A_DSLOT + b*16384 + i*1024}", "s_nop 0",
                    f"buffer_load_dwordx4 v{V_WD+2*b+i}, s[{SRD_W}:{SRD_W+3}], s{S_TAB+S} offen lds"]
    return out
def a_touch(S):
    if S >= 10: return []
    return [f"buffer_load_dword v{V_DUM}, v{V_TCH}, s[{SRD_W}:{SRD_W+3}], s{S_TAB+S} offen"]
def a_wreads(S, j, b):
    sl = S % A_R2
    L = []
    for a_ in range(2):
        base = V_WB + 2*a_ + (1 if sl == 2 else 0)
        o = (sl & 1)*A_DSLOT if sl < 2 else 0
        for e2 in range(2):
            L.append(f"ds_read_b64_tr_b16 v[{b+8+4*a_+2*e2}:{b+8+4*a_+2*e2+1}], v{base} offset:{o+(j>>1)*16384+(j&1)*8192+e2*2048}")
    return L
ATD = 4
def vm_ops_A(S):
    return (4 if 0 <= S+2 < 10 else 0) + (1 if (S+ATD < 10 and not OPT.get("no_touch")) else 0)

def mfma_block(A, mf, fill):
    if OPT.get("prio"): A("s_setprio 1")
    if OPT.get("no_norm"): fill = []
    interleave(A, mf, fill)
    if OPT.get("prio"): A("s_setprio 0")

def group_skew_begin(A):
    l1 = A.newlabel("L_g0")
    A(f"s_cmp_eq_u32 s{S_WT}, 0")
    A(f"s_cbranch_scc1 {l1}")
    A("s_barrier")
    A.label(l1)
def group_skew_end(A):
    l2 = A.newlabel("L_g1")
    A(f"s_cmp_eq_u32 s{S_WT}, 0")
    A(f"s_cbranch_scc0 {l2}")
    A("s_barrier")
    A.label(l2)

def f_loop(A):
    group_skew_begin(A)
    for s in range(20):
        t, par = s >> 1, s & 1
        A("s_barrier")
        for j in range(2):
            for x in xr(F_OP[j], t, 2*par+j) + f_wreads(s, j, F_OP[j]): A(x)
        if t+1 < 10 and not OPT.get("no_norm"): A(norm_write(t+1, par))
        if not OPT.get("no_dma"):
            for x in f_dma(s+4): A(x)
        if s+TD < 20 and not OPT.get("no_touch"):
            for x in f_touch(s+TD): A(x)
        if s+1 < 20:
            n = (1 if (s-3+TD < 20 and not OPT.get("no_touch")) else 0) + sum(vm_ops_F(q) for q in range(s-2, s+1))
            A(f"s_waitcnt vmcnt({n}) lgkmcnt(0)")
        else:
            A("s_waitcnt lgkmcnt(0)")
        A("s_barrier")
        tn, gn = (t+1, 1) if par == 0 else (t+2, 0)
        fill = norm_valu(tn, gn) if tn < 10 else []
        mf = []
        for j in range(2):
            b = F_OP[j]
            for ft in range(3):
                for tau in range(2):
                    c = V_ACC + 16*(3*tau+ft)
                    mf.append(f"v_mfma_f32_32x32x16_bf16 v[{c}:{c+15}], v[{b+8+4*ft}:{b+11+4*ft}], v[{b+4*tau}:{b+3+4*tau}], v[{c}:{c+15}]")
        mfma_block(A, mf, fill)
    group_skew_end(A)

def a_loop(A):
    group_skew_begin(A)
    for S in range(10):
        A("s_barrier")
        for j in range(4):
            for x in xr(A_OP[j], S, j) + a_wreads(S, j, A_OP[j]): A(x)
        if S+1 < 10 and not OPT.get("no_norm"):
            A(norm_write(S+1, 0)); A(norm_write(S+1, 1))
        if not OPT.get("no_dma"):
            for x in a_dma(S+2): A(x)
        if S+ATD < 10 and not OPT.get("no_touch"):
            for x in a_touch(S+ATD): A(x)
        if S+1 < 10:
            n = (1 if (S-1+ATD < 10 and not OPT.get("no_touch")) else 0) + vm_ops_A(S)
            A(f"s_waitcnt vmcnt({n}) lgkmcnt(0)")
        else:
            A("s_waitcnt lgkmcnt(0)")
        A("s_barrier")
        fill = (norm_valu(S+2, 0) + norm_valu(S+2, 1)) if S+2 < 10 else []
        mf = []
        for j in range(4):
            b = A_OP[j]
            for a_ in range(2):
                for tau in range(2):
                    c = V_ACC + 16*(2*tau+a_)
                    mf.append(f"v_mfma_f32_32x32x16_bf16 v[{c}:{c+15}], v[{b+8+4*a_}:{b+11+4*a_}], v[{b+4*tau}:{b+3+4*tau}], v[{c}:{c+15}]")
        mfma_block(A, mf, fill)
    group_skew_end(A)

def prologue_head(A, prof):
    A("s_cmp_ge_u32 s2, 256")
    A("s_cbranch_scc0 L_k1_go")
    A("s_endpgm")
    A.label("L_k1_go")
    stamp(A, 0, prof)
    A(f"s_load_dwordx4 s[{S_XP}:{S_XP+3}], s[0:1], 0")
    A(f"s_load_dwordx4 s[{S_PHIP}:{S_PHIP+3}], s[0:1], 16")
    A(f"s_load_dwordx4 s[{S_WGP}:{S_WGP+3}], s[0:1], 40")
    A(f"s_load_dwordx2 s[{S_WDP}:{S_WDP+1}], s[0:1], 56")
    A(f"s_load_dwordx2 s[{S_WSP}:{S_WSP+1}], s[0:1], 80")
    T = V_T
    A(f"v_and_b32 v{V_LANE}, 63, v0")
    A(f"v_lshrrev_b32 v{T}, 6, v0")
    A(f"s_and_b32 s{S_T0}, s2, 7")
    A(f"v_readfirstlane_b32 s{S_WV}, v{T}")
    A(f"s_lshr_b32 s{S_T1}, s2, 3")
    A(f"s_lshr_b32 s{S_TYPE}, s{S_T1}, 4")
    if OPT.get("map", "tok") == "tok":
        A(f"s_and_b32 s{S_RBL}, s{S_T1}, 1")
        A(f"s_lshl_b32 s{S_RB}, s{S_T0}, 1")
        A(f"s_add_u32 s{S_RB}, s{S_RB}, s{S_RBL}")
        A(f"s_bfe_u32 s{S_CB}, s{S_T1}, 0x30001")
        A(f"s_lshr_b32 s{S_T4}, s{S_T1}, 1")
        A(f"s_mul_i32 s{S_T4}, s{S_T4}, ROTMUL")
        A(f"s_lshr_b32 s{S_ROT}, s{S_T4}, 3")
    else:
        A(f"s_and_b32 s{S_RBL}, s{S_T1}, 3")
        A(f"s_bfe_u32 s{S_T3}, s{S_T1}, 0x20002")
        A(f"s_and_b32 s{S_RB}, s{S_T0}, 3")
        A(f"s_lshl_b32 s{S_RB}, s{S_RB}, 2")
        A(f"s_add_u32 s{S_RB}, s{S_RB}, s{S_RBL}")
        A(f"s_lshr_b32 s{S_CB}, s{S_T0}, 2")
        A(f"s_lshl_b32 s{S_CB}, s{S_CB}, 2")
        A(f"s_add_u32 s{S_CB}, s{S_CB}, s{S_T3}")
        A(f"s_lshr_b32 s{S_T4}, s{S_T1}, 2")
        A(f"s_mul_i32 s{S_T4}, s{S_T4}, ROTMUL")
        A(f"s_lshr_b32 s{S_ROT}, s{S_T4}, 2")
    A(f"s_mov_b32 s{S_MASK}, 0xffff0000")
    A(f"s_mov_b32 s{S_ONES}, 0x3f803f80")
    A(f"s_lshr_b32 s{S_WT}, s{S_WV}, 2")
    A(f"s_and_b32 s{S_WC}, s{S_WV}, 3")
    A(f"v_lshrrev_b32 v{T}, 3, v{V_LANE}")
    A(f"s_lshl_b32 s{S_T0}, s{S_WV}, 4")
    A(f"v_add_u32 v{T}, s{S_T0}, v{T}")
    A(f"v_mul_u32_u24 v24, 1280, v{T}")
    A(f"v_and_b32 v25, 7, v{V_LANE}")
    A(f"v_lshl_add_u32 v38, v25, 4, v24")
    A(f"v_add_u32 v39, 10240, v38")
    A(f"v_bfe_u32 v24, v{T}, 1, 3")
    A(f"v_xor_b32 v24, v24, v25")
    A(f"v_lshlrev_b32 v24, 4, v24")
    A(f"v_lshl_add_u32 v{V_XW}, v{T}, 7, v24")
    A(f"v_xor_b32 v{V_XW+1}, 64, v{V_XW}")
    A(f"v_add_u32 v{V_XW+1}, 1024, v{V_XW+1}")
    A("s_waitcnt lgkmcnt(0)")
    srd(A, SRD_X, S_XP, 2048*1280)

def x_loads(A, t0, t1):
    if t0 == 0:
        A(f"s_mul_i32 s{S_T3}, s{S_RB}, 163840")
        A(f"s_lshl_b32 s{S_T4}, s{S_ROT}, 7")
    for t in range(t0, t1):
        A(f"s_add_u32 s{S_T2}, s{S_T3}, s{S_T4}")
        for g in range(2):
            r = V_X + 8*t + 4*g
            A(f"buffer_load_dwordx4 v[{r}:{r+3}], v{38+g}, s[{SRD_X}:{SRD_X+3}], s{S_T2} offen")
        A(f"s_add_u32 s{S_T4}, s{S_T4}, 128")
        A(f"s_cmp_eq_u32 s{S_T4}, 1280")
        A(f"s_cselect_b32 s{S_T4}, 0, s{S_T4}")

def offset_table(A, n, step, lim, rotmul):
    A(f"s_mul_i32 s{S_TAB}, s{S_ROT}, {rotmul}")
    for i in range(1, n):
        A(f"s_add_u32 s{S_TAB+i}, s{S_TAB+i-1}, {step}")
        A(f"s_cmp_eq_u32 s{S_TAB+i}, {lim}")
        A(f"s_cselect_b32 s{S_TAB+i}, 0, s{S_TAB+i}")

def x_read_addrs(A):
    T = V_T
    A(f"v_and_b32 v{T}, 31, v{V_LANE}")
    A(f"v_lshrrev_b32 v24, 5, v{V_LANE}")
    A(f"v_bfe_u32 v25, v{T}, 1, 3")
    A(f"v_xor_b32 v25, v25, v24")
    A(f"v_lshlrev_b32 v25, 4, v25")
    A(f"s_lshl_b32 s{S_T0}, s{S_WT}, 13")
    A(f"v_lshl_add_u32 v25, v{T}, 7, v25")
    A(f"v_add_u32 v{V_XR}, s{S_T0}, v25")
    for t4 in range(1, 4):
        A(f"v_xor_b32 v{V_XR+t4}, {32*t4}, v{V_XR}")

def stats(A, n_after):
    S0 = U
    for i in range(8): A(f"v_mov_b32 v{S0+i}, 0")
    for t in range(10):
        A(f"s_waitcnt vmcnt({n_after + 2*(9-t)})")
        for g in range(2):
            for r in range(4):
                x = V_X + 8*t + 4*g + r
                A(f"v_dot2_f32_bf16 v{S0+4*g+(r&1)}, v{x}, s{S_ONES}, v{S0+4*g+(r&1)}")
                A(f"v_dot2_f32_bf16 v{S0+4*g+2+(r&1)}, v{x}, v{x}, v{S0+4*g+2+(r&1)}")
    for g in range(2):
        A(f"v_add_f32 v{S0+4*g}, v{S0+4*g}, v{S0+4*g+1}")
        A(f"v_add_f32 v{S0+4*g+2}, v{S0+4*g+2}, v{S0+4*g+3}")
    regs = [S0, S0+2, S0+4, S0+6]
    for mode in ("quad_perm:[1,0,3,2]", "quad_perm:[2,3,0,1]", "row_half_mirror"):
        A("s_nop 1")
        for r in regs:
            A(f"v_add_f32_dpp v{r}, v{r}, v{r} {mode} row_mask:0xf bank_mask:0xf")
    A(f"s_mov_b32 s{S_T0}, 0x3acccccd")
    A(f"s_mov_b32 s{S_T1}, 0x3727c5ac")
    for g in range(2):
        m, q = S0+4*g, S0+4*g+2
        A(f"v_mul_f32 v{m}, s{S_T0}, v{m}")
        A(f"v_mul_f32 v{q}, s{S_T0}, v{q}")
        A(f"v_fma_f32 v{q}, -v{m}, v{m}, v{q}")
        A(f"v_max_f32 v{q}, 0, v{q}")
        A(f"v_add_f32 v{q}, s{S_T1}, v{q}")
        A(f"v_rsq_f32 v{VR[g]}, v{q}")
        A("s_nop 0")
        A(f"v_mul_f32 v{VB[g]}, v{m}, v{VR[g]}")
        A(f"v_sub_f32 v{VB[g]}, 0, v{VB[g]}")

def f_path(A, prof):
    T = V_T
    A(f"s_cmp_lt_u32 s{S_WV}, 4")
    A(f"s_cselect_b32 s{S_T0}, s{S_WGP}, s{S_WUP}")
    A(f"s_cselect_b32 s{S_T1}, s{S_WGP+1}, s{S_WUP+1}")
    A(f"s_mov_b32 s{SRD_W}, s{S_T0}")
    A(f"s_and_b32 s{SRD_W+1}, s{S_T1}, 0xffff")
    A(f"s_mov_b32 s{SRD_W+2}, {640*3072}")
    A(f"s_mov_b32 s{SRD_W+3}, 0x20000")
    A(f"s_lshl_b32 s{S_T0}, s{S_RBL}, 3")
    A(f"s_lshl_b32 s{S_T1}, s{S_WC}, 1")
    A(f"s_add_u32 s{S_T0}, s{S_T0}, s{S_T1}")
    A(f"s_mul_i32 s{S_T0}, s{S_T0}, 3072")
    A(f"s_mul_i32 s{S_T1}, s{S_CB}, 384")
    A(f"s_add_u32 s{S_T0}, s{S_T0}, s{S_T1}")
    A(f"v_and_b32 v{T}, 3, v{V_LANE}")
    A(f"v_min_u32 v{T}, 2, v{T}")
    A(f"v_lshlrev_b32 v{T}, 7, v{T}")
    A(f"v_bfe_u32 v24, v{V_LANE}, 2, 1")
    A(f"v_mul_u32_u24 v24, 3072, v24")
    A(f"v_add_u32 v{T}, v{T}, v24")
    A(f"v_add_u32 v{V_TCH}, s{S_T0}, v{T}")
    A(f"s_mul_i32 s{S_TAB}, s{S_ROT}, {64*3072}")
    A(f"s_add_u32 s{S_TAB+1}, s{S_TAB}, {32*3072}")
    nt0 = OPT.get("ntouch0", 2)
    for s in range(nt0):
        if s >= 2:
            A(f"s_add_u32 s{S_TAB+s}, s{S_TAB+s-1}, {32*3072}\ns_cmp_eq_u32 s{S_TAB+s}, {640*3072}\ns_cselect_b32 s{S_TAB+s}, 0, s{S_TAB+s}")
        for x in f_touch(s): A(x)
    x_loads(A, 0, 10)
    offset_table(A, 20, 32*3072, 640*3072, 64*3072)
    srd(A, SRD_WS, S_WSP, WS_SIZE)
    for s in range(nt0, TD-4+0):
        for x in f_touch(s): A(x)
    x_read_addrs(A)
    A(f"v_lshrrev_b32 v{T}, 4, v{V_LANE}")
    A(f"v_bfe_u32 v26, v{V_LANE}, 2, 2")
    A(f"v_and_b32 v27, 3, v{V_LANE}")
    A(f"s_mul_i32 s{S_T0}, s{S_WC}, 12")
    A(f"s_mul_i32 s{S_T1}, s{S_CB}, 384")
    for i in range(3):
        A(f"v_add_u32 v28, s{S_T0}, v{T}")
        if i: A(f"v_add_u32 v28, {4*i}, v28")
        A(f"v_mul_u32_u24 v24, 43, v28")
        A(f"v_lshrrev_b32 v24, 8, v24")
        A(f"v_mul_u32_u24 v25, 6, v24")
        A(f"v_sub_u32 v25, v28, v25")
        A(f"v_lshl_add_u32 v24, v24, 2, v26")
        A(f"v_mul_u32_u24 v24, 3072, v24")
        A(f"v_lshl_add_u32 v24, v25, 6, v24")
        A(f"v_lshl_add_u32 v24, v27, 4, v24")
        A(f"v_add_u32 v{V_WD+i}, s{S_T1}, v24")
    A(f"s_mul_i32 s{S_T0}, s{S_WT}, {F_UP}")
    A(f"s_mul_i32 s{S_T1}, s{S_WC}, 3072")
    A(f"s_add_u32 s{S_LDSW}, s{S_T0}, s{S_T1}")
    A(f"s_add_u32 s{S_LDSW}, s{S_LDSW}, {WBASE}")
    A(f"v_bfe_u32 v{T}, v{V_LANE}, 4, 1")
    A(f"v_mul_u32_u24 v{T}, {F_UP}, v{T}")
    A(f"v_lshrrev_b32 v24, 5, v{V_LANE}")
    A(f"v_mul_u32_u24 v24, 3072, v24")
    A(f"v_add_u32 v{T}, v{T}, v24")
    A(f"v_bfe_u32 v24, v{V_LANE}, 2, 2")
    A(f"v_lshl_add_u32 v{T}, v24, 6, v{T}")
    A(f"v_and_b32 v24, 3, v{V_LANE}")
    A(f"v_lshl_add_u32 v{T}, v24, 3, v{T}")
    A(f"s_lshr_b32 s{S_T0}, s{S_WC}, 1")
    A(f"s_lshl_b32 s{S_T0}, s{S_T0}, 8")
    A(f"s_and_b32 s{S_T1}, s{S_WC}, 1")
    A(f"s_lshl_b32 s{S_T1}, s{S_T1}, 5")
    A(f"s_add_u32 s{S_T0}, s{S_T0}, s{S_T1}")
    A(f"s_add_u32 s{S_T0}, s{S_T0}, {WBASE}")
    A(f"v_add_u32 v{V_WB}, s{S_T0}, v{T}")
    A(f"v_add_u32 v{V_WB+1}, {2*F_SLOT}, v{V_WB}")
    A(f"v_add_u32 v{V_WB+2}, {4*F_SLOT}, v{V_WB}")
    for i in range(96): A(f"v_mov_b32 v{V_ACC+i}, 0")
    nafter = 0
    for q in (-4, -3):
        for x in f_dma(q+4): A(x)
        if q+TD < 20 and not OPT.get("no_touch"):
            for x in f_touch(q+TD): A(x)
        nafter += vm_ops_F(q)
    nafter += max(0, (TD-4) - nt0)
    stamp(A, 1, prof)
    stats(A, nafter)
    for g in range(2):
        for x in norm_valu(0, g): A(x)
        A(norm_write(0, g))
    for x in norm_valu(1, 0): A(x)
    for q in (-2, -1):
        for x in f_dma(q+4): A(x)
        if q+TD < 20 and not OPT.get("no_touch"):
            for x in f_touch(q+TD): A(x)
    n = (1 if not OPT.get("no_touch") else 0) + sum(vm_ops_F(q) for q in (-3, -2, -1))
    A(f"s_waitcnt vmcnt({n}) lgkmcnt(0)")
    stamp(A, 2, prof)
    f_loop(A)
    stamp(A, 3, prof)
    f_epilogue(A)
    stamp(A, 4, prof)

def f_epilogue(A):
    T = V_T
    A(f"v_bfe_u32 v{T}, v{V_LANE}, 4, 1")
    A(f"v_lshlrev_b32 v{T}, 10, v{T}")
    A(f"v_lshrrev_b32 v40, 5, v{V_LANE}")
    A(f"v_lshl_add_u32 v{T}, v40, 8, v{T}")
    A(f"v_and_b32 v40, 15, v{V_LANE}")
    A(f"v_lshl_add_u32 v{T}, v40, 4, v{T}")
    A(f"s_lshl_b32 s{S_T0}, s{S_RB}, 1")
    A(f"s_add_u32 s{S_T0}, s{S_T0}, s{S_WT}")
    A(f"s_mul_i32 s{S_T0}, s{S_T0}, 48")
    A(f"s_mul_i32 s{S_T1}, s{S_CB}, 6")
    A(f"s_add_u32 s{S_T0}, s{S_T0}, s{S_T1}")
    A(f"s_lshr_b32 s{S_T1}, s{S_WC}, 1")
    A(f"s_add_u32 s{S_T0}, s{S_T0}, s{S_T1}")
    A(f"s_lshl_b32 s{S_T0}, s{S_T0}, 12")
    A(f"s_and_b32 s{S_T1}, s{S_WC}, 1")
    A(f"s_lshl_b32 s{S_T1}, s{S_T1}, 9")
    A(f"s_add_u32 s{S_T0}, s{S_T0}, s{S_T1}")
    if WS_H: A(f"s_add_u32 s{S_T0}, s{S_T0}, {WS_H}")
    A("s_nop 7")
    A("s_nop 3")
    st = OPT.get("stflags", "")
    for tau in range(2):
        for ft in range(3):
            c = V_ACC + 16*(3*tau+ft)
            P = V_N + 4*((3*tau+ft) & 3)
            for r in range(8):
                A(f"v_mul_f32 v{c+r}, v{c+r}, v{c+8+r}")
            for r in range(4):
                A(f"v_cvt_pk_bf16_f32 v{P+r}, v{c+2*r}, v{c+2*r+1}")
            A(f"s_add_u32 s{S_T1}, s{S_T0}, {tau*2048 + ft*8192}")
            A(f"buffer_store_dwordx4 v[{P}:{P+3}], v{T}, s[{SRD_WS}:{SRD_WS+3}], s{S_T1} offen {st}")

def a_path(A, prof, opts):
    T = V_T
    srd(A, SRD_W, S_QKVP, 640*3840)
    A(f"s_lshl_b32 s{S_T0}, s{S_RBL}, 4")
    A(f"s_lshl_b32 s{S_T1}, s{S_WV}, 1")
    A(f"s_add_u32 s{S_T0}, s{S_T0}, s{S_T1}")
    A(f"s_mul_i32 s{S_T0}, s{S_T0}, 3840")
    A(f"s_mul_i32 s{S_T1}, s{S_CB}, 160")
    A(f"s_and_b32 s{S_T1}, s{S_T1}, 0xffffff80")
    A(f"s_add_u32 s{S_T0}, s{S_T0}, s{S_T1}")
    A(f"v_and_b32 v{T}, 7, v{V_LANE}")
    A(f"v_min_u32 v{T}, 5, v{T}")
    A(f"v_lshrrev_b32 v24, 1, v{T}")
    A(f"v_mul_u32_u24 v24, 1280, v24")
    A(f"v_and_b32 v{T}, 1, v{T}")
    A(f"v_lshl_add_u32 v{T}, v{T}, 7, v24")
    A(f"v_bfe_u32 v24, v{V_LANE}, 3, 1")
    A(f"v_mul_u32_u24 v24, 3840, v24")
    A(f"v_add_u32 v{T}, v{T}, v24")
    A(f"v_add_u32 v{V_TCH}, s{S_T0}, v{T}")
    A(f"s_mul_i32 s{S_TAB}, s{S_ROT}, {64*3840}")
    for x in a_touch(0): A(x)
    x_loads(A, 0, 10)
    offset_table(A, 10, 64*3840, 640*3840, 64*3840)
    srd(A, SRD_WS, S_WSP, WS_SIZE)
    for x in a_touch(1): A(x)
    x_read_addrs(A)
    srd(A, SRD_M, S_PHIP, 25600)
    A(f"v_lshlrev_b32 v{T}, 4, v{V_LANE}")
    A(f"s_mul_i32 s{S_T0}, s{S_CB}, 3200")
    A(f"s_lshl_b32 s{S_T1}, s{S_WC}, 10")
    A(f"s_add_u32 s{S_T0}, s{S_T0}, s{S_T1}")
    A(f"s_add_u32 m0, s{S_T1}, {G.A_PHI}")
    A("s_nop 0")
    A(f"buffer_load_dwordx4 v{T}, s[{SRD_M}:{SRD_M+3}], s{S_T0} offen lds")
    A(f"v_lshrrev_b32 v{T}, 4, v{V_LANE}")
    A(f"v_and_b32 v27, 3, v{V_LANE}")
    A(f"v_lshl_add_u32 v{T}, v{T}, 2, v27")
    A(f"v_bfe_u32 v27, v{V_LANE}, 2, 2")
    A(f"s_lshl_b32 s{S_T0}, s{S_WV}, 2")
    A(f"v_add_u32 v27, s{S_T0}, v27")
    A(f"v_mul_u32_u24 v27, 3840, v27")
    A(f"s_mul_i32 s{S_T1}, s{S_CB}, 160")
    A(f"v_add_u32 v27, s{S_T1}, v27")
    A(f"v_cmp_gt_u32 vcc, 10, v{T}")
    A(f"v_mov_b32 v28, 1120")
    A(f"v_lshl_add_u32 v29, v{T}, 4, v27")
    A(f"v_cndmask_b32 v28, v28, 0, vcc")
    A(f"v_add_u32 v{V_WD}, v29, v28")
    A(f"v_min_u32 v24, 14, v{T}")
    A(f"v_cmp_eq_u32 vcc, 4, v{T}")
    A(f"v_mov_b32 v25, 3")
    A("s_nop 0")
    A(f"v_cndmask_b32 v24, v24, v25, vcc")
    A(f"v_cmp_gt_u32 vcc, 5, v{T}")
    A(f"v_mov_b32 v25, 2480")
    A(f"v_mov_b32 v26, 1376")
    A(f"v_cndmask_b32 v25, v25, v26, vcc")
    A(f"v_lshl_add_u32 v24, v24, 4, v27")
    A(f"v_add_u32 v{V_WD+1}, v24, v25")
    A(f"v_add_u32 v{V_WD+2}, {32*3840}, v{V_WD}")
    A(f"v_add_u32 v{V_WD+3}, {32*3840}, v{V_WD+1}")
    A(f"s_lshl_b32 s{S_LDSW}, s{S_WV}, 11")
    A(f"s_add_u32 s{S_LDSW}, s{S_LDSW}, {WBASE}")
    old = G.V_T
    G.V_T = 24
    G.a_tr_addr(A, 0, V_WB)
    G.a_tr_addr(A, 1, V_WB+2)
    G.V_T = old
    A(f"v_add_u32 v{V_WB+1}, {2*A_DSLOT}, v{V_WB}")
    A(f"v_add_u32 v{V_WB+3}, {2*A_DSLOT}, v{V_WB+2}")
    for i in range(64): A(f"v_mov_b32 v{V_ACC+i}, 0")
    A(f"v_lshlrev_b32 v{T}, 4, v{V_LANE}")
    A(f"v_add_u32 v{T}, {G.A_ZERO}, v{T}")
    A(f"ds_write_b128 v{T}, v[{V_ACC}:{V_ACC+3}]")
    nafter = 2
    q = -2
    for x in a_dma(0): A(x)
    if not OPT.get("no_touch"):
        for x in a_touch(q+ATD): A(x)
    nafter += vm_ops_A(q)
    stamp(A, 1, prof)
    stats(A, nafter)
    for g in range(2):
        for x in norm_valu(0, g): A(x)
        A(norm_write(0, g))
    for g in range(2):
        for x in norm_valu(1, g): A(x)
    q = -1
    for x in a_dma(1): A(x)
    if not OPT.get("no_touch"):
        for x in a_touch(q+ATD): A(x)
    n = (1 if not OPT.get("no_touch") else 0) + vm_ops_A(-1)
    A(f"s_waitcnt vmcnt({n}) lgkmcnt(0)")
    stamp(A, 2, prof)
    a_loop(A)
    stamp(A, 0 if opts.get("estamp") else 3, prof)
    A("s_waitcnt vmcnt(0)")
    A("s_barrier")
    if not opts.get("noW3"):
        G.w3_stage_loads(A)
    if opts.get("estamp"):
        opts["est"] = lambda A_, i: stamp(A_, i, True)
    G.a_epilogue(A, prof, opts)
    if opts.get("estamp"): stamp(A, 3, True)
    if not opts.get("noW3"):
        A("s_waitcnt vmcnt(0)")
        A("s_barrier")
        G.w3_relayout(A)
    stamp(A, 4, prof)

def write_stamps(A, n):
    A("s_waitcnt vmcnt(0) lgkmcnt(0)")
    A(f"s_and_b32 s{S_T1}, s{S_WV}, 3")
    A(f"s_cmp_eq_u32 s{S_T1}, 0")
    l = A.newlabel("L_st")
    A(f"s_cbranch_scc0 {l}")
    A(f"s_lshl_b32 s{S_T0}, s2, 6")
    A(f"s_lshl_b32 s{S_T1}, s{S_WT}, 5")
    A(f"s_add_u32 s{S_T0}, s{S_T0}, s{S_T1}")
    A(f"s_add_u32 s{S_T0}, s{S_T0}, {WS_DBG}")
    A(f"v_mov_b32 v{V_T}, 0")
    A(f"v_cmp_eq_u32 vcc, 0, v{V_LANE}")
    A(f"s_and_saveexec_b64 s[{S_EX}:{S_EX+1}], vcc")
    for i in range(n):
        A(f"v_mov_b32 v{V_N}, s{S_ST+2*i}")
        A(f"buffer_store_dword v{V_N}, v{V_T}, s[{SRD_WS}:{SRD_WS+3}], s{S_T0} offen offset:{4*i}")
        A("s_nop 1")
    A("s_waitcnt vmcnt(0)")
    A.label(l)
```

```python
from asmlib import *
import gen_k1u as Uu
from gen_k1u import *
import gen_k1 as G
from gen_k1 import WS_FLAG

L2E = 0x3fb8aa3b
A_PHI, A_ZERO, A_W3ST = G.A_PHI, G.A_ZERO, 65536
V_EWP0, V_EWP1, V_EROW, V_ES16, V_EKA, V_EKB = 72, 73, 74, 75, 76, 77
TT = 24

def x_load_t(A, t):
    A(f"s_add_u32 s{S_T2}, s{S_T3}, s{S_T4}")
    for g in range(2):
        r = V_X + 8*t + 4*g
        A(f"buffer_load_dwordx4 v[{r}:{r+3}], v{38+g}, s[{SRD_X}:{SRD_X+3}], s{S_T2} offen")
    A(f"s_add_u32 s{S_T4}, s{S_T4}, 128")
    A(f"s_cmp_eq_u32 s{S_T4}, 1280")
    A(f"s_cselect_b32 s{S_T4}, 0, s{S_T4}")

S0 = 28
def dot_t(A, t):
    for g in range(2):
        for r in range(4):
            x = V_X + 8*t + 4*g + r
            A(f"v_dot2_f32_bf16 v{S0+4*g+(r&1)}, v{x}, s{S_ONES}, v{S0+4*g+(r&1)}")
            A(f"v_dot2_f32_bf16 v{S0+4*g+2+(r&1)}, v{x}, v{x}, v{S0+4*g+2+(r&1)}")

def stats_finish(A):
    for g in range(2):
        A(f"v_add_f32 v{S0+4*g}, v{S0+4*g}, v{S0+4*g+1}")
        A(f"v_add_f32 v{S0+4*g+2}, v{S0+4*g+2}, v{S0+4*g+3}")
    regs = [S0, S0+2, S0+4, S0+6]
    for mode in ("quad_perm:[1,0,3,2]", "quad_perm:[2,3,0,1]", "row_half_mirror"):
        A("s_nop 1")
        for r in regs:
            A(f"v_add_f32_dpp v{r}, v{r}, v{r} {mode} row_mask:0xf bank_mask:0xf")
    A(f"s_mov_b32 s{S_T0}, 0x3acccccd")
    A(f"s_mov_b32 s{S_T1}, 0x3727c5ac")
    for g in range(2):
        m, q = S0+4*g, S0+4*g+2
        A(f"v_mul_f32 v{m}, s{S_T0}, v{m}")
        A(f"v_mul_f32 v{q}, s{S_T0}, v{q}")
    for g in range(2):
        m, q = S0+4*g, S0+4*g+2
        A(f"v_fma_f32 v{q}, -v{m}, v{m}, v{q}")
    for g in range(2):
        A(f"v_max_f32 v{S0+4*g+2}, 0, v{S0+4*g+2}")
    for g in range(2):
        A(f"v_add_f32 v{S0+4*g+2}, s{S_T1}, v{S0+4*g+2}")
    for g in range(2):
        A(f"v_rsq_f32 v{VR[g]}, v{S0+4*g+2}")
    A("s_nop 0")
    for g in range(2):
        A(f"v_mul_f32 v{VB[g]}, v{S0+4*g}, v{VR[g]}")
    for g in range(2):
        A(f"v_sub_f32 v{VB[g]}, 0, v{VB[g]}")

def x_phase(A, mid1, mid2, after_x):
    A(f"s_mul_i32 s{S_T3}, s{S_RB}, 163840")
    A(f"s_lshl_b32 s{S_T4}, s{S_ROT}, 7")
    for t in range(0, 4): x_load_t(A, t)
    sv = (S_T3, S_T4)
    mid1(A)
    for t in range(4, 7): x_load_t(A, t)
    mid2(A)
    for i in range(8): A(f"v_mov_b32 v{S0+i}, 0")
    A(f"s_waitcnt vmcnt({2*(7-1)})")
    dot_t(A, 0)
    x_load_t(A, 7)
    A(f"s_waitcnt vmcnt({2*(8-2)})")
    dot_t(A, 1)
    x_load_t(A, 8)
    A(f"s_waitcnt vmcnt({2*(9-3)})")
    dot_t(A, 2)
    x_load_t(A, 9)
    n = after_x(A)
    for t in range(3, 10):
        A(f"s_waitcnt vmcnt({n + 2*(9-t)})")
        dot_t(A, t)
    stats_finish(A)

def f_path(A, prof):
    T = TT
    def mid1(A):
        A(f"s_cmp_lt_u32 s{S_WV}, 4")
        A(f"s_cselect_b32 s{S_T0}, s{S_WGP}, s{S_WUP}")
        A(f"s_cselect_b32 s{S_T1}, s{S_WGP+1}, s{S_WUP+1}")
        A(f"s_mov_b32 s{SRD_W}, s{S_T0}")
        A(f"s_and_b32 s{SRD_W+1}, s{S_T1}, 0xffff")
        A(f"s_mov_b32 s{SRD_W+2}, {640*3072}")
        A(f"s_mov_b32 s{SRD_W+3}, 0x20000")
        offset_table(A, 20, 32*3072, 640*3072, 64*3072)
        srd(A, SRD_WS, S_WSP, WS_SIZE)
        x_read_addrs(A)
        A(f"v_lshrrev_b32 v29, 4, v{V_LANE}")
        A(f"v_bfe_u32 v26, v{V_LANE}, 2, 2")
        A(f"v_and_b32 v27, 3, v{V_LANE}")
        A(f"s_mul_i32 s{S_T0}, s{S_WC}, 12")
        A(f"s_mul_i32 s{S_T1}, s{S_CB}, 384")
        for i in range(3):
            A(f"v_add_u32 v28, s{S_T0}, v29")
            if i: A(f"v_add_u32 v28, {4*i}, v28")
            A(f"v_mul_u32_u24 v24, 43, v28")
            A(f"v_lshrrev_b32 v24, 8, v24")
            A(f"v_mul_u32_u24 v25, 6, v24")
            A(f"v_sub_u32 v25, v28, v25")
            A(f"v_lshl_add_u32 v24, v24, 2, v26")
            A(f"v_mul_u32_u24 v24, 3072, v24")
            A(f"v_lshl_add_u32 v24, v25, 6, v24")
            A(f"v_lshl_add_u32 v24, v27, 4, v24")
            A(f"v_add_u32 v{V_WD+i}, s{S_T1}, v24")
        A(f"s_mul_i32 s{S_T0}, s{S_WT}, {F_UP}")
        A(f"s_mul_i32 s{S_T1}, s{S_WC}, 3072")
        A(f"s_add_u32 s{S_LDSW}, s{S_T0}, s{S_T1}")
        A(f"s_add_u32 s{S_LDSW}, s{S_LDSW}, {WBASE}")
        A(f"v_bfe_u32 v25, v{V_LANE}, 4, 1")
        A(f"v_mul_u32_u24 v25, {F_UP}, v25")
        A(f"v_lshrrev_b32 v24, 5, v{V_LANE}")
        A(f"v_mul_u32_u24 v24, 3072, v24")
        A(f"v_add_u32 v25, v25, v24")
        A(f"v_bfe_u32 v24, v{V_LANE}, 2, 2")
        A(f"v_lshl_add_u32 v25, v24, 6, v25")
        A(f"v_and_b32 v24, 3, v{V_LANE}")
        A(f"v_lshl_add_u32 v25, v24, 3, v25")
        A(f"s_lshr_b32 s{S_T0}, s{S_WC}, 1")
        A(f"s_lshl_b32 s{S_T0}, s{S_T0}, 8")
        A(f"s_and_b32 s{S_T1}, s{S_WC}, 1")
        A(f"s_lshl_b32 s{S_T1}, s{S_T1}, 5")
        A(f"s_add_u32 s{S_T0}, s{S_T0}, s{S_T1}")
        A(f"s_add_u32 s{S_T0}, s{S_T0}, {WBASE}")
        A(f"v_add_u32 v{V_WB}, s{S_T0}, v25")
        A(f"v_add_u32 v{V_WB+1}, {2*F_SLOT}, v{V_WB}")
        A(f"v_add_u32 v{V_WB+2}, {4*F_SLOT}, v{V_WB}")
    def mid2(A):
        for i in range(96): A(f"v_mov_b32 v{V_ACC+i}, 0")
    def after_x(A):
        for x in f_dma(0): A(x)
        return 3
    x_phase(A, mid1, mid2, after_x)
    stamp(A, 1, prof)
    for g in range(2):
        for x in norm_valu(0, g): A(x)
        A(norm_write(0, g))
    for q in (1, 2, 3):
        for x in f_dma(q): A(x)
    for x in norm_valu(1, 0): A(x)
    A(f"s_waitcnt vmcnt(9) lgkmcnt(0)")
    stamp(A, 2, prof)
    if OPT.get("g1prio") == "all":
        l = A.newlabel("L_pr"); A(f"s_cmp_eq_u32 s{S_WT}, 0"); A(f"s_cbranch_scc1 {l}"); A("s_setprio 2"); A.label(l)
    f_loop(A)
    stamp(A, 3, prof)
    f_epilogue(A)
    lz = A.newlabel("L_zf")
    A(f"s_or_b32 s{S_T0}, s2, s{S_WV}")
    A(f"s_cmp_eq_u32 s{S_T0}, 0")
    A(f"s_cbranch_scc0 {lz}")
    A(f"v_mov_b32 v40, 0\nv_mov_b32 v41, 0\nv_mov_b32 v42, 0\nv_mov_b32 v43, 0")
    A(f"v_lshlrev_b32 v44, 4, v{V_LANE}")
    A(f"s_mov_b32 s{S_T1}, {WS_FLAG}")
    A(f"buffer_store_dwordx4 v[40:43], v44, s[{SRD_WS}:{SRD_WS+3}], s{S_T1} offen")
    A.label(lz)
    stamp(A, 4, prof)

def a_addr_setup(A):
    T = 24
    A(f"v_and_b32 v{T}, 3, v{V_LANE}")
    A(f"v_bfe_u32 v{T+1}, v{V_LANE}, 4, 1")
    A(f"v_lshrrev_b32 v{T+2}, 1, v{T}")
    A(f"v_lshl_add_u32 v{T+2}, v{T+1}, 1, v{T+2}")
    A(f"v_and_b32 v{T+3}, 1, v{T}")
    A(f"v_lshrrev_b32 v{T+4}, 5, v{V_LANE}")
    A(f"v_bfe_u32 v{T+5}, v{V_LANE}, 2, 2")
    A(f"v_mul_u32_u24 v{T+5}, 40, v{T+5}")
    A(f"v_lshl_add_u32 v{T+5}, v{T+2}, 3, v{T+5}")
    A(f"s_mul_i32 s{S_T0}, s{S_WC}, 800")
    A(f"s_add_u32 s{S_T0}, s{S_T0}, {A_PHI}")
    A(f"v_add_u32 v{T+5}, s{S_T0}, v{T+5}")
    A(f"v_mov_b32 v{T+6}, {A_ZERO}")
    A(f"v_cmp_eq_u32 vcc, v{T+3}, v{T+4}")
    A("s_nop 1")
    A(f"v_cndmask_b32 v{V_EWP0}, v{T+6}, v{T+5}, vcc")
    A(f"v_cmp_eq_u32 vcc, 0, v{T+2}")
    A("s_nop 1")
    A(f"v_cndmask_b32 v{V_EWP1}, v{T+6}, v{V_EWP0}, vcc")
    A(f"v_and_b32 v{T}, 31, v{V_LANE}")
    A(f"v_bfe_u32 v{T+1}, v{T}, 1, 1")
    A(f"v_lshlrev_b32 v{T+1}, 2, v{T+1}")
    A(f"v_bfe_u32 v{T+2}, v{T}, 2, 1")
    A(f"v_lshl_or_b32 v{T+1}, v{T+2}, 1, v{T+1}")
    A(f"v_and_b32 v{T+2}, 1, v{T}")
    A(f"v_or_b32 v{T+1}, v{T+1}, v{T+2}")
    A(f"v_lshlrev_b32 v{V_ES16}, 4, v{T+1}")
    A(f"s_lshl_b32 s{S_T0}, s{S_WC}, 14")
    A(f"s_lshl_b32 s{S_T1}, s{S_WT}, 13")
    A(f"s_add_u32 s{S_T0}, s{S_T0}, s{S_T1}")
    A(f"v_lshlrev_b32 v{T+2}, 7, v{T}")
    A(f"v_add_u32 v{V_EROW}, s{S_T0}, v{T+2}")
    A(f"v_bfe_u32 v{T}, v{V_LANE}, 2, 2")
    A(f"v_lshrrev_b32 v{T+1}, 1, v{T}")
    A(f"v_lshlrev_b32 v{T+1}, 2, v{T+1}")
    A(f"v_and_b32 v{T+2}, 1, v{T}")
    A(f"v_or_b32 v{T+1}, v{T+1}, v{T+2}")
    A(f"v_lshrrev_b32 v{T+2}, 5, v{V_LANE}")
    A(f"v_lshl_add_u32 v{T+2}, v{T+2}, 3, v{T}")
    A(f"v_lshlrev_b32 v{T+2}, 7, v{T+2}")
    A(f"s_lshl_b32 s{S_T0}, s{S_WC}, 14")
    A(f"v_add_u32 v{T+2}, s{S_T0}, v{T+2}")
    A(f"v_bfe_u32 v{T+3}, v{V_LANE}, 4, 1")
    A(f"v_and_b32 v{T+4}, 3, v{V_LANE}")
    A(f"v_lshl_add_u32 v{T+3}, v{T+3}, 2, v{T+4}")
    A(f"v_and_b32 v{T+4}, 4, v{T+3}")
    A(f"v_and_b32 v{T+5}, 1, v{T+3}")
    A(f"v_lshl_add_u32 v{T+4}, v{T+5}, 1, v{T+4}")
    A(f"v_bfe_u32 v{T+5}, v{T+3}, 1, 1")
    A(f"v_add_u32 v{T+4}, v{T+4}, v{T+5}")
    A(f"v_and_b32 v{T+5}, 1, v{T+3}")
    A(f"v_add_u32 v{T+5}, 8, v{T+5}")
    A(f"s_cmp_eq_u32 s{S_WT}, 0")
    A(f"s_cselect_b64 vcc, -1, 0")
    A(f"v_cndmask_b32 v{T+4}, v{T+5}, v{T+4}, vcc")
    A(f"v_lshrrev_b32 v{T+5}, 1, v{T+4}")
    A(f"v_and_b32 v{T+4}, 1, v{T+4}")
    A(f"v_xor_b32 v{T+6}, v{T+5}, v{T+1}")
    A(f"v_lshlrev_b32 v{T+6}, 4, v{T+6}")
    A(f"v_lshl_add_u32 v{T+6}, v{T+4}, 3, v{T+6}")
    A(f"v_add_u32 v{V_EKA}, v{T+2}, v{T+6}")
    A(f"s_mov_b32 s{S_T1}, 0xfffdceba")
    A(f"v_lshlrev_b32 v{T+4}, 2, v{T+3}")
    A(f"v_lshrrev_b32 v{T+4}, v{T+4}, s{S_T1}")
    A(f"v_and_b32 v{T+4}, 15, v{T+4}")
    A(f"v_lshrrev_b32 v{T+5}, 1, v{T+4}")
    A(f"v_and_b32 v{T+4}, 1, v{T+4}")
    A(f"v_xor_b32 v{T+6}, v{T+5}, v{T+1}")
    A(f"v_lshlrev_b32 v{T+6}, 4, v{T+6}")
    A(f"v_lshl_add_u32 v{T+6}, v{T+4}, 3, v{T+6}")
    A(f"v_add_u32 v{V_EKB}, v{T+2}, v{T+6}")

V_WP = 80
W3R = 104

NKAP = 72
W3WAVE = 13312
def w3_params(A):
    A(f"s_lshl_b32 s{S_T0}, s{S_CB}, 4")
    A(f"s_add_u32 s{S_T5}, s{S_T0}, s{S_RB}")
    A(f"s_cmp_lt_u32 s{S_T5}, 48")
    A(f"s_cselect_b32 s{S_T0}, s{S_WDP}, s{S_WOP}")
    A(f"s_cselect_b32 s{S_T1}, s{S_WDP+1}, s{S_WOP+1}")
    A(f"s_mov_b32 s{S_T2}, {640*1280}")
    A(f"s_cselect_b32 s{S_T2}, {1536*1280}, s{S_T2}")
    A(f"s_mov_b32 s{SRD_M}, s{S_T0}")
    A(f"s_and_b32 s{SRD_M+1}, s{S_T1}, 0xffff")
    A(f"s_mov_b32 s{SRD_M+2}, s{S_T2}")
    A(f"s_mov_b32 s{SRD_M+3}, 0x20000")
    A(f"s_sub_u32 s{S_T0}, s{S_T5}, 48")
    A(f"s_lshl_b32 s{S_T0}, s{S_T0}, 2")
    A(f"s_mul_i32 s{S_T0}, s{S_T0}, 43")
    A(f"s_lshr_b32 s{S_T2}, s{S_T0}, 7")
    A(f"s_mul_i32 s{S_T0}, s{S_T2}, 20")
    A(f"s_lshl_b32 s{S_T1}, s{S_T5}, 5")
    A(f"s_cmp_lt_u32 s{S_T5}, 48")
    A(f"s_cselect_b32 s{S_T0}, s{S_T1}, s{S_T0}")
    A(f"s_mul_i32 s{S_T3}, s{S_T0}, 1280")

def w3_voffs():
    L = []
    for i in range(5):
        L += [f"v_add_u32 v{W3R+5}, {64*i}, v{V_LANE}",
              f"v_mul_u32_u24 v{W3R+6}, 3277, v{W3R+5}",
              f"v_lshrrev_b32 v{W3R+6}, 16, v{W3R+6}",
              f"v_mul_u32_u24 v{W3R+7}, 20, v{W3R+6}",
              f"v_sub_u32 v{W3R+7}, v{W3R+5}, v{W3R+7}",
              f"v_mul_u32_u24 v{W3R+6}, 1280, v{W3R+6}",
              f"v_lshl_add_u32 v{W3R+i}, v{W3R+7}, 4, v{W3R+6}"]
    return L

def w3_loads_g0(A):
    l = A.newlabel("L_w3l")
    A(f"s_cmp_eq_u32 s{S_WT}, 0")
    A(f"s_cbranch_scc0 {l}")
    w3_params(A)
    A(f"s_cmp_ge_u32 s{S_T5}, {NKAP}")
    A(f"s_cselect_b32 s{S_T3}, 0x7f000000, s{S_T3}")
    A(f"s_mul_i32 s{S_T1}, s{S_WC}, 320")
    A(f"s_add_u32 s{S_T0}, s{S_T3}, s{S_T1}")
    A(f"s_mul_i32 s{S_T1}, s{S_WC}, {W3WAVE}")
    A(f"s_add_u32 s{S_T1}, s{S_T1}, {A_W3ST}")
    for i in range(13):
        A(f"s_add_u32 m0, s{S_T1}, {1024*i}")
        A(f"s_add_u32 s{S_T2}, s{S_T0}, {(i//5)*16*1280}")
        A(f"buffer_load_dwordx4 v{W3R+(i%5)}, s[{SRD_M}:{SRD_M+3}], s{S_T2} offen lds")
    A.label(l)

def w3_relayout_g0(A):
    l = A.newlabel("L_w3r")
    A(f"s_cmp_eq_u32 s{S_WT}, 0")
    A(f"s_cbranch_scc0 {l}")
    A(f"s_lshl_b32 s{S_T0}, s{S_CB}, 4")
    A(f"s_add_u32 s{S_T5}, s{S_T0}, s{S_RB}")
    A(f"s_cmp_ge_u32 s{S_T5}, {NKAP}")
    A(f"s_cbranch_scc1 {l}")
    T = 24
    A(f"v_lshrrev_b32 v{T}, 4, v{V_LANE}")
    A(f"v_bfe_u32 v{T+1}, v{V_LANE}, 2, 2")
    A(f"v_lshrrev_b32 v{T+2}, 1, v{T}")
    A(f"v_lshlrev_b32 v{T+2}, 4, v{T+2}")
    A(f"v_and_b32 v{T+3}, 1, v{T}")
    A(f"v_lshl_add_u32 v{T+2}, v{T+3}, 2, v{T+2}")
    A(f"v_add_u32 v{T+3}, 8, v{T+2}")
    A(f"s_sub_u32 s{S_T0}, s{S_T5}, 48")
    A(f"s_lshl_b32 s{S_T0}, s{S_T0}, 2")
    A(f"s_mul_i32 s{S_T1}, s{S_T0}, 43")
    A(f"s_lshr_b32 s{S_T1}, s{S_T1}, 7")
    A(f"v_add_u32 v{T+4}, s{S_T0}, v{T}")
    A(f"v_mul_u32_u24 v{T+5}, 43, v{T+4}")
    A(f"v_lshrrev_b32 v{T+5}, 7, v{T+5}")
    A(f"v_mul_u32_u24 v{T+6}, 3, v{T+5}")
    A(f"v_sub_u32 v{T+4}, v{T+4}, v{T+6}")
    A(f"v_subrev_u32 v{T+5}, s{S_T1}, v{T+5}")
    A(f"v_mul_u32_u24 v{T+5}, 20, v{T+5}")
    A(f"v_lshlrev_b32 v{T+6}, 2, v{T+4}")
    A(f"v_cmp_eq_u32 vcc, 2, v{T+4}")
    A(f"v_mov_b32 v{T+7}, 16")
    A("s_nop 0")
    A(f"v_cndmask_b32 v{T+6}, v{T+6}, v{T+7}, vcc")
    A(f"v_add_u32 v{T+6}, v{T+5}, v{T+6}")
    A(f"v_add_u32 v{T+7}, 8, v{T+6}")
    A(f"s_mov_b64 s[{S_EX}:{S_EX+1}], vcc")
    A(f"s_cmp_lt_u32 s{S_T5}, 48")
    A(f"s_cselect_b64 vcc, -1, 0")
    A(f"s_cselect_b64 s[{S_EX}:{S_EX+1}], 0, s[{S_EX}:{S_EX+1}]")
    A(f"v_cndmask_b32 v{T+2}, v{T+6}, v{T+2}, vcc")
    A(f"v_cndmask_b32 v{T+3}, v{T+7}, v{T+3}, vcc")
    A(f"v_and_b32 v{T+4}, 3, v{V_LANE}")
    A(f"v_lshlrev_b32 v{T+4}, 3, v{T+4}")
    A(f"s_mul_i32 s{S_T0}, s{S_WC}, {W3WAVE}")
    A(f"s_add_u32 s{S_T0}, s{S_T0}, {A_W3ST}")
    for k in (2, 3):
        A(f"v_add_u32 v{T+k}, v{T+k}, v{T+1}")
        A(f"v_mul_u32_u24 v{T+k}, 320, v{T+k}")
        A(f"v_add_u32 v{T+k}, v{T+k}, v{T+4}")
        A(f"v_add_u32 v{T+k}, s{S_T0}, v{T+k}")
    A(f"v_mov_b32 v{T+5}, {A_ZERO}")
    A("s_nop 0")
    A(f"v_cndmask_b32 v{T+3}, v{T+3}, v{T+5}, s[{S_EX}:{S_EX+1}]")
    R = 80
    for f in range(10):
        r = R + 4*f
        A(f"ds_read_b64_tr_b16 v[{r}:{r+1}], v{T+2} offset:{32*f}")
        A(f"ds_read_b64_tr_b16 v[{r+2}:{r+3}], v{T+3} offset:{32*f}")
    A(f"s_mul_i32 s{S_T0}, s{S_WC}, {2*NKAP}")
    A(f"s_add_u32 s{S_T0}, s{S_T0}, s{S_T5}")
    A(f"s_mul_i32 s{S_T0}, s{S_T0}, 5120")
    A(f"s_add_u32 s{S_T0}, s{S_T0}, {WS_W3}")
    A(f"v_lshlrev_b32 v{T}, 4, v{V_LANE}")
    for f in range(10):
        r = R + 4*f
        if f in (0, 5): A(f"s_waitcnt lgkmcnt({10 if f == 0 else 0})")
        A(f"s_add_u32 s{S_T1}, s{S_T0}, {(f//5)*NKAP*5120 + (f%5)*1024}")
        A(f"buffer_store_dwordx4 v[{r}:{r+3}], v{T}, s[{SRD_WS}:{SRD_WS+3}], s{S_T1} offen")
    A.label(l)

def wp_reads():
    L = []
    for o in range(2):
        for s_ in range(3):
            r = V_WP + 4*(3*o+s_)
            L.append(f"ds_read_b64_tr_b16 v[{r}:{r+1}], v{[V_EWP0,V_EWP1][o]} offset:{320*s_+32*o}")
            if s_ < 2:
                L.append(f"ds_read_b64_tr_b16 v[{r+2}:{r+3}], v{[V_EWP0,V_EWP1][o]} offset:{320*s_+160+32*o}")
    return L

def a_loop2(A):
    group_skew_begin(A)
    for S in range(10):
        A("s_barrier")
        for j in range(4):
            for x in xr(A_OP[j], S, j) + a_wreads(S, j, A_OP[j]): A(x)
        if S+1 < 10 and not OPT.get("no_norm"):
            A(norm_write(S+1, 0)); A(norm_write(S+1, 1))
        if S == 9:
            for x in wp_reads(): A(x)
            w3_loads_g0(A)
        if not OPT.get("no_dma"):
            for x in a_dma(S+2): A(x)
        if S+1 < 10:
            n = 4 if S+2 < 10 else 0
            A(f"s_waitcnt vmcnt({n}) lgkmcnt(0)")
        else:
            A("s_waitcnt lgkmcnt(0)")
        A("s_barrier")
        fill = (norm_valu(S+2, 0) + norm_valu(S+2, 1)) if S+2 < 10 else []
        if S == 8:
            fill = w3_voffs()
        if S == 9:
            fill = [f"v_mov_b32 v{V_WP+10}, 0", f"v_mov_b32 v{V_WP+11}, 0", f"v_mov_b32 v{V_WP+22}, 0", f"v_mov_b32 v{V_WP+23}, 0"]
        mf = []
        for j in range(4):
            b = A_OP[j]
            for a_ in range(2):
                for tau in range(2):
                    c = V_ACC + 16*(2*tau+a_)
                    mf.append(f"v_mfma_f32_32x32x16_bf16 v[{c}:{c+15}], v[{b+8+4*a_}:{b+11+4*a_}], v[{b+4*tau}:{b+3+4*tau}], v[{c}:{c+15}]")
        mfma_block(A, mf, fill)
    group_skew_end(A)

V_QB = [104, 116]
V_PV = [128, 134]
V_E = 40
def a_epilogue(A, prof, opts, est):
    EP, EN, PH = 224, 40, 140
    T = 24
    AK = 60
    for c in range(5):
        A(f"v_xor_b32 v{T}, {16*c}, v{V_ES16}")
        A(f"v_add_u32 v{AK+c}, v{V_EROW}, v{T}")
    A(f"v_lshrrev_b32 v{T+1}, 5, v{V_LANE}")
    A(f"v_add_u32 v{T}, 5, v{T+1}")
    A(f"v_lshlrev_b32 v{T}, 4, v{T}")
    A(f"v_xor_b32 v{T}, v{T}, v{V_ES16}")
    A(f"v_add_u32 v{AK+5}, v{V_EROW}, v{T}")
    A(f"v_xor_b32 v{T}, {16*7}, v{V_ES16}")
    A(f"v_add_u32 v{T}, v{V_EROW}, v{T}")
    A(f"v_lshl_add_u32 v{AK+6}, v{T+1}, 3, v{T}")
    A(f"v_and_b32 v{T}, 31, v{V_LANE}")
    A(f"v_lshlrev_b32 v{AK+7}, 4, v{T}")
    A(f"s_lshl_b32 s{S_T0}, s{S_RB}, 2")
    A(f"s_lshl_b32 s{S_T1}, s{S_WT}, 1")
    A(f"s_add_u32 s{S_T0}, s{S_T0}, s{S_T1}")
    A(f"s_lshl_b32 s{S_T0}, s{S_T0}, 5")
    A(f"s_lshl_b32 s{S_T1}, s{S_CB}, 2")
    A(f"s_add_u32 s{S_T0}, s{S_T0}, s{S_T1}")
    A(f"s_add_u32 s{S_T0}, s{S_T0}, s{S_WC}")
    A(f"s_mul_i32 s{S_T0}, s{S_T0}, 2560")
    A(f"s_add_u32 s{S_T4}, s{S_T0}, {WS_PQ}")
    A(f"s_add_u32 s{S_T3}, s{S_T4}, {32*2560}")
    A(f"s_mov_b32 s{S_T2}, {L2E}")
    for tau in range(2):
        a0, a1 = V_ACC + 32*tau, V_ACC + 32*tau + 16
        QB, PV = V_QB[tau], V_PV[tau]
        for j in range(8): A(f"v_cvt_pk_bf16_f32 v{QB+j}, v{a0+2*j}, v{a0+2*j+1}")
        for j in range(2): A(f"v_cvt_pk_bf16_f32 v{QB+8+j}, v{a1+2*j}, v{a1+2*j+1}")
        A(f"v_mov_b32 v{QB+10}, 0"); A(f"v_mov_b32 v{QB+11}, 0")
        for j in range(6): A(f"v_cvt_pk_bf16_f32 v{PV+j}, v{a1+4+2*j}, v{a1+5+2*j}")
        A("s_mov_b32 exec_lo, 0")
        A(f"v_mov_b32 v{PV+4}, 0x3f80")
        A(f"v_mov_b32 v{PV+5}, 0")
        A("s_mov_b32 exec_lo, -1")
        for o, P in ((0, a0), (1, a1)):
            for s_ in range(3):
                c = "0" if s_ == 0 else f"v[{P}:{P+15}]"
                A(f"v_mfma_f32_32x32x16_bf16 v[{P}:{P+15}], v[{V_WP+4*(3*o+s_)}:{V_WP+4*(3*o+s_)+3}], v[{QB+4*s_}:{QB+4*s_+3}], {c}")
        A(f"ds_write_b128 v{AK+5}, v[{PV}:{PV+3}] offset:{4096*tau}")
        A(f"ds_write_b64 v{AK+6}, v[{PV+4}:{PV+5}] offset:{4096*tau}")
    est(A, 1)
    for tau in range(2):
        a0, a1 = V_ACC + 32*tau, V_ACC + 32*tau + 16
        p = [a0+i for i in range(16)] + [a1+i for i in range(4)]
        if tau == 1: p_nop = 0
        MX, MN = T, T+1
        if tau == 0:
            pass
        else:
            pass
        A(f"v_max3_f32 v{MX}, v{p[0]}, v{p[1]}, v{p[2]}")
        A(f"v_min3_f32 v{MN}, v{p[0]}, v{p[1]}, v{p[2]}")
        for i in range(3, 19, 2):
            A(f"v_max3_f32 v{MX}, v{MX}, v{p[i]}, v{p[i+1]}")
            A(f"v_min3_f32 v{MN}, v{MN}, v{p[i]}, v{p[i+1]}")
        A(f"v_max_f32 v{MX}, v{MX}, v{p[19]}")
        A(f"v_min_f32 v{MN}, v{MN}, v{p[19]}")
        A(f"v_mul_f32 v{MX}, s{S_T2}, v{MX}")
        A(f"v_mul_f32 v{MN}, s{S_T2}, v{MN}")
        for i in range(20):
            A(f"v_fma_f32 v{EP+i}, v{p[i]}, s{S_T2}, -v{MX}")
            A(f"v_fma_f32 v{EN+i}, -v{p[i]}, s{S_T2}, v{MN}")
        for i in range(20):
            A(f"v_exp_f32 v{EP+i}, v{EP+i}")
            A(f"v_exp_f32 v{EN+i}, v{EN+i}")
        SP, SN = T+2, T+4
        A(f"v_pk_add_f32 v[{SP}:{SP+1}], v[{EP}:{EP+1}], v[{EP+2}:{EP+3}]")
        A(f"v_pk_add_f32 v[{SN}:{SN+1}], v[{EN}:{EN+1}], v[{EN+2}:{EN+3}]")
        for i in range(4, 20, 2):
            A(f"v_pk_add_f32 v[{SP}:{SP+1}], v[{SP}:{SP+1}], v[{EP+i}:{EP+i+1}]")
            A(f"v_pk_add_f32 v[{SN}:{SN+1}], v[{SN}:{SN+1}], v[{EN+i}:{EN+i+1}]")
        A(f"v_add_f32 v{SP}, v{SP}, v{SP+1}")
        A(f"v_add_f32 v{SN}, v{SN}, v{SN+1}")
        A(f"v_rcp_f32 v{SP}, v{SP}")
        A(f"v_rcp_f32 v{SN}, v{SN}")
        A("s_nop 0")
        for i in range(0, 20, 2):
            A(f"v_pk_mul_f32 v[{EP+i}:{EP+i+1}], v[{EP+i}:{EP+i+1}], v[{SP}:{SP+1}] op_sel_hi:[1,0]")
            A(f"v_pk_mul_f32 v[{EN+i}:{EN+i+1}], v[{EN+i}:{EN+i+1}], v[{SN}:{SN+1}] op_sel_hi:[1,0]")
        for i in range(10):
            A(f"v_cvt_pk_bf16_f32 v{PH+i}, v{EP+2*i}, v{EP+2*i+1}")
        for i in range(10):
            A(f"v_cvt_pk_bf16_f32 v{PH+10+i}, v{EN+2*i}, v{EN+2*i+1}")
        A("s_mov_b32 exec_hi, 0")
        for c in range(5):
            A(f"buffer_store_dwordx4 v[{PH+4*c}:{PH+4*c+3}], v{AK+7}, s[{SRD_WS}:{SRD_WS+3}], s{[S_T4,S_T3][tau]} offen offset:{512*c}")
        A("s_mov_b32 exec_hi, -1")
        A("s_mov_b32 exec_lo, 0")
        for c in range(5):
            A(f"ds_write_b128 v{AK+c}, v[{PH+4*c}:{PH+4*c+3}] offset:{4096*tau}")
        A("s_mov_b32 exec_lo, -1")
    est(A, 2)
    if not opts.get("noW3"):
        A("s_waitcnt vmcnt(10)")
        w3_relayout_g0(A)
    A("s_waitcnt lgkmcnt(0)")
    A("s_barrier")
    KA1, KB1 = T, T+1
    A(f"v_xor_b32 v{KA1}, 32, v{V_EKA}")
    A(f"v_add_u32 v{KA1}, 512, v{KA1}")
    A(f"v_xor_b32 v{KB1}, 32, v{V_EKB}")
    A(f"v_add_u32 v{KB1}, 512, v{KB1}")
    FR = 80
    P0 = 224
    for ks in range(8):
        r = FR + 8*ks
        A(f"ds_read_b64_tr_b16 v[{r}:{r+1}], v{V_EKA} offset:{2048*ks}")
        A(f"ds_read_b64_tr_b16 v[{r+2}:{r+3}], v{KA1} offset:{2048*ks}")
        A(f"ds_read_b64_tr_b16 v[{r+4}:{r+5}], v{V_EKB} offset:{2048*ks}")
        A(f"ds_read_b64_tr_b16 v[{r+6}:{r+7}], v{KB1} offset:{2048*ks}")
        if ks == 2:
            A(f"s_lshl_b32 s{S_T0}, s{S_RB}, 5")
            A(f"s_lshl_b32 s{S_T1}, s{S_CB}, 2")
            A(f"s_add_u32 s{S_T0}, s{S_T0}, s{S_T1}")
            A(f"s_add_u32 s{S_T0}, s{S_T0}, s{S_WC}")
            A(f"s_mul_i32 s{S_T0}, s{S_T0}, 5120")
            A(f"s_lshl_b32 s{S_T1}, s{S_WT}, 12")
            A(f"s_add_u32 s{S_T0}, s{S_T0}, s{S_T1}")
            A(f"s_add_u32 s{S_T0}, s{S_T0}, {WS_KV}")
    for ks in range(8):
        r = FR + 8*ks
        A(f"s_waitcnt lgkmcnt({min(15, 4*(7-ks))})")
        c = "0" if ks == 0 else f"v[{P0}:{P0+15}]"
        A(f"v_mfma_f32_32x32x16_bf16 v[{P0}:{P0+15}], v[{r}:{r+3}], v[{r+4}:{r+7}], {c}")
    A(f"v_lshlrev_b32 v{T+2}, 4, v{V_LANE}")
    A(f"v_and_b32 v{T+3}, 31, v{V_LANE}")
    A(f"v_cmp_gt_u32 vcc, 21, v{T+3}")
    A("s_nop 7")
    A("s_nop 1")
    A(f"s_and_saveexec_b64 s[{S_EX}:{S_EX+1}], vcc")
    A(f"buffer_store_dwordx4 v[{P0}:{P0+3}], v{T+2}, s[{SRD_WS}:{SRD_WS+3}], s{S_T0} offen")
    A(f"s_cmp_eq_u32 s{S_WT}, 0")
    l = A.newlabel("L_kvskip")
    A(f"s_cbranch_scc0 {l}")
    for g in range(1, 4):
        A(f"buffer_store_dwordx4 v[{P0+4*g}:{P0+4*g+3}], v{T+2}, s[{SRD_WS}:{SRD_WS+3}], s{S_T0} offen offset:{1024*g}")
    A.label(l)
    A(f"s_mov_b64 exec, s[{S_EX}:{S_EX+1}]")

def a_path(A, prof, opts):
    def mid1(A):
        srd(A, SRD_W, S_QKVP, 640*3840)
        offset_table(A, 10, 64*3840, 640*3840, 64*3840)
        srd(A, SRD_WS, S_WSP, WS_SIZE)
        x_read_addrs(A)
        T = 30
        A(f"v_lshrrev_b32 v{T}, 4, v{V_LANE}")
        A(f"v_and_b32 v27, 3, v{V_LANE}")
        A(f"v_lshl_add_u32 v{T}, v{T}, 2, v27")
        A(f"v_bfe_u32 v27, v{V_LANE}, 2, 2")
        A(f"s_lshl_b32 s{S_T0}, s{S_WV}, 2")
        A(f"v_add_u32 v27, s{S_T0}, v27")
        A(f"v_mul_u32_u24 v27, 3840, v27")
        A(f"s_mul_i32 s{S_T1}, s{S_CB}, 160")
        A(f"v_add_u32 v27, s{S_T1}, v27")
        A(f"v_cmp_gt_u32 vcc, 10, v{T}")
        A(f"v_mov_b32 v28, 1120")
        A(f"v_lshl_add_u32 v29, v{T}, 4, v27")
        A(f"v_cndmask_b32 v28, v28, 0, vcc")
        A(f"v_add_u32 v{V_WD}, v29, v28")
        A(f"v_min_u32 v24, 14, v{T}")
        A(f"v_cmp_eq_u32 vcc, 4, v{T}")
        A(f"v_mov_b32 v25, 3")
        A("s_nop 0")
        A(f"v_cndmask_b32 v24, v24, v25, vcc")
        A(f"v_cmp_gt_u32 vcc, 5, v{T}")
        A(f"v_mov_b32 v25, 2480")
        A(f"v_mov_b32 v26, 1376")
        A(f"v_cndmask_b32 v25, v25, v26, vcc")
        A(f"v_lshl_add_u32 v24, v24, 4, v27")
        A(f"v_add_u32 v{V_WD+1}, v24, v25")
        A(f"v_add_u32 v{V_WD+2}, {32*3840}, v{V_WD}")
        A(f"v_add_u32 v{V_WD+3}, {32*3840}, v{V_WD+1}")
        A(f"s_lshl_b32 s{S_LDSW}, s{S_WV}, 11")
        A(f"s_add_u32 s{S_LDSW}, s{S_LDSW}, {WBASE}")
        old = G.V_T
        G.V_T = 24
        G.a_tr_addr(A, 0, V_WB)
        G.a_tr_addr(A, 1, V_WB+2)
        G.V_T = old
        A(f"v_add_u32 v{V_WB+1}, {2*A_DSLOT}, v{V_WB}")
        A(f"v_add_u32 v{V_WB+3}, {2*A_DSLOT}, v{V_WB+2}")
    def mid2(A):
        a_addr_setup(A)
        for i in range(64): A(f"v_mov_b32 v{V_ACC+i}, 0")
        A(f"v_lshlrev_b32 v24, 4, v{V_LANE}")
        A(f"v_add_u32 v24, {A_ZERO}, v24")
        A(f"ds_write_b128 v24, v[{V_ACC}:{V_ACC+3}]")
    def after_x(A):
        for x in a_dma(0): A(x)
        srd(A, SRD_M, S_PHIP, 25600)
        A(f"v_lshlrev_b32 v24, 4, v{V_LANE}")
        A(f"s_mul_i32 s{S_T0}, s{S_CB}, 3200")
        A(f"s_lshl_b32 s{S_T1}, s{S_WC}, 10")
        A(f"s_add_u32 s{S_T0}, s{S_T0}, s{S_T1}")
        A(f"s_add_u32 m0, s{S_T1}, {A_PHI}")
        A("s_nop 0")
        A(f"buffer_load_dwordx4 v24, s[{SRD_M}:{SRD_M+3}], s{S_T0} offen lds")
        return 5
    x_phase(A, mid1, mid2, after_x)
    stamp(A, 1, prof)
    for g in range(2):
        for x in norm_valu(0, g): A(x)
        A(norm_write(0, g))
    for x in a_dma(1): A(x)
    for g in range(2):
        for x in norm_valu(1, g): A(x)
    A(f"s_waitcnt vmcnt(4) lgkmcnt(0)")
    stamp(A, 2, prof)
    if OPT.get("g1prio") == "all":
        l = A.newlabel("L_pr"); A(f"s_cmp_eq_u32 s{S_WT}, 0"); A(f"s_cbranch_scc1 {l}"); A("s_setprio 2"); A.label(l)
    a_loop2(A)
    if OPT.get("g1prio") == "epi":
        l = A.newlabel("L_pr"); A(f"s_cmp_eq_u32 s{S_WT}, 0"); A(f"s_cbranch_scc1 {l}"); A("s_setprio 2"); A.label(l)
    es = opts.get("estamp")
    stamp(A, 0 if es else 3, prof)
    a_epilogue(A, prof, opts, (lambda A_, i: stamp(A_, i, True)) if es else (lambda A_, i: None))
    if es: stamp(A, 3, True)
    stamp(A, 4, prof)
```

```python
class Asm:
    def __init__(self):
        self.L = []
        self.nlabel = 0
    def __call__(self, s):
        for line in s.split("\n"):
            line = line.strip()
            if line: self.L.append(line)
    def label(self, name): self.L.append(name + ":")
    def newlabel(self, p="L"):
        self.nlabel += 1
        return f"{p}_{self.nlabel}"
    def text(self): return "\n".join(self.L) + "\n"

def v(i, n=1):
    return f"v{i}" if n == 1 else f"v[{i}:{i+n-1}]"
def a(i, n=1):
    return f"a{i}" if n == 1 else f"a[{i}:{i+n-1}]"
def s(i, n=1):
    return f"s{i}" if n == 1 else f"s[{i}:{i+n-1}]"

def srd(A, dst, ptr, nbytes):
    A(f"s_mov_b32 s{dst}, s{ptr}")
    A(f"s_and_b32 s{dst+1}, s{ptr+1}, 0xffff")
    A(f"s_mov_b32 s{dst+2}, {nbytes}")
    A(f"s_mov_b32 s{dst+3}, 0x20000")

def interleave(A, mf, fill, lead=0):
    n = len(mf)
    k = 0
    for i, m in enumerate(mf):
        A(m)
        upto = (i + 1) * len(fill) // n if n else len(fill)
        while k < upto:
            f = fill[k]
            if isinstance(f, (list, tuple)):
                for x in f: A(x)
            else: A(f)
            k += 1
    while k < len(fill):
        f = fill[k]
        if isinstance(f, (list, tuple)):
            for x in f: A(x)
        else: A(f)
        k += 1

def kernel_header(A, name):
    A(f".globl {name}\n.p2align 8\n.type {name},@function\n{name}:")

def kernel_desc(name, vgpr, sgpr, accum):
    return (f'.p2align 6\n.amdhsa_kernel {name}\n  .amdhsa_next_free_vgpr {vgpr}\n  .amdhsa_next_free_sgpr {sgpr}\n'
            f'  .amdhsa_accum_offset {accum}\n  .amdhsa_group_segment_fixed_size 0\n  .amdhsa_kernarg_size 88\n'
            f'  .amdhsa_user_sgpr_count 2\n  .amdhsa_user_sgpr_kernarg_segment_ptr 1\n  .amdhsa_system_sgpr_workgroup_id_x 1\n'
            f'  .amdhsa_float_denorm_mode_32 3\n  .amdhsa_float_denorm_mode_16_64 3\n'
            f'.end_amdhsa_kernel\n')


def softmax_block(A, p, EP, EN, PH, T, vl2e):
    MX, MN, M2, N2 = T, T+1, T+2, T+3
    A(f"v_max3_f32 v{MX}, v{p[0]}, v{p[1]}, v{p[2]}")
    A(f"v_min3_f32 v{MN}, v{p[0]}, v{p[1]}, v{p[2]}")
    A(f"v_max3_f32 v{M2}, v{p[3]}, v{p[4]}, v{p[5]}")
    A(f"v_min3_f32 v{N2}, v{p[3]}, v{p[4]}, v{p[5]}")
    for i in range(6, 18, 4):
        A(f"v_max3_f32 v{MX}, v{MX}, v{p[i]}, v{p[i+1]}")
        A(f"v_min3_f32 v{MN}, v{MN}, v{p[i]}, v{p[i+1]}")
        A(f"v_max3_f32 v{M2}, v{M2}, v{p[i+2]}, v{p[i+3]}")
        A(f"v_min3_f32 v{N2}, v{N2}, v{p[i+2]}, v{p[i+3]}")
    A(f"v_max3_f32 v{MX}, v{MX}, v{p[18]}, v{p[19]}")
    A(f"v_min3_f32 v{MN}, v{MN}, v{p[18]}, v{p[19]}")
    A(f"v_max_f32 v{MX}, v{MX}, v{M2}")
    A(f"v_min_f32 v{MN}, v{MN}, v{N2}")
    A(f"v_mul_f32 v{MX}, v{vl2e}, v{MX}")
    A(f"v_mul_f32 v{MN}, v{vl2e}, v{MN}")
    for i in range(20):
        A(f"v_fma_f32 v{EP+i}, v{p[i]}, v{vl2e}, -v{MX}")
        A(f"v_fma_f32 v{EN+i}, -v{p[i]}, v{vl2e}, v{MN}")
    for i in range(20):
        A(f"v_exp_f32 v{EP+i}, v{EP+i}")
        A(f"v_exp_f32 v{EN+i}, v{EN+i}")
    SP, SN = T+2, T+4
    A(f"v_pk_add_f32 v[{SP}:{SP+1}], v[{EP}:{EP+1}], v[{EP+2}:{EP+3}]")
    A(f"v_pk_add_f32 v[{SN}:{SN+1}], v[{EN}:{EN+1}], v[{EN+2}:{EN+3}]")
    for i in range(4, 20, 2):
        A(f"v_pk_add_f32 v[{SP}:{SP+1}], v[{SP}:{SP+1}], v[{EP+i}:{EP+i+1}]")
        A(f"v_pk_add_f32 v[{SN}:{SN+1}], v[{SN}:{SN+1}], v[{EN+i}:{EN+i+1}]")
    A(f"v_add_f32 v{SP}, v{SP}, v{SP+1}")
    A(f"v_add_f32 v{SN}, v{SN}, v{SN+1}")
    A(f"v_rcp_f32 v{SP}, v{SP}")
    A(f"v_rcp_f32 v{SN}, v{SN}")
    A("s_nop 0")
    for i in range(0, 20, 2):
        A(f"v_pk_mul_f32 v[{EP+i}:{EP+i+1}], v[{EP+i}:{EP+i+1}], v[{SP}:{SP+1}] op_sel_hi:[1,0]")
        A(f"v_pk_mul_f32 v[{EN+i}:{EN+i+1}], v[{EN+i}:{EN+i+1}], v[{SN}:{SN+1}] op_sel_hi:[1,0]")
    for i in range(10):
        A(f"v_cvt_pk_bf16_f32 v{PH[i]}, v{EP+2*i}, v{EP+2*i+1}")
    for i in range(10):
        A(f"v_cvt_pk_bf16_f32 v{PH[10+i]}, v{EN+2*i}, v{EN+2*i+1}")
```

```python
from asmlib import *
import gen_k1 as G
from gen_k1 import (WS_H, WS_O, WS_PQ, WS_KV, WS_W3, WS_SIZE, WS_DBG, S_XP, S_QKVP, SRD_X, SRD_W, SRD_WS, SRD_M,
    S_PHIP, S_WOP, S_WGP, S_WUP, S_WDP, S_WSP, S_WV, S_RB, S_CB, S_ROT, S_TYPE, S_LDSW, S_T0, S_T1, S_MASK, S_ONES,
    S_T2, S_T3, S_WT, S_WC, S_T4, S_EX, V_LANE, V_T, V_N, V_X, V_ACC, V_R, V_B, XSLOT, WBASE, F_SLOT, F_UP, F_R, flat)

OPT = G.OPT
S_RBL, S_T5 = 41, 42
S_TAB = 64
S_ST = 84
LDS_K1 = 163840
A_R2 = 3
A_DSLOT = 32768
G.A_PHI = WBASE + A_R2*A_DSLOT
G.A_ZERO = G.A_PHI + 4096
G.A_W3ST = 65536
A_OP = [40, 56, 224, 240]
F_OP = [40, 60]
V_WD = 2
V_WB = 6
V_XR = 10
V_XW = 14
V_RR, V_BB = 16, 36
V_TCH, V_DUM = 22, 21
VR = [18, 19]; VB = [20, 23]
U = 24
PK = [32, 36]

def stamp(A, i, en):
    if en:
        if OPT.get("rt"): A(f"s_memrealtime s[{S_ST+2*i}:{S_ST+2*i+1}]")
        else: A(f"s_memtime s[{S_ST+2*i}:{S_ST+2*i+1}]")

def norm_valu(t, g):
    x = V_X + 8*t + 4*g
    L = []
    for r in range(4):
        L.append(f"v_lshlrev_b32 v{U+2*r}, 16, v{x+r}")
        L.append(f"v_and_b32 v{U+2*r+1}, s{S_MASK}, v{x+r}")
    for r in range(8):
        L.append(f"v_fma_f32 v{U+r}, v{U+r}, v{VR[g]}, v{VB[g]}")
    for r in range(4):
        L.append(f"v_cvt_pk_bf16_f32 v{PK[g]+r}, v{U+2*r}, v{U+2*r+1}")
    return L
def norm_write(t, g):
    return f"ds_write_b128 v{V_XW+g}, v[{PK[g]}:{PK[g]+3}] offset:{(t&1)*XSLOT}"

def xr(dst, t, t4):
    o = (t&1)*XSLOT
    return [f"ds_read_b128 v[{dst}:{dst+3}], v{V_XR+t4} offset:{o}", f"ds_read_b128 v[{dst+4}:{dst+7}], v{V_XR+t4} offset:{o+4096}"]

def f_dma(s):
    if s >= 20: return []
    L = []
    for i in range(3):
        L.append([f"s_add_u32 m0, s{S_LDSW}, {(s % F_R)*F_SLOT + i*1024}"])
        L.append([f"buffer_load_dwordx4 v{V_WD+i}, s[{SRD_W}:{SRD_W+3}], s{S_TAB+s} offen lds"])
    out = []
    for i in range(3):
        out += [L[2*i][0], "s_nop 0", L[2*i+1][0]]
    return out
def f_touch(s):
    if s >= 20: return []
    return [f"buffer_load_dword v{V_DUM}, v{V_TCH}, s[{SRD_W}:{SRD_W+3}], s{S_TAB+s} offen"]
def f_wreads(s, j, b):
    sl = s % F_R
    base = V_WB + (sl >> 1)
    o = (sl & 1)*F_SLOT
    return [f"ds_read_b64_tr_b16 v[{b+8+4*ft+2*e2}:{b+8+4*ft+2*e2+1}], v{base} offset:{o+j*6144+e2*1536+ft*512}" for ft in range(3) for e2 in range(2)]

TD = 6
def vm_ops_F(s):
    return (3 if 0 <= s+4 < 20 else 0) + (1 if (s+TD < 20 and not OPT.get("no_touch")) else 0)

def a_dma(S):
    if S >= 10: return []
    out = []
    for b in range(2):
        for i in range(2):
            out += [f"s_add_u32 m0, s{S_LDSW}, {(S % A_R2)*A_DSLOT + b*16384 + i*1024}", "s_nop 0",
                    f"buffer_load_dwordx4 v{V_WD+2*b+i}, s[{SRD_W}:{SRD_W+3}], s{S_TAB+S} offen lds"]
    return out
def a_touch(S):
    if S >= 10: return []
    return [f"buffer_load_dword v{V_DUM}, v{V_TCH}, s[{SRD_W}:{SRD_W+3}], s{S_TAB+S} offen"]
def a_wreads(S, j, b):
    sl = S % A_R2
    L = []
    for a_ in range(2):
        base = V_WB + 2*a_ + (1 if sl == 2 else 0)
        o = (sl & 1)*A_DSLOT if sl < 2 else 0
        for e2 in range(2):
            L.append(f"ds_read_b64_tr_b16 v[{b+8+4*a_+2*e2}:{b+8+4*a_+2*e2+1}], v{base} offset:{o+(j>>1)*16384+(j&1)*8192+e2*2048}")
    return L
ATD = 4
def vm_ops_A(S):
    return (4 if 0 <= S+2 < 10 else 0) + (1 if (S+ATD < 10 and not OPT.get("no_touch")) else 0)

def mfma_block(A, mf, fill):
    if OPT.get("prio"): A("s_setprio 1")
    if OPT.get("no_norm"): fill = []
    interleave(A, mf, fill)
    if OPT.get("prio"): A("s_setprio 0")

def group_skew_begin(A):
    l1 = A.newlabel("L_g0")
    A(f"s_cmp_eq_u32 s{S_WT}, 0")
    A(f"s_cbranch_scc1 {l1}")
    A("s_barrier")
    A.label(l1)
def group_skew_end(A):
    l2 = A.newlabel("L_g1")
    A(f"s_cmp_eq_u32 s{S_WT}, 0")
    A(f"s_cbranch_scc0 {l2}")
    A("s_barrier")
    A.label(l2)

def f_loop(A):
    group_skew_begin(A)
    for s in range(20):
        t, par = s >> 1, s & 1
        A("s_barrier")
        reads = []
        for j in range(2):
            reads += xr(F_OP[j], t, 2*par+j) + f_wreads(s, j, F_OP[j])
        writes = [norm_write(t+1, par)] if (t+1 < 10 and not OPT.get("no_norm")) else []
        dma = [] if OPT.get("no_dma") else f_dma(s+4)
        mode = OPT.get("fL", "rwd")
        if mode == "rwd": seq = reads + writes + dma
        elif mode == "drw": seq = dma + reads + writes
        else:
            grp = [dma[i:i+3] for i in range(0, len(dma), 3)]
            seq = []
            for i in range(0, len(reads), 6):
                if grp: seq += grp.pop(0)
                seq += reads[i:i+6]
            for g in grp: seq += g
            seq += writes
        for x in seq: A(x)
        if s+TD < 20 and not OPT.get("no_touch"):
            for x in f_touch(s+TD): A(x)
        if s+1 < 20:
            n = (1 if (s-3+TD < 20 and not OPT.get("no_touch")) else 0) + sum(vm_ops_F(q) for q in range(s-2, s+1))
            A(f"s_waitcnt vmcnt({n}) lgkmcnt(0)")
        else:
            A("s_waitcnt lgkmcnt(0)")
        A("s_barrier")
        tn, gn = (t+1, 1) if par == 0 else (t+2, 0)
        fill = norm_valu(tn, gn) if tn < 10 else []
        mf = []
        for j in range(2):
            b = F_OP[j]
            for ft in range(3):
                for tau in range(2):
                    c = V_ACC + 16*(3*tau+ft)
                    mf.append(f"v_mfma_f32_32x32x16_bf16 v[{c}:{c+15}], v[{b+8+4*ft}:{b+11+4*ft}], v[{b+4*tau}:{b+3+4*tau}], v[{c}:{c+15}]")
        mfma_block(A, mf, fill)
    group_skew_end(A)

def a_loop(A):
    group_skew_begin(A)
    for S in range(10):
        A("s_barrier")
        for j in range(4):
            for x in xr(A_OP[j], S, j) + a_wreads(S, j, A_OP[j]): A(x)
        if S+1 < 10 and not OPT.get("no_norm"):
            A(norm_write(S+1, 0)); A(norm_write(S+1, 1))
        if not OPT.get("no_dma"):
            for x in a_dma(S+2): A(x)
        if S+ATD < 10 and not OPT.get("no_touch"):
            for x in a_touch(S+ATD): A(x)
        if S+1 < 10:
            n = (1 if (S-1+ATD < 10 and not OPT.get("no_touch")) else 0) + vm_ops_A(S)
            A(f"s_waitcnt vmcnt({n}) lgkmcnt(0)")
        else:
            A("s_waitcnt lgkmcnt(0)")
        A("s_barrier")
        fill = (norm_valu(S+2, 0) + norm_valu(S+2, 1)) if S+2 < 10 else []
        mf = []
        for j in range(4):
            b = A_OP[j]
            for a_ in range(2):
                for tau in range(2):
                    c = V_ACC + 16*(2*tau+a_)
                    mf.append(f"v_mfma_f32_32x32x16_bf16 v[{c}:{c+15}], v[{b+8+4*a_}:{b+11+4*a_}], v[{b+4*tau}:{b+3+4*tau}], v[{c}:{c+15}]")
        mfma_block(A, mf, fill)
    group_skew_end(A)

def prologue_head(A, prof):
    A("s_cmp_ge_u32 s2, 256")
    A("s_cbranch_scc0 L_k1_go")
    A("s_endpgm")
    A.label("L_k1_go")
    stamp(A, 0, prof)
    A(f"s_load_dwordx4 s[{S_XP}:{S_XP+3}], s[0:1], 0")
    A(f"s_load_dwordx4 s[{S_PHIP}:{S_PHIP+3}], s[0:1], 16")
    A(f"s_load_dwordx4 s[{S_WGP}:{S_WGP+3}], s[0:1], 40")
    A(f"s_load_dwordx2 s[{S_WDP}:{S_WDP+1}], s[0:1], 56")
    A(f"s_load_dwordx2 s[{S_WSP}:{S_WSP+1}], s[0:1], 80")
    T = V_T
    A(f"v_and_b32 v{V_LANE}, 63, v0")
    A(f"v_lshrrev_b32 v{T}, 6, v0")
    A(f"s_and_b32 s{S_T0}, s2, 7")
    A(f"v_readfirstlane_b32 s{S_WV}, v{T}")
    A(f"s_lshr_b32 s{S_T1}, s2, 3")
    A(f"s_lshr_b32 s{S_TYPE}, s{S_T1}, 4")
    if OPT.get("map", "tok") == "tok":
        A(f"s_and_b32 s{S_RBL}, s{S_T1}, 1")
        A(f"s_lshl_b32 s{S_RB}, s{S_T0}, 1")
        A(f"s_add_u32 s{S_RB}, s{S_RB}, s{S_RBL}")
        A(f"s_bfe_u32 s{S_CB}, s{S_T1}, 0x30001")
        A(f"s_lshr_b32 s{S_T4}, s{S_T1}, 1")
        A(f"s_mul_i32 s{S_T4}, s{S_T4}, ROTMUL")
        A(f"s_lshr_b32 s{S_ROT}, s{S_T4}, 3")
    else:
        A(f"s_and_b32 s{S_RBL}, s{S_T1}, 3")
        A(f"s_bfe_u32 s{S_T3}, s{S_T1}, 0x20002")
        A(f"s_and_b32 s{S_RB}, s{S_T0}, 3")
        A(f"s_lshl_b32 s{S_RB}, s{S_RB}, 2")
        A(f"s_add_u32 s{S_RB}, s{S_RB}, s{S_RBL}")
        A(f"s_lshr_b32 s{S_CB}, s{S_T0}, 2")
        A(f"s_lshl_b32 s{S_CB}, s{S_CB}, 2")
        A(f"s_add_u32 s{S_CB}, s{S_CB}, s{S_T3}")
        A(f"s_lshr_b32 s{S_T4}, s{S_T1}, 2")
        A(f"s_mul_i32 s{S_T4}, s{S_T4}, ROTMUL")
        A(f"s_lshr_b32 s{S_ROT}, s{S_T4}, 2")
    A(f"s_mov_b32 s{S_MASK}, 0xffff0000")
    A(f"s_mov_b32 s{S_ONES}, 0x3f803f80")
    A(f"s_lshr_b32 s{S_WT}, s{S_WV}, 2")
    A(f"s_and_b32 s{S_WC}, s{S_WV}, 3")
    A(f"v_lshrrev_b32 v{T}, 3, v{V_LANE}")
    A(f"s_lshl_b32 s{S_T0}, s{S_WV}, 4")
    A(f"v_add_u32 v{T}, s{S_T0}, v{T}")
    A(f"v_mul_u32_u24 v24, 1280, v{T}")
    A(f"v_and_b32 v25, 7, v{V_LANE}")
    A(f"v_lshl_add_u32 v38, v25, 4, v24")
    A(f"v_add_u32 v39, 10240, v38")
    A(f"v_bfe_u32 v24, v{T}, 1, 3")
    A(f"v_xor_b32 v24, v24, v25")
    A(f"v_lshlrev_b32 v24, 4, v24")
    A(f"v_lshl_add_u32 v{V_XW}, v{T}, 7, v24")
    A(f"v_xor_b32 v{V_XW+1}, 64, v{V_XW}")
    A(f"v_add_u32 v{V_XW+1}, 1024, v{V_XW+1}")
    A("s_waitcnt lgkmcnt(0)")
    srd(A, SRD_X, S_XP, 2048*1280)

def x_loads(A, t0, t1):
    if t0 == 0:
        A(f"s_mul_i32 s{S_T3}, s{S_RB}, 163840")
        A(f"s_lshl_b32 s{S_T4}, s{S_ROT}, 7")
    for t in range(t0, t1):
        A(f"s_add_u32 s{S_T2}, s{S_T3}, s{S_T4}")
        for g in range(2):
            r = V_X + 8*t + 4*g
            A(f"buffer_load_dwordx4 v[{r}:{r+3}], v{38+g}, s[{SRD_X}:{SRD_X+3}], s{S_T2} offen")
        A(f"s_add_u32 s{S_T4}, s{S_T4}, 128")
        A(f"s_cmp_eq_u32 s{S_T4}, 1280")
        A(f"s_cselect_b32 s{S_T4}, 0, s{S_T4}")

def offset_table(A, n, step, lim, rotmul):
    A(f"s_mul_i32 s{S_TAB}, s{S_ROT}, {rotmul}")
    for i in range(1, n):
        A(f"s_add_u32 s{S_TAB+i}, s{S_TAB+i-1}, {step}")
        A(f"s_cmp_eq_u32 s{S_TAB+i}, {lim}")
        A(f"s_cselect_b32 s{S_TAB+i}, 0, s{S_TAB+i}")

def x_read_addrs(A):
    T = V_T
    A(f"v_and_b32 v{T}, 31, v{V_LANE}")
    A(f"v_lshrrev_b32 v24, 5, v{V_LANE}")
    A(f"v_bfe_u32 v25, v{T}, 1, 3")
    A(f"v_xor_b32 v25, v25, v24")
    A(f"v_lshlrev_b32 v25, 4, v25")
    A(f"s_lshl_b32 s{S_T0}, s{S_WT}, 13")
    A(f"v_lshl_add_u32 v25, v{T}, 7, v25")
    A(f"v_add_u32 v{V_XR}, s{S_T0}, v25")
    for t4 in range(1, 4):
        A(f"v_xor_b32 v{V_XR+t4}, {32*t4}, v{V_XR}")

def stats(A, n_after):
    S0 = U
    for i in range(8): A(f"v_mov_b32 v{S0+i}, 0")
    for t in range(10):
        A(f"s_waitcnt vmcnt({n_after + 2*(9-t)})")
        for g in range(2):
            for r in range(4):
                x = V_X + 8*t + 4*g + r
                A(f"v_dot2_f32_bf16 v{S0+4*g+(r&1)}, v{x}, s{S_ONES}, v{S0+4*g+(r&1)}")
                A(f"v_dot2_f32_bf16 v{S0+4*g+2+(r&1)}, v{x}, v{x}, v{S0+4*g+2+(r&1)}")
    for g in range(2):
        A(f"v_add_f32 v{S0+4*g}, v{S0+4*g}, v{S0+4*g+1}")
        A(f"v_add_f32 v{S0+4*g+2}, v{S0+4*g+2}, v{S0+4*g+3}")
    regs = [S0, S0+2, S0+4, S0+6]
    for mode in ("quad_perm:[1,0,3,2]", "quad_perm:[2,3,0,1]", "row_half_mirror"):
        A("s_nop 1")
        for r in regs:
            A(f"v_add_f32_dpp v{r}, v{r}, v{r} {mode} row_mask:0xf bank_mask:0xf")
    A(f"s_mov_b32 s{S_T0}, 0x3acccccd")
    A(f"s_mov_b32 s{S_T1}, 0x3727c5ac")
    for g in range(2):
        m, q = S0+4*g, S0+4*g+2
        A(f"v_mul_f32 v{m}, s{S_T0}, v{m}")
        A(f"v_mul_f32 v{q}, s{S_T0}, v{q}")
        A(f"v_fma_f32 v{q}, -v{m}, v{m}, v{q}")
        A(f"v_max_f32 v{q}, 0, v{q}")
        A(f"v_add_f32 v{q}, s{S_T1}, v{q}")
        A(f"v_rsq_f32 v{VR[g]}, v{q}")
        A("s_nop 0")
        A(f"v_mul_f32 v{VB[g]}, v{m}, v{VR[g]}")
        A(f"v_sub_f32 v{VB[g]}, 0, v{VB[g]}")

def f_path(A, prof):
    T = V_T
    A(f"s_cmp_lt_u32 s{S_WV}, 4")
    A(f"s_cselect_b32 s{S_T0}, s{S_WGP}, s{S_WUP}")
    A(f"s_cselect_b32 s{S_T1}, s{S_WGP+1}, s{S_WUP+1}")
    A(f"s_mov_b32 s{SRD_W}, s{S_T0}")
    A(f"s_and_b32 s{SRD_W+1}, s{S_T1}, 0xffff")
    A(f"s_mov_b32 s{SRD_W+2}, {640*3072}")
    A(f"s_mov_b32 s{SRD_W+3}, 0x20000")
    A(f"s_lshl_b32 s{S_T0}, s{S_RBL}, 3")
    A(f"s_lshl_b32 s{S_T1}, s{S_WC}, 1")
    A(f"s_add_u32 s{S_T0}, s{S_T0}, s{S_T1}")
    A(f"s_mul_i32 s{S_T0}, s{S_T0}, 3072")
    A(f"s_mul_i32 s{S_T1}, s{S_CB}, 384")
    A(f"s_add_u32 s{S_T0}, s{S_T0}, s{S_T1}")
    A(f"v_and_b32 v{T}, 3, v{V_LANE}")
    A(f"v_min_u32 v{T}, 2, v{T}")
    A(f"v_lshlrev_b32 v{T}, 7, v{T}")
    A(f"v_bfe_u32 v24, v{V_LANE}, 2, 1")
    A(f"v_mul_u32_u24 v24, 3072, v24")
    A(f"v_add_u32 v{T}, v{T}, v24")
    A(f"v_add_u32 v{V_TCH}, s{S_T0}, v{T}")
    A(f"s_mul_i32 s{S_TAB}, s{S_ROT}, {64*3072}")
    A(f"s_add_u32 s{S_TAB+1}, s{S_TAB}, {32*3072}")
    nt0 = OPT.get("ntouch0", 2)
    for s in range(nt0):
        if s >= 2:
            A(f"s_add_u32 s{S_TAB+s}, s{S_TAB+s-1}, {32*3072}\ns_cmp_eq_u32 s{S_TAB+s}, {640*3072}\ns_cselect_b32 s{S_TAB+s}, 0, s{S_TAB+s}")
        for x in f_touch(s): A(x)
    x_loads(A, 0, 10)
    offset_table(A, 20, 32*3072, 640*3072, 64*3072)
    srd(A, SRD_WS, S_WSP, WS_SIZE)
    for s in range(nt0, TD-4+0):
        for x in f_touch(s): A(x)
    x_read_addrs(A)
    A(f"v_lshrrev_b32 v{T}, 4, v{V_LANE}")
    A(f"v_bfe_u32 v26, v{V_LANE}, 2, 2")
    A(f"v_and_b32 v27, 3, v{V_LANE}")
    A(f"s_mul_i32 s{S_T0}, s{S_WC}, 12")
    A(f"s_mul_i32 s{S_T1}, s{S_CB}, 384")
    for i in range(3):
        A(f"v_add_u32 v28, s{S_T0}, v{T}")
        if i: A(f"v_add_u32 v28, {4*i}, v28")
        A(f"v_mul_u32_u24 v24, 43, v28")
        A(f"v_lshrrev_b32 v24, 8, v24")
        A(f"v_mul_u32_u24 v25, 6, v24")
        A(f"v_sub_u32 v25, v28, v25")
        A(f"v_lshl_add_u32 v24, v24, 2, v26")
        A(f"v_mul_u32_u24 v24, 3072, v24")
        A(f"v_lshl_add_u32 v24, v25, 6, v24")
        A(f"v_lshl_add_u32 v24, v27, 4, v24")
        A(f"v_add_u32 v{V_WD+i}, s{S_T1}, v24")
    A(f"s_mul_i32 s{S_T0}, s{S_WT}, {F_UP}")
    A(f"s_mul_i32 s{S_T1}, s{S_WC}, 3072")
    A(f"s_add_u32 s{S_LDSW}, s{S_T0}, s{S_T1}")
    A(f"s_add_u32 s{S_LDSW}, s{S_LDSW}, {WBASE}")
    A(f"v_bfe_u32 v{T}, v{V_LANE}, 4, 1")
    A(f"v_mul_u32_u24 v{T}, {F_UP}, v{T}")
    A(f"v_lshrrev_b32 v24, 5, v{V_LANE}")
    A(f"v_mul_u32_u24 v24, 3072, v24")
    A(f"v_add_u32 v{T}, v{T}, v24")
    A(f"v_bfe_u32 v24, v{V_LANE}, 2, 2")
    A(f"v_lshl_add_u32 v{T}, v24, 6, v{T}")
    A(f"v_and_b32 v24, 3, v{V_LANE}")
    A(f"v_lshl_add_u32 v{T}, v24, 3, v{T}")
    A(f"s_lshr_b32 s{S_T0}, s{S_WC}, 1")
    A(f"s_lshl_b32 s{S_T0}, s{S_T0}, 8")
    A(f"s_and_b32 s{S_T1}, s{S_WC}, 1")
    A(f"s_lshl_b32 s{S_T1}, s{S_T1}, 5")
    A(f"s_add_u32 s{S_T0}, s{S_T0}, s{S_T1}")
    A(f"s_add_u32 s{S_T0}, s{S_T0}, {WBASE}")
    A(f"v_add_u32 v{V_WB}, s{S_T0}, v{T}")
    A(f"v_add_u32 v{V_WB+1}, {2*F_SLOT}, v{V_WB}")
    A(f"v_add_u32 v{V_WB+2}, {4*F_SLOT}, v{V_WB}")
    for i in range(96): A(f"v_mov_b32 v{V_ACC+i}, 0")
    nafter = 0
    for q in (-4, -3):
        for x in f_dma(q+4): A(x)
        if q+TD < 20 and not OPT.get("no_touch"):
            for x in f_touch(q+TD): A(x)
        nafter += vm_ops_F(q)
    nafter += max(0, (TD-4) - nt0)
    stamp(A, 1, prof)
    stats(A, nafter)
    for g in range(2):
        for x in norm_valu(0, g): A(x)
        A(norm_write(0, g))
    for x in norm_valu(1, 0): A(x)
    for q in (-2, -1):
        for x in f_dma(q+4): A(x)
        if q+TD < 20 and not OPT.get("no_touch"):
            for x in f_touch(q+TD): A(x)
    n = (1 if not OPT.get("no_touch") else 0) + sum(vm_ops_F(q) for q in (-3, -2, -1))
    A(f"s_waitcnt vmcnt({n}) lgkmcnt(0)")
    stamp(A, 2, prof)
    f_loop(A)
    stamp(A, 3, prof)
    f_epilogue(A)
    stamp(A, 4, prof)

def f_epilogue(A):
    T = V_T
    A(f"v_bfe_u32 v{T}, v{V_LANE}, 4, 1")
    A(f"v_lshlrev_b32 v{T}, 10, v{T}")
    A(f"v_lshrrev_b32 v40, 5, v{V_LANE}")
    A(f"v_lshl_add_u32 v{T}, v40, 8, v{T}")
    A(f"v_and_b32 v40, 15, v{V_LANE}")
    A(f"v_lshl_add_u32 v{T}, v40, 4, v{T}")
    A(f"s_lshl_b32 s{S_T0}, s{S_RB}, 1")
    A(f"s_add_u32 s{S_T0}, s{S_T0}, s{S_WT}")
    A(f"s_mul_i32 s{S_T0}, s{S_T0}, 48")
    A(f"s_mul_i32 s{S_T1}, s{S_CB}, 6")
    A(f"s_add_u32 s{S_T0}, s{S_T0}, s{S_T1}")
    A(f"s_lshr_b32 s{S_T1}, s{S_WC}, 1")
    A(f"s_add_u32 s{S_T0}, s{S_T0}, s{S_T1}")
    A(f"s_lshl_b32 s{S_T0}, s{S_T0}, 12")
    A(f"s_and_b32 s{S_T1}, s{S_WC}, 1")
    A(f"s_lshl_b32 s{S_T1}, s{S_T1}, 9")
    A(f"s_add_u32 s{S_T0}, s{S_T0}, s{S_T1}")
    if WS_H: A(f"s_add_u32 s{S_T0}, s{S_T0}, {WS_H}")
    A("s_nop 7")
    A("s_nop 3")
    st = OPT.get("stflags", "")
    for tau in range(2):
        for ft in range(3):
            c = V_ACC + 16*(3*tau+ft)
            P = V_N + 4*((3*tau+ft) & 3)
            for r in range(8):
                A(f"v_mul_f32 v{c+r}, v{c+r}, v{c+8+r}")
            for r in range(4):
                A(f"v_cvt_pk_bf16_f32 v{P+r}, v{c+2*r}, v{c+2*r+1}")
            A(f"s_add_u32 s{S_T1}, s{S_T0}, {tau*2048 + ft*8192}")
            A(f"buffer_store_dwordx4 v[{P}:{P+3}], v{T}, s[{SRD_WS}:{SRD_WS+3}], s{S_T1} offen {st}")

def a_path(A, prof, opts):
    T = V_T
    srd(A, SRD_W, S_QKVP, 640*3840)
    A(f"s_lshl_b32 s{S_T0}, s{S_RBL}, 4")
    A(f"s_lshl_b32 s{S_T1}, s{S_WV}, 1")
    A(f"s_add_u32 s{S_T0}, s{S_T0}, s{S_T1}")
    A(f"s_mul_i32 s{S_T0}, s{S_T0}, 3840")
    A(f"s_mul_i32 s{S_T1}, s{S_CB}, 160")
    A(f"s_and_b32 s{S_T1}, s{S_T1}, 0xffffff80")
    A(f"s_add_u32 s{S_T0}, s{S_T0}, s{S_T1}")
    A(f"v_and_b32 v{T}, 7, v{V_LANE}")
    A(f"v_min_u32 v{T}, 5, v{T}")
    A(f"v_lshrrev_b32 v24, 1, v{T}")
    A(f"v_mul_u32_u24 v24, 1280, v24")
    A(f"v_and_b32 v{T}, 1, v{T}")
    A(f"v_lshl_add_u32 v{T}, v{T}, 7, v24")
    A(f"v_bfe_u32 v24, v{V_LANE}, 3, 1")
    A(f"v_mul_u32_u24 v24, 3840, v24")
    A(f"v_add_u32 v{T}, v{T}, v24")
    A(f"v_add_u32 v{V_TCH}, s{S_T0}, v{T}")
    A(f"s_mul_i32 s{S_TAB}, s{S_ROT}, {64*3840}")
    for x in a_touch(0): A(x)
    x_loads(A, 0, 10)
    offset_table(A, 10, 64*3840, 640*3840, 64*3840)
    srd(A, SRD_WS, S_WSP, WS_SIZE)
    for x in a_touch(1): A(x)
    x_read_addrs(A)
    srd(A, SRD_M, S_PHIP, 25600)
    A(f"v_lshlrev_b32 v{T}, 4, v{V_LANE}")
    A(f"s_mul_i32 s{S_T0}, s{S_CB}, 3200")
    A(f"s_lshl_b32 s{S_T1}, s{S_WC}, 10")
    A(f"s_add_u32 s{S_T0}, s{S_T0}, s{S_T1}")
    A(f"s_add_u32 m0, s{S_T1}, {G.A_PHI}")
    A("s_nop 0")
    A(f"buffer_load_dwordx4 v{T}, s[{SRD_M}:{SRD_M+3}], s{S_T0} offen lds")
    A(f"v_lshrrev_b32 v{T}, 4, v{V_LANE}")
    A(f"v_and_b32 v27, 3, v{V_LANE}")
    A(f"v_lshl_add_u32 v{T}, v{T}, 2, v27")
    A(f"v_bfe_u32 v27, v{V_LANE}, 2, 2")
    A(f"s_lshl_b32 s{S_T0}, s{S_WV}, 2")
    A(f"v_add_u32 v27, s{S_T0}, v27")
    A(f"v_mul_u32_u24 v27, 3840, v27")
    A(f"s_mul_i32 s{S_T1}, s{S_CB}, 160")
    A(f"v_add_u32 v27, s{S_T1}, v27")
    A(f"v_cmp_gt_u32 vcc, 10, v{T}")
    A(f"v_mov_b32 v28, 1120")
    A(f"v_lshl_add_u32 v29, v{T}, 4, v27")
    A(f"v_cndmask_b32 v28, v28, 0, vcc")
    A(f"v_add_u32 v{V_WD}, v29, v28")
    A(f"v_min_u32 v24, 14, v{T}")
    A(f"v_cmp_eq_u32 vcc, 4, v{T}")
    A(f"v_mov_b32 v25, 3")
    A("s_nop 0")
    A(f"v_cndmask_b32 v24, v24, v25, vcc")
    A(f"v_cmp_gt_u32 vcc, 5, v{T}")
    A(f"v_mov_b32 v25, 2480")
    A(f"v_mov_b32 v26, 1376")
    A(f"v_cndmask_b32 v25, v25, v26, vcc")
    A(f"v_lshl_add_u32 v24, v24, 4, v27")
    A(f"v_add_u32 v{V_WD+1}, v24, v25")
    A(f"v_add_u32 v{V_WD+2}, {32*3840}, v{V_WD}")
    A(f"v_add_u32 v{V_WD+3}, {32*3840}, v{V_WD+1}")
    A(f"s_lshl_b32 s{S_LDSW}, s{S_WV}, 11")
    A(f"s_add_u32 s{S_LDSW}, s{S_LDSW}, {WBASE}")
    old = G.V_T
    G.V_T = 24
    G.a_tr_addr(A, 0, V_WB)
    G.a_tr_addr(A, 1, V_WB+2)
    G.V_T = old
    A(f"v_add_u32 v{V_WB+1}, {2*A_DSLOT}, v{V_WB}")
    A(f"v_add_u32 v{V_WB+3}, {2*A_DSLOT}, v{V_WB+2}")
    for i in range(64): A(f"v_mov_b32 v{V_ACC+i}, 0")
    A(f"v_lshlrev_b32 v{T}, 4, v{V_LANE}")
    A(f"v_add_u32 v{T}, {G.A_ZERO}, v{T}")
    A(f"ds_write_b128 v{T}, v[{V_ACC}:{V_ACC+3}]")
    nafter = 2
    q = -2
    for x in a_dma(0): A(x)
    if not OPT.get("no_touch"):
        for x in a_touch(q+ATD): A(x)
    nafter += vm_ops_A(q)
    stamp(A, 1, prof)
    stats(A, nafter)
    for g in range(2):
        for x in norm_valu(0, g): A(x)
        A(norm_write(0, g))
    for g in range(2):
        for x in norm_valu(1, g): A(x)
    q = -1
    for x in a_dma(1): A(x)
    if not OPT.get("no_touch"):
        for x in a_touch(q+ATD): A(x)
    n = (1 if not OPT.get("no_touch") else 0) + vm_ops_A(-1)
    A(f"s_waitcnt vmcnt({n}) lgkmcnt(0)")
    stamp(A, 2, prof)
    a_loop(A)
    stamp(A, 0 if opts.get("estamp") else 3, prof)
    A("s_waitcnt vmcnt(0)")
    A("s_barrier")
    if not opts.get("noW3"):
        G.w3_stage_loads(A)
    if opts.get("estamp"):
        opts["est"] = lambda A_, i: stamp(A_, i, True)
    G.a_epilogue(A, prof, opts)
    if opts.get("estamp"): stamp(A, 3, True)
    if not opts.get("noW3"):
        A("s_waitcnt vmcnt(0)")
        A("s_barrier")
        G.w3_relayout(A)
    stamp(A, 4, prof)

def write_stamps(A, n):
    A("s_waitcnt vmcnt(0) lgkmcnt(0)")
    A(f"s_and_b32 s{S_T1}, s{S_WV}, 3")
    A(f"s_cmp_eq_u32 s{S_T1}, 0")
    l = A.newlabel("L_st")
    A(f"s_cbranch_scc0 {l}")
    A(f"s_lshl_b32 s{S_T0}, s2, 6")
    A(f"s_lshl_b32 s{S_T1}, s{S_WT}, 5")
    A(f"s_add_u32 s{S_T0}, s{S_T0}, s{S_T1}")
    A(f"s_add_u32 s{S_T0}, s{S_T0}, {WS_DBG}")
    A(f"v_mov_b32 v{V_T}, 0")
    A(f"v_cmp_eq_u32 vcc, 0, v{V_LANE}")
    A(f"s_and_saveexec_b64 s[{S_EX}:{S_EX+1}], vcc")
    for i in range(n):
        A(f"v_mov_b32 v{V_N}, s{S_ST+2*i}")
        A(f"buffer_store_dword v{V_N}, v{V_T}, s[{SRD_WS}:{SRD_WS+3}], s{S_T0} offen offset:{4*i}")
        A("s_nop 1")
    A("s_waitcnt vmcnt(0)")
    A.label(l)
```

```python
from asmlib import *
import gen_k1u as Uu
from gen_k1u import *
import gen_k1 as G
from gen_k1 import WS_FLAG

L2E = 0x3fb8aa3b
A_PHI, A_ZERO, A_W3ST = G.A_PHI, G.A_ZERO, 65536
A_WBASE = WBASE
V_EWP0, V_EWP1, V_EROW, V_ES16, V_EKA, V_EKB = 72, 73, 74, 75, 76, 77
TT = 24

def x_load_t(A, t):
    A(f"s_add_u32 s{S_T2}, s{S_T3}, s{S_T4}")
    for g in range(2):
        r = V_X + 8*t + 4*g
        A(f"buffer_load_dwordx4 v[{r}:{r+3}], v{38+g}, s[{SRD_X}:{SRD_X+3}], s{S_T2} offen")
    A(f"s_add_u32 s{S_T4}, s{S_T4}, 128")
    A(f"s_cmp_eq_u32 s{S_T4}, 1280")
    A(f"s_cselect_b32 s{S_T4}, 0, s{S_T4}")

S0 = 28
def dot_t(A, t):
    for g in range(2):
        for r in range(4):
            x = V_X + 8*t + 4*g + r
            A(f"v_dot2_f32_bf16 v{S0+4*g+(r&1)}, v{x}, s{S_ONES}, v{S0+4*g+(r&1)}")
            A(f"v_dot2_f32_bf16 v{S0+4*g+2+(r&1)}, v{x}, v{x}, v{S0+4*g+2+(r&1)}")

def stats_finish(A):
    for g in range(2):
        A(f"v_add_f32 v{S0+4*g}, v{S0+4*g}, v{S0+4*g+1}")
        A(f"v_add_f32 v{S0+4*g+2}, v{S0+4*g+2}, v{S0+4*g+3}")
    regs = [S0, S0+2, S0+4, S0+6]
    for mode in ("quad_perm:[1,0,3,2]", "quad_perm:[2,3,0,1]", "row_half_mirror"):
        A("s_nop 1")
        for r in regs:
            A(f"v_add_f32_dpp v{r}, v{r}, v{r} {mode} row_mask:0xf bank_mask:0xf")
    A(f"s_mov_b32 s{S_T0}, 0x3acccccd")
    A(f"s_mov_b32 s{S_T1}, 0x3727c5ac")
    for g in range(2):
        m, q = S0+4*g, S0+4*g+2
        A(f"v_mul_f32 v{m}, s{S_T0}, v{m}")
        A(f"v_mul_f32 v{q}, s{S_T0}, v{q}")
    for g in range(2):
        m, q = S0+4*g, S0+4*g+2
        A(f"v_fma_f32 v{q}, -v{m}, v{m}, v{q}")
    for g in range(2):
        A(f"v_max_f32 v{S0+4*g+2}, 0, v{S0+4*g+2}")
    for g in range(2):
        A(f"v_add_f32 v{S0+4*g+2}, s{S_T1}, v{S0+4*g+2}")
    for g in range(2):
        A(f"v_rsq_f32 v{VR[g]}, v{S0+4*g+2}")
    A("s_nop 0")
    for g in range(2):
        A(f"v_mul_f32 v{VB[g]}, v{S0+4*g}, v{VR[g]}")
    for g in range(2):
        A(f"v_sub_f32 v{VB[g]}, 0, v{VB[g]}")

def x_phase(A, mid1, mid2, after_x):
    A(f"s_mul_i32 s{S_T3}, s{S_RB}, 163840")
    A(f"s_lshl_b32 s{S_T4}, s{S_ROT}, 7")
    XS = OPT.get("xs", 0)
    if XS:
        for t in range(0, XS): x_load_t(A, t)
        mid1(A)
        mid2(A)
        for i in range(8): A(f"v_mov_b32 v{S0+i}, 0")
        A("s_waitcnt vmcnt(0)")
        lead = OPT.get("xlead", 4)
        nxt = XS
        for t in range(nxt, min(10, nxt + lead)): x_load_t(A, t)
        nxt = min(10, nxt + lead)
        done = 0
        while done < XS:
            dot_t(A, done); done += 1
            if nxt < 10: x_load_t(A, nxt); nxt += 1
        while nxt < 10:
            A(f"s_waitcnt vmcnt({2*(nxt - done - 1)})")
            dot_t(A, done); done += 1
            x_load_t(A, nxt); nxt += 1
        n = after_x(A)
        for t in range(done, 10):
            A(f"s_waitcnt vmcnt({n + 2*(9-t)})")
            dot_t(A, t)
        stats_finish(A)
        return
    for t in range(0, 4): x_load_t(A, t)
    mid1(A)
    for t in range(4, 7): x_load_t(A, t)
    mid2(A)
    for i in range(8): A(f"v_mov_b32 v{S0+i}, 0")
    A(f"s_waitcnt vmcnt({2*(7-1)})")
    dot_t(A, 0)
    x_load_t(A, 7)
    A(f"s_waitcnt vmcnt({2*(8-2)})")
    dot_t(A, 1)
    x_load_t(A, 8)
    A(f"s_waitcnt vmcnt({2*(9-3)})")
    dot_t(A, 2)
    x_load_t(A, 9)
    n = after_x(A)
    for t in range(3, 10):
        A(f"s_waitcnt vmcnt({n + 2*(9-t)})")
        dot_t(A, t)
    stats_finish(A)

def f_path(A, prof):
    T = TT
    def mid1(A):
        A(f"s_cmp_lt_u32 s{S_WV}, 4")
        A(f"s_cselect_b32 s{S_T0}, s{S_WGP}, s{S_WUP}")
        A(f"s_cselect_b32 s{S_T1}, s{S_WGP+1}, s{S_WUP+1}")
        A(f"s_mov_b32 s{SRD_W}, s{S_T0}")
        A(f"s_and_b32 s{SRD_W+1}, s{S_T1}, 0xffff")
        A(f"s_mov_b32 s{SRD_W+2}, {640*3072}")
        A(f"s_mov_b32 s{SRD_W+3}, 0x20000")
        offset_table(A, 20, 32*3072, 640*3072, 64*3072)
        srd(A, SRD_WS, S_WSP, WS_SIZE)
        x_read_addrs(A)
        A(f"v_lshrrev_b32 v29, 4, v{V_LANE}")
        A(f"v_bfe_u32 v26, v{V_LANE}, 2, 2")
        A(f"v_and_b32 v27, 3, v{V_LANE}")
        A(f"s_mul_i32 s{S_T0}, s{S_WC}, 12")
        A(f"s_mul_i32 s{S_T1}, s{S_CB}, 384")
        for i in range(3):
            A(f"v_add_u32 v28, s{S_T0}, v29")
            if i: A(f"v_add_u32 v28, {4*i}, v28")
            A(f"v_mul_u32_u24 v24, 43, v28")
            A(f"v_lshrrev_b32 v24, 8, v24")
            A(f"v_mul_u32_u24 v25, 6, v24")
            A(f"v_sub_u32 v25, v28, v25")
            A(f"v_lshl_add_u32 v24, v24, 2, v26")
            A(f"v_mul_u32_u24 v24, 3072, v24")
            A(f"v_lshl_add_u32 v24, v25, 6, v24")
            A(f"v_lshl_add_u32 v24, v27, 4, v24")
            A(f"v_add_u32 v{V_WD+i}, s{S_T1}, v24")
        A(f"s_mul_i32 s{S_T0}, s{S_WT}, {F_UP}")
        A(f"s_mul_i32 s{S_T1}, s{S_WC}, 3072")
        A(f"s_add_u32 s{S_LDSW}, s{S_T0}, s{S_T1}")
        A(f"s_add_u32 s{S_LDSW}, s{S_LDSW}, {WBASE}")
        A(f"v_bfe_u32 v25, v{V_LANE}, 4, 1")
        A(f"v_mul_u32_u24 v25, {F_UP}, v25")
        A(f"v_lshrrev_b32 v24, 5, v{V_LANE}")
        A(f"v_mul_u32_u24 v24, 3072, v24")
        A(f"v_add_u32 v25, v25, v24")
        A(f"v_bfe_u32 v24, v{V_LANE}, 2, 2")
        A(f"v_lshl_add_u32 v25, v24, 6, v25")
        A(f"v_and_b32 v24, 3, v{V_LANE}")
        A(f"v_lshl_add_u32 v25, v24, 3, v25")
        A(f"s_lshr_b32 s{S_T0}, s{S_WC}, 1")
        A(f"s_lshl_b32 s{S_T0}, s{S_T0}, 8")
        A(f"s_and_b32 s{S_T1}, s{S_WC}, 1")
        A(f"s_lshl_b32 s{S_T1}, s{S_T1}, 5")
        A(f"s_add_u32 s{S_T0}, s{S_T0}, s{S_T1}")
        A(f"s_add_u32 s{S_T0}, s{S_T0}, {WBASE}")
        A(f"v_add_u32 v{V_WB}, s{S_T0}, v25")
        A(f"v_add_u32 v{V_WB+1}, {2*F_SLOT}, v{V_WB}")
        A(f"v_add_u32 v{V_WB+2}, {4*F_SLOT}, v{V_WB}")
    def mid2(A):
        for i in range(96): A(f"v_mov_b32 v{V_ACC+i}, 0")
    def after_x(A):
        for x in f_dma(0): A(x)
        return 3
    x_phase(A, mid1, mid2, after_x)
    stamp(A, 1, prof)
    for g in range(2):
        for x in norm_valu(0, g): A(x)
        A(norm_write(0, g))
    for q in (1, 2, 3):
        for x in f_dma(q): A(x)
    for x in norm_valu(1, 0): A(x)
    A(f"s_waitcnt vmcnt(9) lgkmcnt(0)")
    stamp(A, 2, prof)
    if OPT.get("g1prio") == "all":
        l = A.newlabel("L_pr"); A(f"s_cmp_eq_u32 s{S_WT}, 0"); A(f"s_cbranch_scc1 {l}"); A("s_setprio 2"); A.label(l)
    f_loop(A)
    stamp(A, 3, prof)
    f_epilogue(A)
    lz = A.newlabel("L_zf")
    A(f"s_or_b32 s{S_T0}, s2, s{S_WV}")
    A(f"s_cmp_eq_u32 s{S_T0}, 0")
    A(f"s_cbranch_scc0 {lz}")
    A(f"v_mov_b32 v40, 0\nv_mov_b32 v41, 0\nv_mov_b32 v42, 0\nv_mov_b32 v43, 0")
    A(f"v_lshlrev_b32 v44, 4, v{V_LANE}")
    A(f"s_mov_b32 s{S_T1}, {WS_FLAG}")
    A(f"buffer_store_dwordx4 v[40:43], v44, s[{SRD_WS}:{SRD_WS+3}], s{S_T1} offen")
    A.label(lz)
    stamp(A, 4, prof)

def a_addr_setup(A):
    T = 24
    A(f"v_and_b32 v{T}, 3, v{V_LANE}")
    A(f"v_bfe_u32 v{T+1}, v{V_LANE}, 4, 1")
    A(f"v_lshrrev_b32 v{T+2}, 1, v{T}")
    A(f"v_lshl_add_u32 v{T+2}, v{T+1}, 1, v{T+2}")
    A(f"v_and_b32 v{T+3}, 1, v{T}")
    A(f"v_lshrrev_b32 v{T+4}, 5, v{V_LANE}")
    A(f"v_bfe_u32 v{T+5}, v{V_LANE}, 2, 2")
    A(f"v_mul_u32_u24 v{T+5}, 40, v{T+5}")
    A(f"v_lshl_add_u32 v{T+5}, v{T+2}, 3, v{T+5}")
    A(f"s_mul_i32 s{S_T0}, s{S_WC}, 800")
    A(f"s_add_u32 s{S_T0}, s{S_T0}, {A_PHI}")
    A(f"v_add_u32 v{T+5}, s{S_T0}, v{T+5}")
    A(f"v_mov_b32 v{T+6}, {A_ZERO}")
    A(f"v_cmp_eq_u32 vcc, v{T+3}, v{T+4}")
    A("s_nop 1")
    A(f"v_cndmask_b32 v{V_EWP0}, v{T+6}, v{T+5}, vcc")
    A(f"v_cmp_eq_u32 vcc, 0, v{T+2}")
    A("s_nop 1")
    A(f"v_cndmask_b32 v{V_EWP1}, v{T+6}, v{V_EWP0}, vcc")
    A(f"v_and_b32 v{T}, 31, v{V_LANE}")
    A(f"v_bfe_u32 v{T+1}, v{T}, 1, 1")
    A(f"v_lshlrev_b32 v{T+1}, 2, v{T+1}")
    A(f"v_bfe_u32 v{T+2}, v{T}, 2, 1")
    A(f"v_lshl_or_b32 v{T+1}, v{T+2}, 1, v{T+1}")
    A(f"v_and_b32 v{T+2}, 1, v{T}")
    A(f"v_or_b32 v{T+1}, v{T+1}, v{T+2}")
    A(f"v_lshlrev_b32 v{V_ES16}, 4, v{T+1}")
    A(f"s_lshl_b32 s{S_T0}, s{S_WC}, 14")
    A(f"s_lshl_b32 s{S_T1}, s{S_WT}, 13")
    A(f"s_add_u32 s{S_T0}, s{S_T0}, s{S_T1}")
    A(f"v_lshlrev_b32 v{T+2}, 7, v{T}")
    A(f"v_add_u32 v{V_EROW}, s{S_T0}, v{T+2}")
    A(f"v_bfe_u32 v{T}, v{V_LANE}, 2, 2")
    A(f"v_lshrrev_b32 v{T+1}, 1, v{T}")
    A(f"v_lshlrev_b32 v{T+1}, 2, v{T+1}")
    A(f"v_and_b32 v{T+2}, 1, v{T}")
    A(f"v_or_b32 v{T+1}, v{T+1}, v{T+2}")
    A(f"v_lshrrev_b32 v{T+2}, 5, v{V_LANE}")
    A(f"v_lshl_add_u32 v{T+2}, v{T+2}, 3, v{T}")
    A(f"v_lshlrev_b32 v{T+2}, 7, v{T+2}")
    A(f"s_lshl_b32 s{S_T0}, s{S_WC}, 14")
    A(f"v_add_u32 v{T+2}, s{S_T0}, v{T+2}")
    A(f"v_bfe_u32 v{T+3}, v{V_LANE}, 4, 1")
    A(f"v_and_b32 v{T+4}, 3, v{V_LANE}")
    A(f"v_lshl_add_u32 v{T+3}, v{T+3}, 2, v{T+4}")
    A(f"v_and_b32 v{T+4}, 4, v{T+3}")
    A(f"v_and_b32 v{T+5}, 1, v{T+3}")
    A(f"v_lshl_add_u32 v{T+4}, v{T+5}, 1, v{T+4}")
    A(f"v_bfe_u32 v{T+5}, v{T+3}, 1, 1")
    A(f"v_add_u32 v{T+4}, v{T+4}, v{T+5}")
    A(f"v_and_b32 v{T+5}, 1, v{T+3}")
    A(f"v_add_u32 v{T+5}, 8, v{T+5}")
    A(f"s_cmp_eq_u32 s{S_WT}, 0")
    A(f"s_cselect_b64 vcc, -1, 0")
    A(f"v_cndmask_b32 v{T+4}, v{T+5}, v{T+4}, vcc")
    A(f"v_lshrrev_b32 v{T+5}, 1, v{T+4}")
    A(f"v_and_b32 v{T+4}, 1, v{T+4}")
    A(f"v_xor_b32 v{T+6}, v{T+5}, v{T+1}")
    A(f"v_lshlrev_b32 v{T+6}, 4, v{T+6}")
    A(f"v_lshl_add_u32 v{T+6}, v{T+4}, 3, v{T+6}")
    A(f"v_add_u32 v{V_EKA}, v{T+2}, v{T+6}")
    A(f"s_mov_b32 s{S_T1}, 0xfffdceba")
    A(f"v_lshlrev_b32 v{T+4}, 2, v{T+3}")
    A(f"v_lshrrev_b32 v{T+4}, v{T+4}, s{S_T1}")
    A(f"v_and_b32 v{T+4}, 15, v{T+4}")
    A(f"v_lshrrev_b32 v{T+5}, 1, v{T+4}")
    A(f"v_and_b32 v{T+4}, 1, v{T+4}")
    A(f"v_xor_b32 v{T+6}, v{T+5}, v{T+1}")
    A(f"v_lshlrev_b32 v{T+6}, 4, v{T+6}")
    A(f"v_lshl_add_u32 v{T+6}, v{T+4}, 3, v{T+6}")
    A(f"v_add_u32 v{V_EKB}, v{T+2}, v{T+6}")

V_WP = 80
W3R = 104

NKAP = 72
W3WAVE = 13312
def w3_params(A):
    A(f"s_lshl_b32 s{S_T0}, s{S_CB}, 4")
    A(f"s_add_u32 s{S_T5}, s{S_T0}, s{S_RB}")
    A(f"s_cmp_lt_u32 s{S_T5}, 48")
    A(f"s_cselect_b32 s{S_T0}, s{S_WDP}, s{S_WOP}")
    A(f"s_cselect_b32 s{S_T1}, s{S_WDP+1}, s{S_WOP+1}")
    A(f"s_mov_b32 s{S_T2}, {640*1280}")
    A(f"s_cselect_b32 s{S_T2}, {1536*1280}, s{S_T2}")
    A(f"s_mov_b32 s{SRD_M}, s{S_T0}")
    A(f"s_and_b32 s{SRD_M+1}, s{S_T1}, 0xffff")
    A(f"s_mov_b32 s{SRD_M+2}, s{S_T2}")
    A(f"s_mov_b32 s{SRD_M+3}, 0x20000")
    A(f"s_sub_u32 s{S_T0}, s{S_T5}, 48")
    A(f"s_lshl_b32 s{S_T0}, s{S_T0}, 2")
    A(f"s_mul_i32 s{S_T0}, s{S_T0}, 43")
    A(f"s_lshr_b32 s{S_T2}, s{S_T0}, 7")
    A(f"s_mul_i32 s{S_T0}, s{S_T2}, 20")
    A(f"s_lshl_b32 s{S_T1}, s{S_T5}, 5")
    A(f"s_cmp_lt_u32 s{S_T5}, 48")
    A(f"s_cselect_b32 s{S_T0}, s{S_T1}, s{S_T0}")
    A(f"s_mul_i32 s{S_T3}, s{S_T0}, 1280")

def w3_voffs():
    L = []
    for i in range(5):
        L += [f"v_add_u32 v{W3R+5}, {64*i}, v{V_LANE}",
              f"v_mul_u32_u24 v{W3R+6}, 3277, v{W3R+5}",
              f"v_lshrrev_b32 v{W3R+6}, 16, v{W3R+6}",
              f"v_mul_u32_u24 v{W3R+7}, 20, v{W3R+6}",
              f"v_sub_u32 v{W3R+7}, v{W3R+5}, v{W3R+7}",
              f"v_mul_u32_u24 v{W3R+6}, 1280, v{W3R+6}",
              f"v_lshl_add_u32 v{W3R+i}, v{W3R+7}, 4, v{W3R+6}"]
    return L

def w3_loads_g0(A):
    l = A.newlabel("L_w3l")
    A(f"s_cmp_eq_u32 s{S_WT}, 0")
    A(f"s_cbranch_scc0 {l}")
    w3_params(A)
    A(f"s_cmp_ge_u32 s{S_T5}, {NKAP}")
    A(f"s_cselect_b32 s{S_T3}, 0x7f000000, s{S_T3}")
    A(f"s_mul_i32 s{S_T1}, s{S_WC}, 320")
    A(f"s_add_u32 s{S_T0}, s{S_T3}, s{S_T1}")
    A(f"s_mul_i32 s{S_T1}, s{S_WC}, {W3WAVE}")
    A(f"s_add_u32 s{S_T1}, s{S_T1}, {A_W3ST}")
    for i in range(13):
        A(f"s_add_u32 m0, s{S_T1}, {1024*i}")
        A(f"s_add_u32 s{S_T2}, s{S_T0}, {(i//5)*16*1280}")
        A(f"buffer_load_dwordx4 v{W3R+(i%5)}, s[{SRD_M}:{SRD_M+3}], s{S_T2} offen lds")
    A.label(l)

def w3_relayout_g0(A):
    l = A.newlabel("L_w3r")
    A(f"s_cmp_eq_u32 s{S_WT}, 0")
    A(f"s_cbranch_scc0 {l}")
    A(f"s_lshl_b32 s{S_T0}, s{S_CB}, 4")
    A(f"s_add_u32 s{S_T5}, s{S_T0}, s{S_RB}")
    A(f"s_cmp_ge_u32 s{S_T5}, {NKAP}")
    A(f"s_cbranch_scc1 {l}")
    T = 24
    A(f"v_lshrrev_b32 v{T}, 4, v{V_LANE}")
    A(f"v_bfe_u32 v{T+1}, v{V_LANE}, 2, 2")
    A(f"v_lshrrev_b32 v{T+2}, 1, v{T}")
    A(f"v_lshlrev_b32 v{T+2}, 4, v{T+2}")
    A(f"v_and_b32 v{T+3}, 1, v{T}")
    A(f"v_lshl_add_u32 v{T+2}, v{T+3}, 2, v{T+2}")
    A(f"v_add_u32 v{T+3}, 8, v{T+2}")
    A(f"s_sub_u32 s{S_T0}, s{S_T5}, 48")
    A(f"s_lshl_b32 s{S_T0}, s{S_T0}, 2")
    A(f"s_mul_i32 s{S_T1}, s{S_T0}, 43")
    A(f"s_lshr_b32 s{S_T1}, s{S_T1}, 7")
    A(f"v_add_u32 v{T+4}, s{S_T0}, v{T}")
    A(f"v_mul_u32_u24 v{T+5}, 43, v{T+4}")
    A(f"v_lshrrev_b32 v{T+5}, 7, v{T+5}")
    A(f"v_mul_u32_u24 v{T+6}, 3, v{T+5}")
    A(f"v_sub_u32 v{T+4}, v{T+4}, v{T+6}")
    A(f"v_subrev_u32 v{T+5}, s{S_T1}, v{T+5}")
    A(f"v_mul_u32_u24 v{T+5}, 20, v{T+5}")
    A(f"v_lshlrev_b32 v{T+6}, 2, v{T+4}")
    A(f"v_cmp_eq_u32 vcc, 2, v{T+4}")
    A(f"v_mov_b32 v{T+7}, 16")
    A("s_nop 0")
    A(f"v_cndmask_b32 v{T+6}, v{T+6}, v{T+7}, vcc")
    A(f"v_add_u32 v{T+6}, v{T+5}, v{T+6}")
    A(f"v_add_u32 v{T+7}, 8, v{T+6}")
    A(f"s_mov_b64 s[{S_EX}:{S_EX+1}], vcc")
    A(f"s_cmp_lt_u32 s{S_T5}, 48")
    A(f"s_cselect_b64 vcc, -1, 0")
    A(f"s_cselect_b64 s[{S_EX}:{S_EX+1}], 0, s[{S_EX}:{S_EX+1}]")
    A(f"v_cndmask_b32 v{T+2}, v{T+6}, v{T+2}, vcc")
    A(f"v_cndmask_b32 v{T+3}, v{T+7}, v{T+3}, vcc")
    A(f"v_and_b32 v{T+4}, 3, v{V_LANE}")
    A(f"v_lshlrev_b32 v{T+4}, 3, v{T+4}")
    A(f"s_mul_i32 s{S_T0}, s{S_WC}, {W3WAVE}")
    A(f"s_add_u32 s{S_T0}, s{S_T0}, {A_W3ST}")
    for k in (2, 3):
        A(f"v_add_u32 v{T+k}, v{T+k}, v{T+1}")
        A(f"v_mul_u32_u24 v{T+k}, 320, v{T+k}")
        A(f"v_add_u32 v{T+k}, v{T+k}, v{T+4}")
        A(f"v_add_u32 v{T+k}, s{S_T0}, v{T+k}")
    A(f"v_mov_b32 v{T+5}, {A_ZERO}")
    A("s_nop 0")
    A(f"v_cndmask_b32 v{T+3}, v{T+3}, v{T+5}, s[{S_EX}:{S_EX+1}]")
    R = 80
    for f in range(10):
        r = R + 4*f
        A(f"ds_read_b64_tr_b16 v[{r}:{r+1}], v{T+2} offset:{32*f}")
        A(f"ds_read_b64_tr_b16 v[{r+2}:{r+3}], v{T+3} offset:{32*f}")
    A(f"s_mul_i32 s{S_T0}, s{S_WC}, {2*NKAP}")
    A(f"s_add_u32 s{S_T0}, s{S_T0}, s{S_T5}")
    A(f"s_mul_i32 s{S_T0}, s{S_T0}, 5120")
    A(f"s_add_u32 s{S_T0}, s{S_T0}, {WS_W3}")
    A(f"v_lshlrev_b32 v{T}, 4, v{V_LANE}")
    for f in range(10):
        r = R + 4*f
        if f in (0, 5): A(f"s_waitcnt lgkmcnt({10 if f == 0 else 0})")
        A(f"s_add_u32 s{S_T1}, s{S_T0}, {(f//5)*NKAP*5120 + (f%5)*1024}")
        A(f"buffer_store_dwordx4 v[{r}:{r+3}], v{T}, s[{SRD_WS}:{SRD_WS+3}], s{S_T1} offen")
    A.label(l)

def wp_reads():
    L = []
    for o in range(2):
        for s_ in range(3):
            r = V_WP + 4*(3*o+s_)
            L.append(f"ds_read_b64_tr_b16 v[{r}:{r+1}], v{[V_EWP0,V_EWP1][o]} offset:{320*s_+32*o}")
            if s_ < 2:
                L.append(f"ds_read_b64_tr_b16 v[{r+2}:{r+3}], v{[V_EWP0,V_EWP1][o]} offset:{320*s_+160+32*o}")
    return L

def a_loop2(A):
    group_skew_begin(A)
    for S in range(10):
        A("s_barrier")
        reads = []
        for j in range(4):
            reads += xr(A_OP[j], S, j) + a_wreads(S, j, A_OP[j])
        writes = []
        if S+1 < 10 and not OPT.get("no_norm"):
            writes = [norm_write(S+1, 0), norm_write(S+1, 1)]
        dma = [] if OPT.get("no_dma") else a_dma(S+2)
        grp = [dma[i:i+3] for i in range(0, len(dma), 3)]
        mode = OPT.get("aL", "rwd")
        if mode == "rwd":
            seq = reads + writes + dma
        elif mode == "wrd":
            seq = writes + reads + dma
        elif mode == "drw":
            seq = dma + reads + writes
        else:
            seq = []
            per = 6
            for i in range(0, len(reads), per):
                if grp: seq += grp.pop(0)
                seq += reads[i:i+per]
            for g in grp: seq += g
            seq += writes
        for x in seq: A(x)
        TDA = OPT.get("atouch", 0)
        if TDA and S+TDA < 10:
            A(f"buffer_load_dword v{V_DUM}, v{V_TCH}, s[{SRD_W}:{SRD_W+3}], s{S_TAB+S+TDA} offen")
        if S == 9:
            for x in wp_reads(): A(x)
            w3_loads_g0(A)
        if S+1 < 10:
            n = 4 if S+2 < 10 else 0
            if TDA:
                n += (1 if S+TDA < 10 else 0) + (1 if (S >= 1 and S-1+TDA < 10) else 0)
            A(f"s_waitcnt vmcnt({n}) lgkmcnt(0)")
        else:
            A("s_waitcnt lgkmcnt(0)")
        A("s_barrier")
        fill = (norm_valu(S+2, 0) + norm_valu(S+2, 1)) if S+2 < 10 else []
        if S == 8:
            fill = w3_voffs()
        if S == 9:
            fill = [f"v_mov_b32 v{V_WP+10}, 0", f"v_mov_b32 v{V_WP+11}, 0", f"v_mov_b32 v{V_WP+22}, 0", f"v_mov_b32 v{V_WP+23}, 0"]
        mf = []
        for j in range(4):
            b = A_OP[j]
            for a_ in range(2):
                for tau in range(2):
                    c = V_ACC + 16*(2*tau+a_)
                    mf.append(f"v_mfma_f32_32x32x16_bf16 v[{c}:{c+15}], v[{b+8+4*a_}:{b+11+4*a_}], v[{b+4*tau}:{b+3+4*tau}], v[{c}:{c+15}]")
        mfma_block(A, mf, fill)
    group_skew_end(A)

V_QB = [104, 116]
V_PV = [128, 134]
V_E = 40
def a_epilogue(A, prof, opts, est):
    EP, EN, PH = 224, 40, 140
    T = 24
    AK = 60
    for c in range(5):
        A(f"v_xor_b32 v{T}, {16*c}, v{V_ES16}")
        A(f"v_add_u32 v{AK+c}, v{V_EROW}, v{T}")
    A(f"v_lshrrev_b32 v{T+1}, 5, v{V_LANE}")
    A(f"v_add_u32 v{T}, 5, v{T+1}")
    A(f"v_lshlrev_b32 v{T}, 4, v{T}")
    A(f"v_xor_b32 v{T}, v{T}, v{V_ES16}")
    A(f"v_add_u32 v{AK+5}, v{V_EROW}, v{T}")
    A(f"v_xor_b32 v{T}, {16*7}, v{V_ES16}")
    A(f"v_add_u32 v{T}, v{V_EROW}, v{T}")
    A(f"v_lshl_add_u32 v{AK+6}, v{T+1}, 3, v{T}")
    A(f"v_lshlrev_b32 v{AK+7}, 4, v{V_LANE}")
    A(f"v_lshlrev_b32 v{AK+9}, 3, v{V_LANE}")
    A(f"v_lshlrev_b32 v{T}, 12, v{T+1}")
    for c in range(5): A(f"v_add_u32 v{AK+c}, v{AK+c}, v{T}")
    A(f"s_lshl_b32 s{S_T0}, s{S_RB}, 1")
    A(f"s_add_u32 s{S_T0}, s{S_T0}, s{S_WT}")
    A(f"s_lshl_b32 s{S_T0}, s{S_T0}, 5")
    A(f"s_lshl_b32 s{S_T1}, s{S_CB}, 2")
    A(f"s_add_u32 s{S_T0}, s{S_T0}, s{S_T1}")
    A(f"s_add_u32 s{S_T0}, s{S_T0}, s{S_WC}")
    A(f"s_mul_i32 s{S_T0}, s{S_T0}, 2560")
    A(f"s_add_u32 s{S_T4}, s{S_T0}, {WS_PQ}")
    A(f"v_mov_b32 v68, {L2E}")
    for tau in range(2):
        a0, a1 = V_ACC + 32*tau, V_ACC + 32*tau + 16
        QB, PV = V_QB[tau], V_PV[tau]
        for j in range(8): A(f"v_cvt_pk_bf16_f32 v{QB+j}, v{a0+2*j}, v{a0+2*j+1}")
        for j in range(2): A(f"v_cvt_pk_bf16_f32 v{QB+8+j}, v{a1+2*j}, v{a1+2*j+1}")
        A(f"v_mov_b32 v{QB+10}, 0"); A(f"v_mov_b32 v{QB+11}, 0")
        for j in range(6): A(f"v_cvt_pk_bf16_f32 v{PV+j}, v{a1+4+2*j}, v{a1+5+2*j}")
        A("s_mov_b32 exec_lo, 0")
        A(f"v_mov_b32 v{PV+4}, 0x3f80")
        A(f"v_mov_b32 v{PV+5}, 0")
        A("s_mov_b32 exec_lo, -1")
        for o, P in ((0, a0), (1, a1)):
            for s_ in range(3):
                c = "0" if s_ == 0 else f"v[{P}:{P+15}]"
                A(f"v_mfma_f32_32x32x16_bf16 v[{P}:{P+15}], v[{V_WP+4*(3*o+s_)}:{V_WP+4*(3*o+s_)+3}], v[{QB+4*s_}:{QB+4*s_+3}], {c}")
        A(f"ds_write_b128 v{AK+5}, v[{PV}:{PV+3}] offset:{4096*tau}")
        A(f"ds_write_b64 v{AK+6}, v[{PV+4}:{PV+5}] offset:{4096*tau}")
    est(A, 1)
    p0 = [V_ACC+i for i in range(16)] + [V_ACC+16+i for i in range(4)]
    p1 = [V_ACC+32+i for i in range(16)] + [V_ACC+48+i for i in range(4)]
    A("s_nop 7")
    A("s_nop 3")
    for i in range(20): A(f"v_permlane32_swap_b32 v{p0[i]}, v{p1[i]}")
    PQP = 104
    A("s_nop 1")
    for i in range(10): A(f"v_cvt_pk_bf16_f32 v{PQP+i}, v{p0[2*i]}, v{p0[2*i+1]}")
    A(f"buffer_store_dwordx4 v[{PQP}:{PQP+3}], v{AK+7}, s[{SRD_WS}:{SRD_WS+3}], s{S_T4} offen")
    A(f"buffer_store_dwordx4 v[{PQP+4}:{PQP+7}], v{AK+7}, s[{SRD_WS}:{SRD_WS+3}], s{S_T4} offen offset:1024")
    A(f"buffer_store_dwordx2 v[{PQP+8}:{PQP+9}], v{AK+9}, s[{SRD_WS}:{SRD_WS+3}], s{S_T4} offen offset:2048")
    softmax_block(A, p1, EP, EN, [PH+i for i in range(20)], T, 68)
    for c in range(5):
        A(f"ds_write_b128 v{AK+c}, v[{PH+4*c}:{PH+4*c+3}]")
    est(A, 2)
    if not opts.get("noW3"):
        A("s_waitcnt vmcnt(3)")
        w3_relayout_g0(A)
    A("s_waitcnt lgkmcnt(0)")
    A("s_barrier")
    KA1, KB1 = T, T+1
    A(f"v_xor_b32 v{KA1}, 32, v{V_EKA}")
    A(f"v_add_u32 v{KA1}, 512, v{KA1}")
    A(f"v_xor_b32 v{KB1}, 32, v{V_EKB}")
    A(f"v_add_u32 v{KB1}, 512, v{KB1}")
    FR = 80
    P0 = 224
    for ks in range(8):
        r = FR + 8*ks
        A(f"ds_read_b64_tr_b16 v[{r}:{r+1}], v{V_EKA} offset:{2048*ks}")
        A(f"ds_read_b64_tr_b16 v[{r+2}:{r+3}], v{KA1} offset:{2048*ks}")
        A(f"ds_read_b64_tr_b16 v[{r+4}:{r+5}], v{V_EKB} offset:{2048*ks}")
        A(f"ds_read_b64_tr_b16 v[{r+6}:{r+7}], v{KB1} offset:{2048*ks}")
        if ks == 2:
            A(f"s_lshl_b32 s{S_T0}, s{S_RB}, 5")
            A(f"s_lshl_b32 s{S_T1}, s{S_CB}, 2")
            A(f"s_add_u32 s{S_T0}, s{S_T0}, s{S_T1}")
            A(f"s_add_u32 s{S_T0}, s{S_T0}, s{S_WC}")
            A(f"s_mul_i32 s{S_T0}, s{S_T0}, 5120")
            A(f"s_lshl_b32 s{S_T1}, s{S_WT}, 12")
            A(f"s_add_u32 s{S_T0}, s{S_T0}, s{S_T1}")
            A(f"s_add_u32 s{S_T0}, s{S_T0}, {WS_KV}")
    for ks in range(8):
        r = FR + 8*ks
        A(f"s_waitcnt lgkmcnt({min(15, 4*(7-ks))})")
        c = "0" if ks == 0 else f"v[{P0}:{P0+15}]"
        A(f"v_mfma_f32_32x32x16_bf16 v[{P0}:{P0+15}], v[{r}:{r+3}], v[{r+4}:{r+7}], {c}")
    A(f"v_lshlrev_b32 v{T+2}, 4, v{V_LANE}")
    A(f"v_and_b32 v{T+3}, 31, v{V_LANE}")
    A(f"v_cmp_gt_u32 vcc, 21, v{T+3}")
    A("s_nop 7")
    A("s_nop 1")
    A(f"s_and_saveexec_b64 s[{S_EX}:{S_EX+1}], vcc")
    A(f"buffer_store_dwordx4 v[{P0}:{P0+3}], v{T+2}, s[{SRD_WS}:{SRD_WS+3}], s{S_T0} offen")
    A(f"s_cmp_eq_u32 s{S_WT}, 0")
    l = A.newlabel("L_kvskip")
    A(f"s_cbranch_scc0 {l}")
    for g in range(1, 4):
        A(f"buffer_store_dwordx4 v[{P0+4*g}:{P0+4*g+3}], v{T+2}, s[{SRD_WS}:{SRD_WS+3}], s{S_T0} offen offset:{1024*g}")
    A.label(l)
    A(f"s_mov_b64 exec, s[{S_EX}:{S_EX+1}]")

def a_path(A, prof, opts):
    def mid1(A):
        srd(A, SRD_W, S_QKVP, 640*3840)
        offset_table(A, 10, 64*3840, 640*3840, 64*3840)
        srd(A, SRD_WS, S_WSP, WS_SIZE)
        x_read_addrs(A)
        T = 30
        A(f"v_lshrrev_b32 v{T}, 4, v{V_LANE}")
        A(f"v_and_b32 v27, 3, v{V_LANE}")
        A(f"v_lshl_add_u32 v{T}, v{T}, 2, v27")
        A(f"v_bfe_u32 v27, v{V_LANE}, 2, 2")
        A(f"s_lshl_b32 s{S_T0}, s{S_WV}, 2")
        A(f"v_add_u32 v27, s{S_T0}, v27")
        A(f"v_mul_u32_u24 v27, 3840, v27")
        A(f"s_mul_i32 s{S_T1}, s{S_CB}, 160")
        A(f"v_add_u32 v27, s{S_T1}, v27")
        A(f"v_cmp_gt_u32 vcc, 10, v{T}")
        A(f"v_mov_b32 v28, 1120")
        A(f"v_lshl_add_u32 v29, v{T}, 4, v27")
        A(f"v_cndmask_b32 v28, v28, 0, vcc")
        A(f"v_add_u32 v{V_WD}, v29, v28")
        A(f"v_min_u32 v24, 14, v{T}")
        A(f"v_cmp_eq_u32 vcc, 4, v{T}")
        A(f"v_mov_b32 v25, 3")
        A("s_nop 0")
        A(f"v_cndmask_b32 v24, v24, v25, vcc")
        A(f"v_cmp_gt_u32 vcc, 5, v{T}")
        A(f"v_mov_b32 v25, 2480")
        A(f"v_mov_b32 v26, 1376")
        A(f"v_cndmask_b32 v25, v25, v26, vcc")
        A(f"v_lshl_add_u32 v24, v24, 4, v27")
        A(f"v_add_u32 v{V_WD+1}, v24, v25")
        A(f"v_add_u32 v{V_WD+2}, {32*3840}, v{V_WD}")
        A(f"v_add_u32 v{V_WD+3}, {32*3840}, v{V_WD+1}")
        A(f"s_lshl_b32 s{S_LDSW}, s{S_WV}, 11")
        A(f"s_add_u32 s{S_LDSW}, s{S_LDSW}, {A_WBASE}")
        if OPT.get("atouch"):
            A(f"s_lshl_b32 s{S_T0}, s{S_RBL}, 4")
            A(f"s_lshl_b32 s{S_T1}, s{S_WV}, 1")
            A(f"s_add_u32 s{S_T0}, s{S_T0}, s{S_T1}")
            A(f"s_mul_i32 s{S_T0}, s{S_T0}, 3840")
            A(f"s_mul_i32 s{S_T1}, s{S_CB}, 160")
            A(f"s_and_b32 s{S_T1}, s{S_T1}, 0xffffff80")
            A(f"s_add_u32 s{S_T0}, s{S_T0}, s{S_T1}")
            A(f"v_and_b32 v25, 7, v{V_LANE}")
            A(f"v_min_u32 v25, 5, v25")
            A(f"v_lshrrev_b32 v24, 1, v25")
            A(f"v_mul_u32_u24 v24, 1280, v24")
            A(f"v_and_b32 v25, 1, v25")
            A(f"v_lshl_add_u32 v25, v25, 7, v24")
            A(f"v_bfe_u32 v24, v{V_LANE}, 3, 1")
            A(f"v_mul_u32_u24 v24, 3840, v24")
            A(f"v_add_u32 v25, v25, v24")
            A(f"v_add_u32 v{V_TCH}, s{S_T0}, v25")
        old = G.V_T; oldb = G.WBASE
        G.V_T = 24; G.WBASE = A_WBASE
        G.a_tr_addr(A, 0, V_WB)
        G.a_tr_addr(A, 1, V_WB+2)
        G.V_T = old; G.WBASE = oldb
        A(f"v_add_u32 v{V_WB+1}, {2*A_DSLOT}, v{V_WB}")
        A(f"v_add_u32 v{V_WB+3}, {2*A_DSLOT}, v{V_WB+2}")
    def mid2(A):
        a_addr_setup(A)
        for i in range(64): A(f"v_mov_b32 v{V_ACC+i}, 0")
        A(f"v_lshlrev_b32 v24, 4, v{V_LANE}")
        A(f"v_add_u32 v24, {A_ZERO}, v24")
        A(f"ds_write_b128 v24, v[{V_ACC}:{V_ACC+3}]")
    def after_x(A):
        for x in a_dma(0): A(x)
        srd(A, SRD_M, S_PHIP, 25600)
        A(f"v_lshlrev_b32 v24, 4, v{V_LANE}")
        A(f"s_mul_i32 s{S_T0}, s{S_CB}, 3200")
        A(f"s_lshl_b32 s{S_T1}, s{S_WC}, 10")
        A(f"s_add_u32 s{S_T0}, s{S_T0}, s{S_T1}")
        A(f"s_add_u32 m0, s{S_T1}, {A_PHI}")
        A("s_nop 0")
        A(f"buffer_load_dwordx4 v24, s[{SRD_M}:{SRD_M+3}], s{S_T0} offen lds")
        return 5
    x_phase(A, mid1, mid2, after_x)
    stamp(A, 1, prof)
    for g in range(2):
        for x in norm_valu(0, g): A(x)
        A(norm_write(0, g))
    for x in a_dma(1): A(x)
    for g in range(2):
        for x in norm_valu(1, g): A(x)
    A(f"s_waitcnt vmcnt(4) lgkmcnt(0)")
    stamp(A, 2, prof)
    if OPT.get("g1prio") == "all":
        l = A.newlabel("L_pr"); A(f"s_cmp_eq_u32 s{S_WT}, 0"); A(f"s_cbranch_scc1 {l}"); A("s_setprio 2"); A.label(l)
    a_loop2(A)
    if OPT.get("g1prio") == "epi":
        l = A.newlabel("L_pr"); A(f"s_cmp_eq_u32 s{S_WT}, 0"); A(f"s_cbranch_scc1 {l}"); A("s_setprio 2"); A.label(l)
    es = opts.get("estamp")
    stamp(A, 0 if es else 3, prof)
    a_epilogue(A, prof, opts, (lambda A_, i: stamp(A_, i, True)) if es else (lambda A_, i: None))
    if es: stamp(A, 3, True)
    stamp(A, 4, prof)
```

```python
import build, gen_k1, sys
BEST = {"map":"old", "k3oprio":3, "k3nhm":11, "map3":"old", "xs":2, "stflags":"sc0 sc1", "astflags":"sc0 sc1", "ostflags":"sc0 sc1", "prio":1}
gen_k1.OPT.clear(); gen_k1.OPT.update(BEST)
for kv in sys.argv[3:]:
    k, v = kv.split("=")
    try: v = int(v)
    except: pass
    gen_k1.OPT[k] = v
kern = tuple(sys.argv[2].split(","))
open(sys.argv[1], "w").write(build.build(kernels=kern, prof=False))
```

```python
from asmlib import *
import gen_k1u as Uu
from gen_k1u import *
import gen_k1 as G
from gen_k1 import WS_FLAG

L2E = 0x3fb8aa3b
A_PHI, A_ZERO, A_W3ST = G.A_PHI, G.A_ZERO, 65536
A_WBASE = WBASE
V_EWP0, V_EWP1, V_EROW, V_ES16, V_EKA, V_EKB = 72, 73, 74, 75, 76, 77
TT = 24

def x_load_t(A, t):
    A(f"s_add_u32 s{S_T2}, s{S_T3}, s{S_T4}")
    for g in range(2):
        r = V_X + 8*t + 4*g
        A(f"buffer_load_dwordx4 v[{r}:{r+3}], v{38+g}, s[{SRD_X}:{SRD_X+3}], s{S_T2} offen")
    A(f"s_add_u32 s{S_T4}, s{S_T4}, 128")
    A(f"s_cmp_eq_u32 s{S_T4}, 1280")
    A(f"s_cselect_b32 s{S_T4}, 0, s{S_T4}")

S0 = 28
def dot_t(A, t):
    for g in range(2):
        for r in range(4):
            x = V_X + 8*t + 4*g + r
            A(f"v_dot2_f32_bf16 v{S0+4*g+(r&1)}, v{x}, s{S_ONES}, v{S0+4*g+(r&1)}")
            A(f"v_dot2_f32_bf16 v{S0+4*g+2+(r&1)}, v{x}, v{x}, v{S0+4*g+2+(r&1)}")

def stats_finish(A):
    for g in range(2):
        A(f"v_add_f32 v{S0+4*g}, v{S0+4*g}, v{S0+4*g+1}")
        A(f"v_add_f32 v{S0+4*g+2}, v{S0+4*g+2}, v{S0+4*g+3}")
    regs = [S0, S0+2, S0+4, S0+6]
    for mode in ("quad_perm:[1,0,3,2]", "quad_perm:[2,3,0,1]", "row_half_mirror"):
        A("s_nop 1")
        for r in regs:
            A(f"v_add_f32_dpp v{r}, v{r}, v{r} {mode} row_mask:0xf bank_mask:0xf")
    A(f"s_mov_b32 s{S_T0}, 0x3acccccd")
    A(f"s_mov_b32 s{S_T1}, 0x3727c5ac")
    for g in range(2):
        m, q = S0+4*g, S0+4*g+2
        A(f"v_mul_f32 v{m}, s{S_T0}, v{m}")
        A(f"v_mul_f32 v{q}, s{S_T0}, v{q}")
    for g in range(2):
        m, q = S0+4*g, S0+4*g+2
        A(f"v_fma_f32 v{q}, -v{m}, v{m}, v{q}")
    for g in range(2):
        A(f"v_max_f32 v{S0+4*g+2}, 0, v{S0+4*g+2}")
    for g in range(2):
        A(f"v_add_f32 v{S0+4*g+2}, s{S_T1}, v{S0+4*g+2}")
    for g in range(2):
        A(f"v_rsq_f32 v{VR[g]}, v{S0+4*g+2}")
    A("s_nop 0")
    for g in range(2):
        A(f"v_mul_f32 v{VB[g]}, v{S0+4*g}, v{VR[g]}")
    for g in range(2):
        A(f"v_sub_f32 v{VB[g]}, 0, v{VB[g]}")

def code_prefetch(A, target, nlines, vtmp, vdum, spair, cond_waves=(0, 4)):
    l = A.newlabel("L_cpf"); h = A.newlabel("L_pc")
    A(f"s_and_b32 s{S_T0}, s{S_WV}, 3")
    A(f"s_cmp_eq_u32 s{S_T0}, 0")
    A(f"s_cbranch_scc0 {l}")
    A(f"s_getpc_b64 s[{spair}:{spair+1}]")
    A.label(h)
    if target is None:
        target = h
    else:
        A(f"s_add_u32 s{spair}, s{spair}, {target}-{h}")
        A(f"s_addc_u32 s{spair+1}, s{spair+1}, 0")
    A(f"v_lshlrev_b32 v{vtmp}, 7, v{V_LANE}")
    A(f"s_lshl_b32 s{S_T0}, s{S_WT}, 13")
    A(f"v_add_u32 v{vtmp}, s{S_T0}, v{vtmp}")
    A(f"v_min_u32 v{vtmp}, {nlines}-{target}-4, v{vtmp}")
    A(f"global_load_dword v{vdum}, v{vtmp}, s[{spair}:{spair+1}]")
    A.label(l)

def x_phase(A, mid1, mid2, after_x):
    A(f"s_mul_i32 s{S_T3}, s{S_RB}, 163840")
    A(f"s_lshl_b32 s{S_T4}, s{S_ROT}, 7")
    XS = OPT.get("xs", 0)
    if XS:
        for t in range(0, XS): x_load_t(A, t)
        mid1(A)
        mid2(A)
        for i in range(8): A(f"v_mov_b32 v{S0+i}, 0")
        A("s_waitcnt vmcnt(0)")
        lead = OPT.get("xlead", 4)
        nxt = XS
        for t in range(nxt, min(10, nxt + lead)): x_load_t(A, t)
        nxt = min(10, nxt + lead)
        done = 0
        while done < XS:
            dot_t(A, done); done += 1
            if nxt < 10: x_load_t(A, nxt); nxt += 1
        while nxt < 10:
            A(f"s_waitcnt vmcnt({2*(nxt - done - 1)})")
            dot_t(A, done); done += 1
            x_load_t(A, nxt); nxt += 1
        n = after_x(A)
        for t in range(done, 10):
            A(f"s_waitcnt vmcnt({n + 2*(9-t)})")
            dot_t(A, t)
        stats_finish(A)
        return
    for t in range(0, 4): x_load_t(A, t)
    mid1(A)
    for t in range(4, 7): x_load_t(A, t)
    mid2(A)
    for i in range(8): A(f"v_mov_b32 v{S0+i}, 0")
    A(f"s_waitcnt vmcnt({2*(7-1)})")
    dot_t(A, 0)
    x_load_t(A, 7)
    A(f"s_waitcnt vmcnt({2*(8-2)})")
    dot_t(A, 1)
    x_load_t(A, 8)
    A(f"s_waitcnt vmcnt({2*(9-3)})")
    dot_t(A, 2)
    x_load_t(A, 9)
    n = after_x(A)
    for t in range(3, 10):
        A(f"s_waitcnt vmcnt({n + 2*(9-t)})")
        dot_t(A, t)
    stats_finish(A)

def f_path(A, prof):
    T = TT
    if OPT.get("cpf"):
        A.label("L_f_code")
        code_prefetch(A, None, "L_k1_A", 24, 21, 44+16)
    def mid1(A):
        A(f"s_cmp_lt_u32 s{S_WV}, 4")
        A(f"s_cselect_b32 s{S_T0}, s{S_WGP}, s{S_WUP}")
        A(f"s_cselect_b32 s{S_T1}, s{S_WGP+1}, s{S_WUP+1}")
        A(f"s_mov_b32 s{SRD_W}, s{S_T0}")
        A(f"s_and_b32 s{SRD_W+1}, s{S_T1}, 0xffff")
        A(f"s_mov_b32 s{SRD_W+2}, {640*3072}")
        A(f"s_mov_b32 s{SRD_W+3}, 0x20000")
        offset_table(A, 20, 32*3072, 640*3072, 64*3072)
        srd(A, SRD_WS, S_WSP, WS_SIZE)
        x_read_addrs(A)
        A(f"v_lshrrev_b32 v29, 4, v{V_LANE}")
        A(f"v_bfe_u32 v26, v{V_LANE}, 2, 2")
        A(f"v_and_b32 v27, 3, v{V_LANE}")
        A(f"s_mul_i32 s{S_T0}, s{S_WC}, 12")
        A(f"s_mul_i32 s{S_T1}, s{S_CB}, 384")
        for i in range(3):
            A(f"v_add_u32 v28, s{S_T0}, v29")
            if i: A(f"v_add_u32 v28, {4*i}, v28")
            A(f"v_mul_u32_u24 v24, 43, v28")
            A(f"v_lshrrev_b32 v24, 8, v24")
            A(f"v_mul_u32_u24 v25, 6, v24")
            A(f"v_sub_u32 v25, v28, v25")
            A(f"v_lshl_add_u32 v24, v24, 2, v26")
            A(f"v_mul_u32_u24 v24, 3072, v24")
            A(f"v_lshl_add_u32 v24, v25, 6, v24")
            A(f"v_lshl_add_u32 v24, v27, 4, v24")
            A(f"v_add_u32 v{V_WD+i}, s{S_T1}, v24")
        A(f"s_mul_i32 s{S_T0}, s{S_WT}, {F_UP}")
        A(f"s_mul_i32 s{S_T1}, s{S_WC}, 3072")
        A(f"s_add_u32 s{S_LDSW}, s{S_T0}, s{S_T1}")
        A(f"s_add_u32 s{S_LDSW}, s{S_LDSW}, {WBASE}")
        A(f"v_bfe_u32 v25, v{V_LANE}, 4, 1")
        A(f"v_mul_u32_u24 v25, {F_UP}, v25")
        A(f"v_lshrrev_b32 v24, 5, v{V_LANE}")
        A(f"v_mul_u32_u24 v24, 3072, v24")
        A(f"v_add_u32 v25, v25, v24")
        A(f"v_bfe_u32 v24, v{V_LANE}, 2, 2")
        A(f"v_lshl_add_u32 v25, v24, 6, v25")
        A(f"v_and_b32 v24, 3, v{V_LANE}")
        A(f"v_lshl_add_u32 v25, v24, 3, v25")
        A(f"s_lshr_b32 s{S_T0}, s{S_WC}, 1")
        A(f"s_lshl_b32 s{S_T0}, s{S_T0}, 8")
        A(f"s_and_b32 s{S_T1}, s{S_WC}, 1")
        A(f"s_lshl_b32 s{S_T1}, s{S_T1}, 5")
        A(f"s_add_u32 s{S_T0}, s{S_T0}, s{S_T1}")
        A(f"s_add_u32 s{S_T0}, s{S_T0}, {WBASE}")
        A(f"v_add_u32 v{V_WB}, s{S_T0}, v25")
        A(f"v_add_u32 v{V_WB+1}, {2*F_SLOT}, v{V_WB}")
        A(f"v_add_u32 v{V_WB+2}, {4*F_SLOT}, v{V_WB}")
    def mid2(A):
        for i in range(96): A(f"v_mov_b32 v{V_ACC+i}, 0")
    def after_x(A):
        for x in f_dma(0): A(x)
        return 3
    x_phase(A, mid1, mid2, after_x)
    stamp(A, 1, prof)
    for g in range(2):
        for x in norm_valu(0, g): A(x)
        A(norm_write(0, g))
    for q in (1, 2, 3):
        for x in f_dma(q): A(x)
    for x in norm_valu(1, 0): A(x)
    A(f"s_waitcnt vmcnt(9) lgkmcnt(0)")
    stamp(A, 2, prof)
    if OPT.get("g1prio") == "all":
        l = A.newlabel("L_pr"); A(f"s_cmp_eq_u32 s{S_WT}, 0"); A(f"s_cbranch_scc1 {l}"); A("s_setprio 2"); A.label(l)
    f_loop(A)
    stamp(A, 3, prof)
    f_epilogue(A)
    if OPT.get("cpf"):
        code_prefetch(A, "k3_kernel", "L_text_end", 44, 45, 44+16)
    lz = A.newlabel("L_zf")
    A(f"s_or_b32 s{S_T0}, s2, s{S_WV}")
    A(f"s_cmp_eq_u32 s{S_T0}, 0")
    A(f"s_cbranch_scc0 {lz}")
    A(f"v_mov_b32 v40, 0\nv_mov_b32 v41, 0\nv_mov_b32 v42, 0\nv_mov_b32 v43, 0")
    A(f"v_lshlrev_b32 v44, 4, v{V_LANE}")
    A(f"s_mov_b32 s{S_T1}, {WS_FLAG}")
    A(f"buffer_store_dwordx4 v[40:43], v44, s[{SRD_WS}:{SRD_WS+3}], s{S_T1} offen")
    A.label(lz)
    stamp(A, 4, prof)

def a_addr_setup(A):
    T = 24
    A(f"v_and_b32 v{T}, 3, v{V_LANE}")
    A(f"v_bfe_u32 v{T+1}, v{V_LANE}, 4, 1")
    A(f"v_lshrrev_b32 v{T+2}, 1, v{T}")
    A(f"v_lshl_add_u32 v{T+2}, v{T+1}, 1, v{T+2}")
    A(f"v_and_b32 v{T+3}, 1, v{T}")
    A(f"v_lshrrev_b32 v{T+4}, 5, v{V_LANE}")
    A(f"v_bfe_u32 v{T+5}, v{V_LANE}, 2, 2")
    A(f"v_mul_u32_u24 v{T+5}, 40, v{T+5}")
    A(f"v_lshl_add_u32 v{T+5}, v{T+2}, 3, v{T+5}")
    A(f"s_mul_i32 s{S_T0}, s{S_WC}, 800")
    A(f"s_add_u32 s{S_T0}, s{S_T0}, {A_PHI}")
    A(f"v_add_u32 v{T+5}, s{S_T0}, v{T+5}")
    A(f"v_mov_b32 v{T+6}, {A_ZERO}")
    A(f"v_cmp_eq_u32 vcc, v{T+3}, v{T+4}")
    A("s_nop 1")
    A(f"v_cndmask_b32 v{V_EWP0}, v{T+6}, v{T+5}, vcc")
    A(f"v_cmp_eq_u32 vcc, 0, v{T+2}")
    A("s_nop 1")
    A(f"v_cndmask_b32 v{V_EWP1}, v{T+6}, v{V_EWP0}, vcc")
    A(f"v_and_b32 v{T}, 31, v{V_LANE}")
    A(f"v_bfe_u32 v{T+1}, v{T}, 1, 1")
    A(f"v_lshlrev_b32 v{T+1}, 2, v{T+1}")
    A(f"v_bfe_u32 v{T+2}, v{T}, 2, 1")
    A(f"v_lshl_or_b32 v{T+1}, v{T+2}, 1, v{T+1}")
    A(f"v_and_b32 v{T+2}, 1, v{T}")
    A(f"v_or_b32 v{T+1}, v{T+1}, v{T+2}")
    A(f"v_lshlrev_b32 v{V_ES16}, 4, v{T+1}")
    A(f"s_lshl_b32 s{S_T0}, s{S_WC}, 14")
    A(f"s_lshl_b32 s{S_T1}, s{S_WT}, 13")
    A(f"s_add_u32 s{S_T0}, s{S_T0}, s{S_T1}")
    A(f"v_lshlrev_b32 v{T+2}, 7, v{T}")
    A(f"v_add_u32 v{V_EROW}, s{S_T0}, v{T+2}")
    A(f"v_bfe_u32 v{T}, v{V_LANE}, 2, 2")
    A(f"v_lshrrev_b32 v{T+1}, 1, v{T}")
    A(f"v_lshlrev_b32 v{T+1}, 2, v{T+1}")
    A(f"v_and_b32 v{T+2}, 1, v{T}")
    A(f"v_or_b32 v{T+1}, v{T+1}, v{T+2}")
    A(f"v_lshrrev_b32 v{T+2}, 5, v{V_LANE}")
    A(f"v_lshl_add_u32 v{T+2}, v{T+2}, 3, v{T}")
    A(f"v_lshlrev_b32 v{T+2}, 7, v{T+2}")
    A(f"s_lshl_b32 s{S_T0}, s{S_WC}, 14")
    A(f"v_add_u32 v{T+2}, s{S_T0}, v{T+2}")
    A(f"v_bfe_u32 v{T+3}, v{V_LANE}, 4, 1")
    A(f"v_and_b32 v{T+4}, 3, v{V_LANE}")
    A(f"v_lshl_add_u32 v{T+3}, v{T+3}, 2, v{T+4}")
    A(f"v_and_b32 v{T+4}, 4, v{T+3}")
    A(f"v_and_b32 v{T+5}, 1, v{T+3}")
    A(f"v_lshl_add_u32 v{T+4}, v{T+5}, 1, v{T+4}")
    A(f"v_bfe_u32 v{T+5}, v{T+3}, 1, 1")
    A(f"v_add_u32 v{T+4}, v{T+4}, v{T+5}")
    A(f"v_and_b32 v{T+5}, 1, v{T+3}")
    A(f"v_add_u32 v{T+5}, 8, v{T+5}")
    A(f"s_cmp_eq_u32 s{S_WT}, 0")
    A(f"s_cselect_b64 vcc, -1, 0")
    A(f"v_cndmask_b32 v{T+4}, v{T+5}, v{T+4}, vcc")
    A(f"v_lshrrev_b32 v{T+5}, 1, v{T+4}")
    A(f"v_and_b32 v{T+4}, 1, v{T+4}")
    A(f"v_xor_b32 v{T+6}, v{T+5}, v{T+1}")
    A(f"v_lshlrev_b32 v{T+6}, 4, v{T+6}")
    A(f"v_lshl_add_u32 v{T+6}, v{T+4}, 3, v{T+6}")
    A(f"v_add_u32 v{V_EKA}, v{T+2}, v{T+6}")
    A(f"s_mov_b32 s{S_T1}, 0xfffdceba")
    A(f"v_lshlrev_b32 v{T+4}, 2, v{T+3}")
    A(f"v_lshrrev_b32 v{T+4}, v{T+4}, s{S_T1}")
    A(f"v_and_b32 v{T+4}, 15, v{T+4}")
    A(f"v_lshrrev_b32 v{T+5}, 1, v{T+4}")
    A(f"v_and_b32 v{T+4}, 1, v{T+4}")
    A(f"v_xor_b32 v{T+6}, v{T+5}, v{T+1}")
    A(f"v_lshlrev_b32 v{T+6}, 4, v{T+6}")
    A(f"v_lshl_add_u32 v{T+6}, v{T+4}, 3, v{T+6}")
    A(f"v_add_u32 v{V_EKB}, v{T+2}, v{T+6}")

V_WP = 80
W3R = 104

NKAP = 72
W3WAVE = 13312
def w3_params(A):
    A(f"s_lshl_b32 s{S_T0}, s{S_CB}, 4")
    A(f"s_add_u32 s{S_T5}, s{S_T0}, s{S_RB}")
    A(f"s_cmp_lt_u32 s{S_T5}, 48")
    A(f"s_cselect_b32 s{S_T0}, s{S_WDP}, s{S_WOP}")
    A(f"s_cselect_b32 s{S_T1}, s{S_WDP+1}, s{S_WOP+1}")
    A(f"s_mov_b32 s{S_T2}, {640*1280}")
    A(f"s_cselect_b32 s{S_T2}, {1536*1280}, s{S_T2}")
    A(f"s_mov_b32 s{SRD_M}, s{S_T0}")
    A(f"s_and_b32 s{SRD_M+1}, s{S_T1}, 0xffff")
    A(f"s_mov_b32 s{SRD_M+2}, s{S_T2}")
    A(f"s_mov_b32 s{SRD_M+3}, 0x20000")
    A(f"s_sub_u32 s{S_T0}, s{S_T5}, 48")
    A(f"s_lshl_b32 s{S_T0}, s{S_T0}, 2")
    A(f"s_mul_i32 s{S_T0}, s{S_T0}, 43")
    A(f"s_lshr_b32 s{S_T2}, s{S_T0}, 7")
    A(f"s_mul_i32 s{S_T0}, s{S_T2}, 20")
    A(f"s_lshl_b32 s{S_T1}, s{S_T5}, 5")
    A(f"s_cmp_lt_u32 s{S_T5}, 48")
    A(f"s_cselect_b32 s{S_T0}, s{S_T1}, s{S_T0}")
    A(f"s_mul_i32 s{S_T3}, s{S_T0}, 1280")

def w3_voffs():
    L = []
    for i in range(5):
        L += [f"v_add_u32 v{W3R+5}, {64*i}, v{V_LANE}",
              f"v_mul_u32_u24 v{W3R+6}, 3277, v{W3R+5}",
              f"v_lshrrev_b32 v{W3R+6}, 16, v{W3R+6}",
              f"v_mul_u32_u24 v{W3R+7}, 20, v{W3R+6}",
              f"v_sub_u32 v{W3R+7}, v{W3R+5}, v{W3R+7}",
              f"v_mul_u32_u24 v{W3R+6}, 1280, v{W3R+6}",
              f"v_lshl_add_u32 v{W3R+i}, v{W3R+7}, 4, v{W3R+6}"]
    return L

def w3_loads_g0(A):
    l = A.newlabel("L_w3l")
    A(f"s_cmp_eq_u32 s{S_WT}, 0")
    A(f"s_cbranch_scc0 {l}")
    w3_params(A)
    A(f"s_cmp_ge_u32 s{S_T5}, {NKAP}")
    A(f"s_cselect_b32 s{S_T3}, 0x7f000000, s{S_T3}")
    A(f"s_mul_i32 s{S_T1}, s{S_WC}, 320")
    A(f"s_add_u32 s{S_T0}, s{S_T3}, s{S_T1}")
    A(f"s_mul_i32 s{S_T1}, s{S_WC}, {W3WAVE}")
    A(f"s_add_u32 s{S_T1}, s{S_T1}, {A_W3ST}")
    for i in range(13):
        A(f"s_add_u32 m0, s{S_T1}, {1024*i}")
        A(f"s_add_u32 s{S_T2}, s{S_T0}, {(i//5)*16*1280}")
        A(f"buffer_load_dwordx4 v{W3R+(i%5)}, s[{SRD_M}:{SRD_M+3}], s{S_T2} offen lds")
    A.label(l)

def w3_relayout_g0(A):
    l = A.newlabel("L_w3r")
    A(f"s_cmp_eq_u32 s{S_WT}, 0")
    A(f"s_cbranch_scc0 {l}")
    A(f"s_lshl_b32 s{S_T0}, s{S_CB}, 4")
    A(f"s_add_u32 s{S_T5}, s{S_T0}, s{S_RB}")
    A(f"s_cmp_ge_u32 s{S_T5}, {NKAP}")
    A(f"s_cbranch_scc1 {l}")
    T = 24
    A(f"v_lshrrev_b32 v{T}, 4, v{V_LANE}")
    A(f"v_bfe_u32 v{T+1}, v{V_LANE}, 2, 2")
    A(f"v_lshrrev_b32 v{T+2}, 1, v{T}")
    A(f"v_lshlrev_b32 v{T+2}, 4, v{T+2}")
    A(f"v_and_b32 v{T+3}, 1, v{T}")
    A(f"v_lshl_add_u32 v{T+2}, v{T+3}, 2, v{T+2}")
    A(f"v_add_u32 v{T+3}, 8, v{T+2}")
    A(f"s_sub_u32 s{S_T0}, s{S_T5}, 48")
    A(f"s_lshl_b32 s{S_T0}, s{S_T0}, 2")
    A(f"s_mul_i32 s{S_T1}, s{S_T0}, 43")
    A(f"s_lshr_b32 s{S_T1}, s{S_T1}, 7")
    A(f"v_add_u32 v{T+4}, s{S_T0}, v{T}")
    A(f"v_mul_u32_u24 v{T+5}, 43, v{T+4}")
    A(f"v_lshrrev_b32 v{T+5}, 7, v{T+5}")
    A(f"v_mul_u32_u24 v{T+6}, 3, v{T+5}")
    A(f"v_sub_u32 v{T+4}, v{T+4}, v{T+6}")
    A(f"v_subrev_u32 v{T+5}, s{S_T1}, v{T+5}")
    A(f"v_mul_u32_u24 v{T+5}, 20, v{T+5}")
    A(f"v_lshlrev_b32 v{T+6}, 2, v{T+4}")
    A(f"v_cmp_eq_u32 vcc, 2, v{T+4}")
    A(f"v_mov_b32 v{T+7}, 16")
    A("s_nop 0")
    A(f"v_cndmask_b32 v{T+6}, v{T+6}, v{T+7}, vcc")
    A(f"v_add_u32 v{T+6}, v{T+5}, v{T+6}")
    A(f"v_add_u32 v{T+7}, 8, v{T+6}")
    A(f"s_mov_b64 s[{S_EX}:{S_EX+1}], vcc")
    A(f"s_cmp_lt_u32 s{S_T5}, 48")
    A(f"s_cselect_b64 vcc, -1, 0")
    A(f"s_cselect_b64 s[{S_EX}:{S_EX+1}], 0, s[{S_EX}:{S_EX+1}]")
    A(f"v_cndmask_b32 v{T+2}, v{T+6}, v{T+2}, vcc")
    A(f"v_cndmask_b32 v{T+3}, v{T+7}, v{T+3}, vcc")
    A(f"v_and_b32 v{T+4}, 3, v{V_LANE}")
    A(f"v_lshlrev_b32 v{T+4}, 3, v{T+4}")
    A(f"s_mul_i32 s{S_T0}, s{S_WC}, {W3WAVE}")
    A(f"s_add_u32 s{S_T0}, s{S_T0}, {A_W3ST}")
    for k in (2, 3):
        A(f"v_add_u32 v{T+k}, v{T+k}, v{T+1}")
        A(f"v_mul_u32_u24 v{T+k}, 320, v{T+k}")
        A(f"v_add_u32 v{T+k}, v{T+k}, v{T+4}")
        A(f"v_add_u32 v{T+k}, s{S_T0}, v{T+k}")
    A(f"v_mov_b32 v{T+5}, {A_ZERO}")
    A("s_nop 0")
    A(f"v_cndmask_b32 v{T+3}, v{T+3}, v{T+5}, s[{S_EX}:{S_EX+1}]")
    R = 80
    for f in range(10):
        r = R + 4*f
        A(f"ds_read_b64_tr_b16 v[{r}:{r+1}], v{T+2} offset:{32*f}")
        A(f"ds_read_b64_tr_b16 v[{r+2}:{r+3}], v{T+3} offset:{32*f}")
    A(f"s_mul_i32 s{S_T0}, s{S_WC}, {2*NKAP}")
    A(f"s_add_u32 s{S_T0}, s{S_T0}, s{S_T5}")
    A(f"s_mul_i32 s{S_T0}, s{S_T0}, 5120")
    A(f"s_add_u32 s{S_T0}, s{S_T0}, {WS_W3}")
    A(f"v_lshlrev_b32 v{T}, 4, v{V_LANE}")
    for f in range(10):
        r = R + 4*f
        if f in (0, 5): A(f"s_waitcnt lgkmcnt({10 if f == 0 else 0})")
        A(f"s_add_u32 s{S_T1}, s{S_T0}, {(f//5)*NKAP*5120 + (f%5)*1024}")
        A(f"buffer_store_dwordx4 v[{r}:{r+3}], v{T}, s[{SRD_WS}:{SRD_WS+3}], s{S_T1} offen")
    A.label(l)

def wp_reads():
    L = []
    for o in range(2):
        for s_ in range(3):
            r = V_WP + 4*(3*o+s_)
            L.append(f"ds_read_b64_tr_b16 v[{r}:{r+1}], v{[V_EWP0,V_EWP1][o]} offset:{320*s_+32*o}")
            if s_ < 2:
                L.append(f"ds_read_b64_tr_b16 v[{r+2}:{r+3}], v{[V_EWP0,V_EWP1][o]} offset:{320*s_+160+32*o}")
    return L

def a_loop2(A):
    group_skew_begin(A)
    for S in range(10):
        A("s_barrier")
        reads = []
        for j in range(4):
            reads += xr(A_OP[j], S, j) + a_wreads(S, j, A_OP[j])
        writes = []
        if S+1 < 10 and not OPT.get("no_norm"):
            writes = [norm_write(S+1, 0), norm_write(S+1, 1)]
        dma = [] if OPT.get("no_dma") else a_dma(S+2)
        grp = [dma[i:i+3] for i in range(0, len(dma), 3)]
        mode = OPT.get("aL", "rwd")
        if mode == "rwd":
            seq = reads + writes + dma
        elif mode == "wrd":
            seq = writes + reads + dma
        elif mode == "drw":
            seq = dma + reads + writes
        else:
            seq = []
            per = 6
            for i in range(0, len(reads), per):
                if grp: seq += grp.pop(0)
                seq += reads[i:i+per]
            for g in grp: seq += g
            seq += writes
        for x in seq: A(x)
        TDA = OPT.get("atouch", 0)
        if TDA and S+TDA < 10:
            A(f"buffer_load_dword v{V_DUM}, v{V_TCH}, s[{SRD_W}:{SRD_W+3}], s{S_TAB+S+TDA} offen")
        if S == 9:
            for x in wp_reads(): A(x)
            w3_loads_g0(A)
        if S+1 < 10:
            n = 4 if S+2 < 10 else 0
            if TDA:
                n += (1 if S+TDA < 10 else 0) + (1 if (S >= 1 and S-1+TDA < 10) else 0)
            A(f"s_waitcnt vmcnt({n}) lgkmcnt(0)")
        else:
            A("s_waitcnt lgkmcnt(0)")
        A("s_barrier")
        fill = (norm_valu(S+2, 0) + norm_valu(S+2, 1)) if S+2 < 10 else []
        if S == 8:
            fill = w3_voffs()
        if S == 9:
            fill = [f"v_mov_b32 v{V_WP+10}, 0", f"v_mov_b32 v{V_WP+11}, 0", f"v_mov_b32 v{V_WP+22}, 0", f"v_mov_b32 v{V_WP+23}, 0"]
        mf = []
        for j in range(4):
            b = A_OP[j]
            for a_ in range(2):
                for tau in range(2):
                    c = V_ACC + 16*(2*tau+a_)
                    mf.append(f"v_mfma_f32_32x32x16_bf16 v[{c}:{c+15}], v[{b+8+4*a_}:{b+11+4*a_}], v[{b+4*tau}:{b+3+4*tau}], v[{c}:{c+15}]")
        mfma_block(A, mf, fill)
    group_skew_end(A)

V_QB = [104, 116]
V_PV = [128, 134]
V_E = 40
def a_epilogue(A, prof, opts, est):
    EP, EN, PH = 224, 40, 140
    T = 24
    AK = 60
    for c in range(5):
        A(f"v_xor_b32 v{T}, {16*c}, v{V_ES16}")
        A(f"v_add_u32 v{AK+c}, v{V_EROW}, v{T}")
    A(f"v_lshrrev_b32 v{T+1}, 5, v{V_LANE}")
    A(f"v_add_u32 v{T}, 5, v{T+1}")
    A(f"v_lshlrev_b32 v{T}, 4, v{T}")
    A(f"v_xor_b32 v{T}, v{T}, v{V_ES16}")
    A(f"v_add_u32 v{AK+5}, v{V_EROW}, v{T}")
    A(f"v_xor_b32 v{T}, {16*7}, v{V_ES16}")
    A(f"v_add_u32 v{T}, v{V_EROW}, v{T}")
    A(f"v_lshl_add_u32 v{AK+6}, v{T+1}, 3, v{T}")
    A(f"v_lshlrev_b32 v{AK+7}, 4, v{V_LANE}")
    A(f"v_lshlrev_b32 v{AK+9}, 3, v{V_LANE}")
    A(f"v_lshlrev_b32 v{T}, 12, v{T+1}")
    for c in range(5): A(f"v_add_u32 v{AK+c}, v{AK+c}, v{T}")
    A(f"s_lshl_b32 s{S_T0}, s{S_RB}, 1")
    A(f"s_add_u32 s{S_T0}, s{S_T0}, s{S_WT}")
    A(f"s_lshl_b32 s{S_T0}, s{S_T0}, 5")
    A(f"s_lshl_b32 s{S_T1}, s{S_CB}, 2")
    A(f"s_add_u32 s{S_T0}, s{S_T0}, s{S_T1}")
    A(f"s_add_u32 s{S_T0}, s{S_T0}, s{S_WC}")
    A(f"s_mul_i32 s{S_T0}, s{S_T0}, 2560")
    A(f"s_add_u32 s{S_T4}, s{S_T0}, {WS_PQ}")
    A(f"v_mov_b32 v68, {L2E}")
    for tau in range(2):
        a0, a1 = V_ACC + 32*tau, V_ACC + 32*tau + 16
        QB, PV = V_QB[tau], V_PV[tau]
        for j in range(8): A(f"v_cvt_pk_bf16_f32 v{QB+j}, v{a0+2*j}, v{a0+2*j+1}")
        for j in range(2): A(f"v_cvt_pk_bf16_f32 v{QB+8+j}, v{a1+2*j}, v{a1+2*j+1}")
        A(f"v_mov_b32 v{QB+10}, 0"); A(f"v_mov_b32 v{QB+11}, 0")
        for j in range(6): A(f"v_cvt_pk_bf16_f32 v{PV+j}, v{a1+4+2*j}, v{a1+5+2*j}")
        A("s_mov_b32 exec_lo, 0")
        A(f"v_mov_b32 v{PV+4}, 0x3f80")
        A(f"v_mov_b32 v{PV+5}, 0")
        A("s_mov_b32 exec_lo, -1")
        for o, P in ((0, a0), (1, a1)):
            for s_ in range(3):
                c = "0" if s_ == 0 else f"v[{P}:{P+15}]"
                A(f"v_mfma_f32_32x32x16_bf16 v[{P}:{P+15}], v[{V_WP+4*(3*o+s_)}:{V_WP+4*(3*o+s_)+3}], v[{QB+4*s_}:{QB+4*s_+3}], {c}")
        A(f"ds_write_b128 v{AK+5}, v[{PV}:{PV+3}] offset:{4096*tau}")
        A(f"ds_write_b64 v{AK+6}, v[{PV+4}:{PV+5}] offset:{4096*tau}")
    est(A, 1)
    p0 = [V_ACC+i for i in range(16)] + [V_ACC+16+i for i in range(4)]
    p1 = [V_ACC+32+i for i in range(16)] + [V_ACC+48+i for i in range(4)]
    A("s_nop 7")
    A("s_nop 3")
    for i in range(20): A(f"v_permlane32_swap_b32 v{p0[i]}, v{p1[i]}")
    PQP = 104
    A("s_nop 1")
    for i in range(10): A(f"v_cvt_pk_bf16_f32 v{PQP+i}, v{p0[2*i]}, v{p0[2*i+1]}")
    A(f"buffer_store_dwordx4 v[{PQP}:{PQP+3}], v{AK+7}, s[{SRD_WS}:{SRD_WS+3}], s{S_T4} offen")
    A(f"buffer_store_dwordx4 v[{PQP+4}:{PQP+7}], v{AK+7}, s[{SRD_WS}:{SRD_WS+3}], s{S_T4} offen offset:1024")
    A(f"buffer_store_dwordx2 v[{PQP+8}:{PQP+9}], v{AK+9}, s[{SRD_WS}:{SRD_WS+3}], s{S_T4} offen offset:2048")
    softmax_block(A, p1, EP, EN, [PH+i for i in range(20)], T, 68)
    for c in range(5):
        A(f"ds_write_b128 v{AK+c}, v[{PH+4*c}:{PH+4*c+3}]")
    est(A, 2)
    if not opts.get("noW3"):
        A("s_waitcnt vmcnt(3)")
        w3_relayout_g0(A)
    A("s_waitcnt lgkmcnt(0)")
    A("s_barrier")
    KA1, KB1 = T, T+1
    A(f"v_xor_b32 v{KA1}, 32, v{V_EKA}")
    A(f"v_add_u32 v{KA1}, 512, v{KA1}")
    A(f"v_xor_b32 v{KB1}, 32, v{V_EKB}")
    A(f"v_add_u32 v{KB1}, 512, v{KB1}")
    FR = 80
    P0 = 224
    for ks in range(8):
        r = FR + 8*ks
        A(f"ds_read_b64_tr_b16 v[{r}:{r+1}], v{V_EKA} offset:{2048*ks}")
        A(f"ds_read_b64_tr_b16 v[{r+2}:{r+3}], v{KA1} offset:{2048*ks}")
        A(f"ds_read_b64_tr_b16 v[{r+4}:{r+5}], v{V_EKB} offset:{2048*ks}")
        A(f"ds_read_b64_tr_b16 v[{r+6}:{r+7}], v{KB1} offset:{2048*ks}")
        if ks == 2:
            A(f"s_lshl_b32 s{S_T0}, s{S_RB}, 5")
            A(f"s_lshl_b32 s{S_T1}, s{S_CB}, 2")
            A(f"s_add_u32 s{S_T0}, s{S_T0}, s{S_T1}")
            A(f"s_add_u32 s{S_T0}, s{S_T0}, s{S_WC}")
            A(f"s_mul_i32 s{S_T0}, s{S_T0}, 5120")
            A(f"s_lshl_b32 s{S_T1}, s{S_WT}, 12")
            A(f"s_add_u32 s{S_T0}, s{S_T0}, s{S_T1}")
            A(f"s_add_u32 s{S_T0}, s{S_T0}, {WS_KV}")
    for ks in range(8):
        r = FR + 8*ks
        A(f"s_waitcnt lgkmcnt({min(15, 4*(7-ks))})")
        c = "0" if ks == 0 else f"v[{P0}:{P0+15}]"
        A(f"v_mfma_f32_32x32x16_bf16 v[{P0}:{P0+15}], v[{r}:{r+3}], v[{r+4}:{r+7}], {c}")
    A(f"v_lshlrev_b32 v{T+2}, 4, v{V_LANE}")
    A(f"v_and_b32 v{T+3}, 31, v{V_LANE}")
    A(f"v_cmp_gt_u32 vcc, 21, v{T+3}")
    A("s_nop 7")
    A("s_nop 1")
    A(f"s_and_saveexec_b64 s[{S_EX}:{S_EX+1}], vcc")
    A(f"buffer_store_dwordx4 v[{P0}:{P0+3}], v{T+2}, s[{SRD_WS}:{SRD_WS+3}], s{S_T0} offen")
    A(f"s_cmp_eq_u32 s{S_WT}, 0")
    l = A.newlabel("L_kvskip")
    A(f"s_cbranch_scc0 {l}")
    for g in range(1, 4):
        A(f"buffer_store_dwordx4 v[{P0+4*g}:{P0+4*g+3}], v{T+2}, s[{SRD_WS}:{SRD_WS+3}], s{S_T0} offen offset:{1024*g}")
    A.label(l)
    A(f"s_mov_b64 exec, s[{S_EX}:{S_EX+1}]")

def a_path(A, prof, opts):
    if OPT.get("cpf"):
        A.label("L_a_code")
        code_prefetch(A, None, "L_k1_end", 24, 21, 44+16)
    def mid1(A):
        srd(A, SRD_W, S_QKVP, 640*3840)
        offset_table(A, 10, 64*3840, 640*3840, 64*3840)
        srd(A, SRD_WS, S_WSP, WS_SIZE)
        x_read_addrs(A)
        T = 30
        A(f"v_lshrrev_b32 v{T}, 4, v{V_LANE}")
        A(f"v_and_b32 v27, 3, v{V_LANE}")
        A(f"v_lshl_add_u32 v{T}, v{T}, 2, v27")
        A(f"v_bfe_u32 v27, v{V_LANE}, 2, 2")
        A(f"s_lshl_b32 s{S_T0}, s{S_WV}, 2")
        A(f"v_add_u32 v27, s{S_T0}, v27")
        A(f"v_mul_u32_u24 v27, 3840, v27")
        A(f"s_mul_i32 s{S_T1}, s{S_CB}, 160")
        A(f"v_add_u32 v27, s{S_T1}, v27")
        A(f"v_cmp_gt_u32 vcc, 10, v{T}")
        A(f"v_mov_b32 v28, 1120")
        A(f"v_lshl_add_u32 v29, v{T}, 4, v27")
        A(f"v_cndmask_b32 v28, v28, 0, vcc")
        A(f"v_add_u32 v{V_WD}, v29, v28")
        A(f"v_min_u32 v24, 14, v{T}")
        A(f"v_cmp_eq_u32 vcc, 4, v{T}")
        A(f"v_mov_b32 v25, 3")
        A("s_nop 0")
        A(f"v_cndmask_b32 v24, v24, v25, vcc")
        A(f"v_cmp_gt_u32 vcc, 5, v{T}")
        A(f"v_mov_b32 v25, 2480")
        A(f"v_mov_b32 v26, 1376")
        A(f"v_cndmask_b32 v25, v25, v26, vcc")
        A(f"v_lshl_add_u32 v24, v24, 4, v27")
        A(f"v_add_u32 v{V_WD+1}, v24, v25")
        A(f"v_add_u32 v{V_WD+2}, {32*3840}, v{V_WD}")
        A(f"v_add_u32 v{V_WD+3}, {32*3840}, v{V_WD+1}")
        A(f"s_lshl_b32 s{S_LDSW}, s{S_WV}, 11")
        A(f"s_add_u32 s{S_LDSW}, s{S_LDSW}, {A_WBASE}")
        if OPT.get("atouch"):
            A(f"s_lshl_b32 s{S_T0}, s{S_RBL}, 4")
            A(f"s_lshl_b32 s{S_T1}, s{S_WV}, 1")
            A(f"s_add_u32 s{S_T0}, s{S_T0}, s{S_T1}")
            A(f"s_mul_i32 s{S_T0}, s{S_T0}, 3840")
            A(f"s_mul_i32 s{S_T1}, s{S_CB}, 160")
            A(f"s_and_b32 s{S_T1}, s{S_T1}, 0xffffff80")
            A(f"s_add_u32 s{S_T0}, s{S_T0}, s{S_T1}")
            A(f"v_and_b32 v25, 7, v{V_LANE}")
            A(f"v_min_u32 v25, 5, v25")
            A(f"v_lshrrev_b32 v24, 1, v25")
            A(f"v_mul_u32_u24 v24, 1280, v24")
            A(f"v_and_b32 v25, 1, v25")
            A(f"v_lshl_add_u32 v25, v25, 7, v24")
            A(f"v_bfe_u32 v24, v{V_LANE}, 3, 1")
            A(f"v_mul_u32_u24 v24, 3840, v24")
            A(f"v_add_u32 v25, v25, v24")
            A(f"v_add_u32 v{V_TCH}, s{S_T0}, v25")
        old = G.V_T; oldb = G.WBASE
        G.V_T = 24; G.WBASE = A_WBASE
        G.a_tr_addr(A, 0, V_WB)
        G.a_tr_addr(A, 1, V_WB+2)
        G.V_T = old; G.WBASE = oldb
        A(f"v_add_u32 v{V_WB+1}, {2*A_DSLOT}, v{V_WB}")
        A(f"v_add_u32 v{V_WB+3}, {2*A_DSLOT}, v{V_WB+2}")
    def mid2(A):
        a_addr_setup(A)
        for i in range(64): A(f"v_mov_b32 v{V_ACC+i}, 0")
        A(f"v_lshlrev_b32 v24, 4, v{V_LANE}")
        A(f"v_add_u32 v24, {A_ZERO}, v24")
        A(f"ds_write_b128 v24, v[{V_ACC}:{V_ACC+3}]")
    def after_x(A):
        for x in a_dma(0): A(x)
        srd(A, SRD_M, S_PHIP, 25600)
        A(f"v_lshlrev_b32 v24, 4, v{V_LANE}")
        A(f"s_mul_i32 s{S_T0}, s{S_CB}, 3200")
        A(f"s_lshl_b32 s{S_T1}, s{S_WC}, 10")
        A(f"s_add_u32 s{S_T0}, s{S_T0}, s{S_T1}")
        A(f"s_add_u32 m0, s{S_T1}, {A_PHI}")
        A("s_nop 0")
        A(f"buffer_load_dwordx4 v24, s[{SRD_M}:{SRD_M+3}], s{S_T0} offen lds")
        return 5
    x_phase(A, mid1, mid2, after_x)
    stamp(A, 1, prof)
    for g in range(2):
        for x in norm_valu(0, g): A(x)
        A(norm_write(0, g))
    for x in a_dma(1): A(x)
    for g in range(2):
        for x in norm_valu(1, g): A(x)
    A(f"s_waitcnt vmcnt(4) lgkmcnt(0)")
    stamp(A, 2, prof)
    if OPT.get("g1prio") == "all":
        l = A.newlabel("L_pr"); A(f"s_cmp_eq_u32 s{S_WT}, 0"); A(f"s_cbranch_scc1 {l}"); A("s_setprio 2"); A.label(l)
    a_loop2(A)
    if OPT.get("g1prio") == "epi":
        l = A.newlabel("L_pr"); A(f"s_cmp_eq_u32 s{S_WT}, 0"); A(f"s_cbranch_scc1 {l}"); A("s_setprio 2"); A.label(l)
    es = opts.get("estamp")
    stamp(A, 0 if es else 3, prof)
    a_epilogue(A, prof, opts, (lambda A_, i: stamp(A_, i, True)) if es else (lambda A_, i: None))
    if es: stamp(A, 3, True)
    stamp(A, 4, prof)
```

```python
from asmlib import *
import gen_k1u as Uu
from gen_k1u import *
import gen_k1 as G
from gen_k1 import WS_FLAG

L2E = 0x3fb8aa3b
A_PHI, A_ZERO, A_W3ST = G.A_PHI, G.A_ZERO, 65536
A_WBASE = WBASE
V_EWP0, V_EWP1, V_EROW, V_ES16, V_EKA, V_EKB = 72, 73, 74, 75, 76, 77
TT = 24

def x_load_t(A, t):
    A(f"s_add_u32 s{S_T2}, s{S_T3}, s{S_T4}")
    for g in range(2):
        r = V_X + 8*t + 4*g
        A(f"buffer_load_dwordx4 v[{r}:{r+3}], v{38+g}, s[{SRD_X}:{SRD_X+3}], s{S_T2} offen")
    A(f"s_add_u32 s{S_T4}, s{S_T4}, 128")
    A(f"s_cmp_eq_u32 s{S_T4}, 1280")
    A(f"s_cselect_b32 s{S_T4}, 0, s{S_T4}")

S0 = 28
def dot_t(A, t):
    for g in range(2):
        for r in range(4):
            x = V_X + 8*t + 4*g + r
            A(f"v_dot2_f32_bf16 v{S0+4*g+(r&1)}, v{x}, s{S_ONES}, v{S0+4*g+(r&1)}")
            A(f"v_dot2_f32_bf16 v{S0+4*g+2+(r&1)}, v{x}, v{x}, v{S0+4*g+2+(r&1)}")

def stats_finish(A):
    for g in range(2):
        A(f"v_add_f32 v{S0+4*g}, v{S0+4*g}, v{S0+4*g+1}")
        A(f"v_add_f32 v{S0+4*g+2}, v{S0+4*g+2}, v{S0+4*g+3}")
    regs = [S0, S0+2, S0+4, S0+6]
    for mode in ("quad_perm:[1,0,3,2]", "quad_perm:[2,3,0,1]", "row_half_mirror"):
        A("s_nop 1")
        for r in regs:
            A(f"v_add_f32_dpp v{r}, v{r}, v{r} {mode} row_mask:0xf bank_mask:0xf")
    A(f"s_mov_b32 s{S_T0}, 0x3acccccd")
    A(f"s_mov_b32 s{S_T1}, 0x3727c5ac")
    for g in range(2):
        m, q = S0+4*g, S0+4*g+2
        A(f"v_mul_f32 v{m}, s{S_T0}, v{m}")
        A(f"v_mul_f32 v{q}, s{S_T0}, v{q}")
    for g in range(2):
        m, q = S0+4*g, S0+4*g+2
        A(f"v_fma_f32 v{q}, -v{m}, v{m}, v{q}")
    for g in range(2):
        A(f"v_max_f32 v{S0+4*g+2}, 0, v{S0+4*g+2}")
    for g in range(2):
        A(f"v_add_f32 v{S0+4*g+2}, s{S_T1}, v{S0+4*g+2}")
    for g in range(2):
        A(f"v_rsq_f32 v{VR[g]}, v{S0+4*g+2}")
    A("s_nop 0")
    for g in range(2):
        A(f"v_mul_f32 v{VB[g]}, v{S0+4*g}, v{VR[g]}")
    for g in range(2):
        A(f"v_sub_f32 v{VB[g]}, 0, v{VB[g]}")

def code_prefetch(A, target, nlines, vtmp, vdum, spair, cond_waves=(0, 4)):
    l = A.newlabel("L_cpf"); h = A.newlabel("L_pc")
    A(f"s_and_b32 s{S_T0}, s{S_WV}, 3")
    A(f"s_cmp_eq_u32 s{S_T0}, 0")
    A(f"s_cbranch_scc0 {l}")
    A(f"s_getpc_b64 s[{spair}:{spair+1}]")
    A.label(h)
    if target is None:
        target = h
    else:
        A(f"s_add_u32 s{spair}, s{spair}, {target}-{h}")
        A(f"s_addc_u32 s{spair+1}, s{spair+1}, 0")
    A(f"v_lshlrev_b32 v{vtmp}, 7, v{V_LANE}")
    A(f"s_lshl_b32 s{S_T0}, s{S_WT}, 13")
    A(f"v_add_u32 v{vtmp}, s{S_T0}, v{vtmp}")
    A(f"v_min_u32 v{vtmp}, {nlines}-{target}-4, v{vtmp}")
    A(f"global_load_dword v{vdum}, v{vtmp}, s[{spair}:{spair+1}]")
    A.label(l)

def x_phase(A, mid1, mid2, after_x):
    A(f"s_mul_i32 s{S_T3}, s{S_RB}, 163840")
    A(f"s_lshl_b32 s{S_T4}, s{S_ROT}, 7")
    XS = OPT.get("xs", 0)
    if XS:
        for t in range(0, XS): x_load_t(A, t)
        mid1(A)
        mid2(A)
        for i in range(8): A(f"v_mov_b32 v{S0+i}, 0")
        A("s_waitcnt vmcnt(0)")
        lead = OPT.get("xlead", 4)
        nxt = XS
        for t in range(nxt, min(10, nxt + lead)): x_load_t(A, t)
        nxt = min(10, nxt + lead)
        done = 0
        while done < XS:
            dot_t(A, done); done += 1
            if nxt < 10: x_load_t(A, nxt); nxt += 1
        while nxt < 10:
            A(f"s_waitcnt vmcnt({2*(nxt - done - 1)})")
            dot_t(A, done); done += 1
            x_load_t(A, nxt); nxt += 1
        n = after_x(A)
        for t in range(done, 10):
            A(f"s_waitcnt vmcnt({n + 2*(9-t)})")
            dot_t(A, t)
        stats_finish(A)
        return
    for t in range(0, 4): x_load_t(A, t)
    mid1(A)
    for t in range(4, 7): x_load_t(A, t)
    mid2(A)
    for i in range(8): A(f"v_mov_b32 v{S0+i}, 0")
    A(f"s_waitcnt vmcnt({2*(7-1)})")
    dot_t(A, 0)
    x_load_t(A, 7)
    A(f"s_waitcnt vmcnt({2*(8-2)})")
    dot_t(A, 1)
    x_load_t(A, 8)
    A(f"s_waitcnt vmcnt({2*(9-3)})")
    dot_t(A, 2)
    x_load_t(A, 9)
    n = after_x(A)
    for t in range(3, 10):
        A(f"s_waitcnt vmcnt({n + 2*(9-t)})")
        dot_t(A, t)
    stats_finish(A)

def f_path(A, prof):
    T = TT
    if OPT.get("cpf"):
        A.label("L_f_code")
        code_prefetch(A, None, "L_k1_A", 24, 21, 44+16)
    def mid1(A):
        A(f"s_cmp_lt_u32 s{S_WV}, 4")
        A(f"s_cselect_b32 s{S_T0}, s{S_WGP}, s{S_WUP}")
        A(f"s_cselect_b32 s{S_T1}, s{S_WGP+1}, s{S_WUP+1}")
        A(f"s_mov_b32 s{SRD_W}, s{S_T0}")
        A(f"s_and_b32 s{SRD_W+1}, s{S_T1}, 0xffff")
        A(f"s_mov_b32 s{SRD_W+2}, {640*3072}")
        A(f"s_mov_b32 s{SRD_W+3}, 0x20000")
        offset_table(A, 20, 32*3072, 640*3072, 64*3072)
        srd(A, SRD_WS, S_WSP, WS_SIZE)
        x_read_addrs(A)
        A(f"v_lshrrev_b32 v29, 4, v{V_LANE}")
        A(f"v_bfe_u32 v26, v{V_LANE}, 2, 2")
        A(f"v_and_b32 v27, 3, v{V_LANE}")
        A(f"s_mul_i32 s{S_T0}, s{S_WC}, 12")
        A(f"s_mul_i32 s{S_T1}, s{S_CB}, 384")
        for i in range(3):
            A(f"v_add_u32 v28, s{S_T0}, v29")
            if i: A(f"v_add_u32 v28, {4*i}, v28")
            A(f"v_mul_u32_u24 v24, 43, v28")
            A(f"v_lshrrev_b32 v24, 8, v24")
            A(f"v_mul_u32_u24 v25, 6, v24")
            A(f"v_sub_u32 v25, v28, v25")
            A(f"v_lshl_add_u32 v24, v24, 2, v26")
            A(f"v_mul_u32_u24 v24, 3072, v24")
            A(f"v_lshl_add_u32 v24, v25, 6, v24")
            A(f"v_lshl_add_u32 v24, v27, 4, v24")
            A(f"v_add_u32 v{V_WD+i}, s{S_T1}, v24")
        A(f"s_mul_i32 s{S_T0}, s{S_WT}, {F_UP}")
        A(f"s_mul_i32 s{S_T1}, s{S_WC}, 3072")
        A(f"s_add_u32 s{S_LDSW}, s{S_T0}, s{S_T1}")
        A(f"s_add_u32 s{S_LDSW}, s{S_LDSW}, {WBASE}")
        A(f"v_bfe_u32 v25, v{V_LANE}, 4, 1")
        A(f"v_mul_u32_u24 v25, {F_UP}, v25")
        A(f"v_lshrrev_b32 v24, 5, v{V_LANE}")
        A(f"v_mul_u32_u24 v24, 3072, v24")
        A(f"v_add_u32 v25, v25, v24")
        A(f"v_bfe_u32 v24, v{V_LANE}, 2, 2")
        A(f"v_lshl_add_u32 v25, v24, 6, v25")
        A(f"v_and_b32 v24, 3, v{V_LANE}")
        A(f"v_lshl_add_u32 v25, v24, 3, v25")
        A(f"s_lshr_b32 s{S_T0}, s{S_WC}, 1")
        A(f"s_lshl_b32 s{S_T0}, s{S_T0}, 8")
        A(f"s_and_b32 s{S_T1}, s{S_WC}, 1")
        A(f"s_lshl_b32 s{S_T1}, s{S_T1}, 5")
        A(f"s_add_u32 s{S_T0}, s{S_T0}, s{S_T1}")
        A(f"s_add_u32 s{S_T0}, s{S_T0}, {WBASE}")
        A(f"v_add_u32 v{V_WB}, s{S_T0}, v25")
        A(f"v_add_u32 v{V_WB+1}, {2*F_SLOT}, v{V_WB}")
        A(f"v_add_u32 v{V_WB+2}, {4*F_SLOT}, v{V_WB}")
    def mid2(A):
        for i in range(96): A(f"v_mov_b32 v{V_ACC+i}, 0")
    def after_x(A):
        for x in f_dma(0): A(x)
        if OPT.get("tlbw"):
            A(f"v_lshlrev_b32 v24, 20, v{V_LANE}")
            A(f"v_min_u32 v24, {(24<<20)-4}, v24")
            A(f"buffer_load_dword v21, v24, s[{SRD_WS}:{SRD_WS+3}], 0 offen")
            return 4
        return 3
    x_phase(A, mid1, mid2, after_x)
    stamp(A, 1, prof)
    for g in range(2):
        for x in norm_valu(0, g): A(x)
        A(norm_write(0, g))
    for q in (1, 2, 3):
        for x in f_dma(q): A(x)
    for x in norm_valu(1, 0): A(x)
    A(f"s_waitcnt vmcnt(9) lgkmcnt(0)")
    stamp(A, 2, prof)
    if OPT.get("g1prio") == "all":
        l = A.newlabel("L_pr"); A(f"s_cmp_eq_u32 s{S_WT}, 0"); A(f"s_cbranch_scc1 {l}"); A("s_setprio 2"); A.label(l)
    f_loop(A)
    stamp(A, 3, prof)
    f_epilogue(A)
    if OPT.get("cpf"):
        code_prefetch(A, "k3_kernel", "L_text_end", 44, 45, 44+16)
    lz = A.newlabel("L_zf")
    A(f"s_or_b32 s{S_T0}, s2, s{S_WV}")
    A(f"s_cmp_eq_u32 s{S_T0}, 0")
    A(f"s_cbranch_scc0 {lz}")
    A(f"v_mov_b32 v40, 0\nv_mov_b32 v41, 0\nv_mov_b32 v42, 0\nv_mov_b32 v43, 0")
    A(f"v_lshlrev_b32 v44, 4, v{V_LANE}")
    A(f"s_mov_b32 s{S_T1}, {WS_FLAG}")
    A(f"buffer_store_dwordx4 v[40:43], v44, s[{SRD_WS}:{SRD_WS+3}], s{S_T1} offen")
    A.label(lz)
    stamp(A, 4, prof)

def a_addr_setup(A):
    T = 24
    A(f"v_and_b32 v{T}, 3, v{V_LANE}")
    A(f"v_bfe_u32 v{T+1}, v{V_LANE}, 4, 1")
    A(f"v_lshrrev_b32 v{T+2}, 1, v{T}")
    A(f"v_lshl_add_u32 v{T+2}, v{T+1}, 1, v{T+2}")
    A(f"v_and_b32 v{T+3}, 1, v{T}")
    A(f"v_lshrrev_b32 v{T+4}, 5, v{V_LANE}")
    A(f"v_bfe_u32 v{T+5}, v{V_LANE}, 2, 2")
    A(f"v_mul_u32_u24 v{T+5}, 40, v{T+5}")
    A(f"v_lshl_add_u32 v{T+5}, v{T+2}, 3, v{T+5}")
    A(f"s_mul_i32 s{S_T0}, s{S_WC}, 800")
    A(f"s_add_u32 s{S_T0}, s{S_T0}, {A_PHI}")
    A(f"v_add_u32 v{T+5}, s{S_T0}, v{T+5}")
    A(f"v_mov_b32 v{T+6}, {A_ZERO}")
    A(f"v_cmp_eq_u32 vcc, v{T+3}, v{T+4}")
    A("s_nop 1")
    A(f"v_cndmask_b32 v{V_EWP0}, v{T+6}, v{T+5}, vcc")
    A(f"v_cmp_eq_u32 vcc, 0, v{T+2}")
    A("s_nop 1")
    A(f"v_cndmask_b32 v{V_EWP1}, v{T+6}, v{V_EWP0}, vcc")
    A(f"v_and_b32 v{T}, 31, v{V_LANE}")
    A(f"v_bfe_u32 v{T+1}, v{T}, 1, 1")
    A(f"v_lshlrev_b32 v{T+1}, 2, v{T+1}")
    A(f"v_bfe_u32 v{T+2}, v{T}, 2, 1")
    A(f"v_lshl_or_b32 v{T+1}, v{T+2}, 1, v{T+1}")
    A(f"v_and_b32 v{T+2}, 1, v{T}")
    A(f"v_or_b32 v{T+1}, v{T+1}, v{T+2}")
    A(f"v_lshlrev_b32 v{V_ES16}, 4, v{T+1}")
    A(f"s_lshl_b32 s{S_T0}, s{S_WC}, 14")
    A(f"s_lshl_b32 s{S_T1}, s{S_WT}, 13")
    A(f"s_add_u32 s{S_T0}, s{S_T0}, s{S_T1}")
    A(f"v_lshlrev_b32 v{T+2}, 7, v{T}")
    A(f"v_add_u32 v{V_EROW}, s{S_T0}, v{T+2}")
    A(f"v_bfe_u32 v{T}, v{V_LANE}, 2, 2")
    A(f"v_lshrrev_b32 v{T+1}, 1, v{T}")
    A(f"v_lshlrev_b32 v{T+1}, 2, v{T+1}")
    A(f"v_and_b32 v{T+2}, 1, v{T}")
    A(f"v_or_b32 v{T+1}, v{T+1}, v{T+2}")
    A(f"v_lshrrev_b32 v{T+2}, 5, v{V_LANE}")
    A(f"v_lshl_add_u32 v{T+2}, v{T+2}, 3, v{T}")
    A(f"v_lshlrev_b32 v{T+2}, 7, v{T+2}")
    A(f"s_lshl_b32 s{S_T0}, s{S_WC}, 14")
    A(f"v_add_u32 v{T+2}, s{S_T0}, v{T+2}")
    A(f"v_bfe_u32 v{T+3}, v{V_LANE}, 4, 1")
    A(f"v_and_b32 v{T+4}, 3, v{V_LANE}")
    A(f"v_lshl_add_u32 v{T+3}, v{T+3}, 2, v{T+4}")
    A(f"v_and_b32 v{T+4}, 4, v{T+3}")
    A(f"v_and_b32 v{T+5}, 1, v{T+3}")
    A(f"v_lshl_add_u32 v{T+4}, v{T+5}, 1, v{T+4}")
    A(f"v_bfe_u32 v{T+5}, v{T+3}, 1, 1")
    A(f"v_add_u32 v{T+4}, v{T+4}, v{T+5}")
    A(f"v_and_b32 v{T+5}, 1, v{T+3}")
    A(f"v_add_u32 v{T+5}, 8, v{T+5}")
    A(f"s_cmp_eq_u32 s{S_WT}, 0")
    A(f"s_cselect_b64 vcc, -1, 0")
    A(f"v_cndmask_b32 v{T+4}, v{T+5}, v{T+4}, vcc")
    A(f"v_lshrrev_b32 v{T+5}, 1, v{T+4}")
    A(f"v_and_b32 v{T+4}, 1, v{T+4}")
    A(f"v_xor_b32 v{T+6}, v{T+5}, v{T+1}")
    A(f"v_lshlrev_b32 v{T+6}, 4, v{T+6}")
    A(f"v_lshl_add_u32 v{T+6}, v{T+4}, 3, v{T+6}")
    A(f"v_add_u32 v{V_EKA}, v{T+2}, v{T+6}")
    A(f"s_mov_b32 s{S_T1}, 0xfffdceba")
    A(f"v_lshlrev_b32 v{T+4}, 2, v{T+3}")
    A(f"v_lshrrev_b32 v{T+4}, v{T+4}, s{S_T1}")
    A(f"v_and_b32 v{T+4}, 15, v{T+4}")
    A(f"v_lshrrev_b32 v{T+5}, 1, v{T+4}")
    A(f"v_and_b32 v{T+4}, 1, v{T+4}")
    A(f"v_xor_b32 v{T+6}, v{T+5}, v{T+1}")
    A(f"v_lshlrev_b32 v{T+6}, 4, v{T+6}")
    A(f"v_lshl_add_u32 v{T+6}, v{T+4}, 3, v{T+6}")
    A(f"v_add_u32 v{V_EKB}, v{T+2}, v{T+6}")

V_WP = 80
W3R = 104

NKAP = 72
W3WAVE = 13312
def w3_params(A):
    A(f"s_lshl_b32 s{S_T0}, s{S_CB}, 4")
    A(f"s_add_u32 s{S_T5}, s{S_T0}, s{S_RB}")
    A(f"s_cmp_lt_u32 s{S_T5}, 48")
    A(f"s_cselect_b32 s{S_T0}, s{S_WDP}, s{S_WOP}")
    A(f"s_cselect_b32 s{S_T1}, s{S_WDP+1}, s{S_WOP+1}")
    A(f"s_mov_b32 s{S_T2}, {640*1280}")
    A(f"s_cselect_b32 s{S_T2}, {1536*1280}, s{S_T2}")
    A(f"s_mov_b32 s{SRD_M}, s{S_T0}")
    A(f"s_and_b32 s{SRD_M+1}, s{S_T1}, 0xffff")
    A(f"s_mov_b32 s{SRD_M+2}, s{S_T2}")
    A(f"s_mov_b32 s{SRD_M+3}, 0x20000")
    A(f"s_sub_u32 s{S_T0}, s{S_T5}, 48")
    A(f"s_lshl_b32 s{S_T0}, s{S_T0}, 2")
    A(f"s_mul_i32 s{S_T0}, s{S_T0}, 43")
    A(f"s_lshr_b32 s{S_T2}, s{S_T0}, 7")
    A(f"s_mul_i32 s{S_T0}, s{S_T2}, 20")
    A(f"s_lshl_b32 s{S_T1}, s{S_T5}, 5")
    A(f"s_cmp_lt_u32 s{S_T5}, 48")
    A(f"s_cselect_b32 s{S_T0}, s{S_T1}, s{S_T0}")
    A(f"s_mul_i32 s{S_T3}, s{S_T0}, 1280")

def w3_voffs():
    L = []
    for i in range(5):
        L += [f"v_add_u32 v{W3R+5}, {64*i}, v{V_LANE}",
              f"v_mul_u32_u24 v{W3R+6}, 3277, v{W3R+5}",
              f"v_lshrrev_b32 v{W3R+6}, 16, v{W3R+6}",
              f"v_mul_u32_u24 v{W3R+7}, 20, v{W3R+6}",
              f"v_sub_u32 v{W3R+7}, v{W3R+5}, v{W3R+7}",
              f"v_mul_u32_u24 v{W3R+6}, 1280, v{W3R+6}",
              f"v_lshl_add_u32 v{W3R+i}, v{W3R+7}, 4, v{W3R+6}"]
    return L

def w3_loads_g0(A):
    l = A.newlabel("L_w3l")
    A(f"s_cmp_eq_u32 s{S_WT}, 0")
    A(f"s_cbranch_scc0 {l}")
    w3_params(A)
    A(f"s_cmp_ge_u32 s{S_T5}, {NKAP}")
    A(f"s_cselect_b32 s{S_T3}, 0x7f000000, s{S_T3}")
    A(f"s_mul_i32 s{S_T1}, s{S_WC}, 320")
    A(f"s_add_u32 s{S_T0}, s{S_T3}, s{S_T1}")
    A(f"s_mul_i32 s{S_T1}, s{S_WC}, {W3WAVE}")
    A(f"s_add_u32 s{S_T1}, s{S_T1}, {A_W3ST}")
    for i in range(13):
        A(f"s_add_u32 m0, s{S_T1}, {1024*i}")
        A(f"s_add_u32 s{S_T2}, s{S_T0}, {(i//5)*16*1280}")
        A(f"buffer_load_dwordx4 v{W3R+(i%5)}, s[{SRD_M}:{SRD_M+3}], s{S_T2} offen lds")
    A.label(l)

def w3_relayout_g0(A):
    l = A.newlabel("L_w3r")
    A(f"s_cmp_eq_u32 s{S_WT}, 0")
    A(f"s_cbranch_scc0 {l}")
    A(f"s_lshl_b32 s{S_T0}, s{S_CB}, 4")
    A(f"s_add_u32 s{S_T5}, s{S_T0}, s{S_RB}")
    A(f"s_cmp_ge_u32 s{S_T5}, {NKAP}")
    A(f"s_cbranch_scc1 {l}")
    T = 24
    A(f"v_lshrrev_b32 v{T}, 4, v{V_LANE}")
    A(f"v_bfe_u32 v{T+1}, v{V_LANE}, 2, 2")
    A(f"v_lshrrev_b32 v{T+2}, 1, v{T}")
    A(f"v_lshlrev_b32 v{T+2}, 4, v{T+2}")
    A(f"v_and_b32 v{T+3}, 1, v{T}")
    A(f"v_lshl_add_u32 v{T+2}, v{T+3}, 2, v{T+2}")
    A(f"v_add_u32 v{T+3}, 8, v{T+2}")
    A(f"s_sub_u32 s{S_T0}, s{S_T5}, 48")
    A(f"s_lshl_b32 s{S_T0}, s{S_T0}, 2")
    A(f"s_mul_i32 s{S_T1}, s{S_T0}, 43")
    A(f"s_lshr_b32 s{S_T1}, s{S_T1}, 7")
    A(f"v_add_u32 v{T+4}, s{S_T0}, v{T}")
    A(f"v_mul_u32_u24 v{T+5}, 43, v{T+4}")
    A(f"v_lshrrev_b32 v{T+5}, 7, v{T+5}")
    A(f"v_mul_u32_u24 v{T+6}, 3, v{T+5}")
    A(f"v_sub_u32 v{T+4}, v{T+4}, v{T+6}")
    A(f"v_subrev_u32 v{T+5}, s{S_T1}, v{T+5}")
    A(f"v_mul_u32_u24 v{T+5}, 20, v{T+5}")
    A(f"v_lshlrev_b32 v{T+6}, 2, v{T+4}")
    A(f"v_cmp_eq_u32 vcc, 2, v{T+4}")
    A(f"v_mov_b32 v{T+7}, 16")
    A("s_nop 0")
    A(f"v_cndmask_b32 v{T+6}, v{T+6}, v{T+7}, vcc")
    A(f"v_add_u32 v{T+6}, v{T+5}, v{T+6}")
    A(f"v_add_u32 v{T+7}, 8, v{T+6}")
    A(f"s_mov_b64 s[{S_EX}:{S_EX+1}], vcc")
    A(f"s_cmp_lt_u32 s{S_T5}, 48")
    A(f"s_cselect_b64 vcc, -1, 0")
    A(f"s_cselect_b64 s[{S_EX}:{S_EX+1}], 0, s[{S_EX}:{S_EX+1}]")
    A(f"v_cndmask_b32 v{T+2}, v{T+6}, v{T+2}, vcc")
    A(f"v_cndmask_b32 v{T+3}, v{T+7}, v{T+3}, vcc")
    A(f"v_and_b32 v{T+4}, 3, v{V_LANE}")
    A(f"v_lshlrev_b32 v{T+4}, 3, v{T+4}")
    A(f"s_mul_i32 s{S_T0}, s{S_WC}, {W3WAVE}")
    A(f"s_add_u32 s{S_T0}, s{S_T0}, {A_W3ST}")
    for k in (2, 3):
        A(f"v_add_u32 v{T+k}, v{T+k}, v{T+1}")
        A(f"v_mul_u32_u24 v{T+k}, 320, v{T+k}")
        A(f"v_add_u32 v{T+k}, v{T+k}, v{T+4}")
        A(f"v_add_u32 v{T+k}, s{S_T0}, v{T+k}")
    A(f"v_mov_b32 v{T+5}, {A_ZERO}")
    A("s_nop 0")
    A(f"v_cndmask_b32 v{T+3}, v{T+3}, v{T+5}, s[{S_EX}:{S_EX+1}]")
    R = 80
    for f in range(10):
        r = R + 4*f
        A(f"ds_read_b64_tr_b16 v[{r}:{r+1}], v{T+2} offset:{32*f}")
        A(f"ds_read_b64_tr_b16 v[{r+2}:{r+3}], v{T+3} offset:{32*f}")
    A(f"s_mul_i32 s{S_T0}, s{S_WC}, {2*NKAP}")
    A(f"s_add_u32 s{S_T0}, s{S_T0}, s{S_T5}")
    A(f"s_mul_i32 s{S_T0}, s{S_T0}, 5120")
    A(f"s_add_u32 s{S_T0}, s{S_T0}, {WS_W3}")
    A(f"v_lshlrev_b32 v{T}, 4, v{V_LANE}")
    for f in range(10):
        r = R + 4*f
        if f in (0, 5): A(f"s_waitcnt lgkmcnt({10 if f == 0 else 0})")
        A(f"s_add_u32 s{S_T1}, s{S_T0}, {(f//5)*NKAP*5120 + (f%5)*1024}")
        A(f"buffer_store_dwordx4 v[{r}:{r+3}], v{T}, s[{SRD_WS}:{SRD_WS+3}], s{S_T1} offen")
    A.label(l)

def wp_reads():
    L = []
    for o in range(2):
        for s_ in range(3):
            r = V_WP + 4*(3*o+s_)
            L.append(f"ds_read_b64_tr_b16 v[{r}:{r+1}], v{[V_EWP0,V_EWP1][o]} offset:{320*s_+32*o}")
            if s_ < 2:
                L.append(f"ds_read_b64_tr_b16 v[{r+2}:{r+3}], v{[V_EWP0,V_EWP1][o]} offset:{320*s_+160+32*o}")
    return L

def a_loop2(A):
    group_skew_begin(A)
    for S in range(10):
        A("s_barrier")
        reads = []
        for j in range(4):
            reads += xr(A_OP[j], S, j) + a_wreads(S, j, A_OP[j])
        writes = []
        if S+1 < 10 and not OPT.get("no_norm"):
            writes = [norm_write(S+1, 0), norm_write(S+1, 1)]
        dma = [] if OPT.get("no_dma") else a_dma(S+2)
        grp = [dma[i:i+3] for i in range(0, len(dma), 3)]
        mode = OPT.get("aL", "rwd")
        if mode == "rwd":
            seq = reads + writes + dma
        elif mode == "wrd":
            seq = writes + reads + dma
        elif mode == "drw":
            seq = dma + reads + writes
        else:
            seq = []
            per = 6
            for i in range(0, len(reads), per):
                if grp: seq += grp.pop(0)
                seq += reads[i:i+per]
            for g in grp: seq += g
            seq += writes
        for x in seq: A(x)
        TDA = OPT.get("atouch", 0)
        if TDA and S+TDA < 10:
            A(f"buffer_load_dword v{V_DUM}, v{V_TCH}, s[{SRD_W}:{SRD_W+3}], s{S_TAB+S+TDA} offen")
        if S == 9:
            for x in wp_reads(): A(x)
            w3_loads_g0(A)
        if S+1 < 10:
            n = 4 if S+2 < 10 else 0
            if TDA:
                n += (1 if S+TDA < 10 else 0) + (1 if (S >= 1 and S-1+TDA < 10) else 0)
            A(f"s_waitcnt vmcnt({n}) lgkmcnt(0)")
        else:
            A("s_waitcnt lgkmcnt(0)")
        A("s_barrier")
        fill = (norm_valu(S+2, 0) + norm_valu(S+2, 1)) if S+2 < 10 else []
        if S == 8:
            fill = w3_voffs()
        if S == 9:
            fill = [f"v_mov_b32 v{V_WP+10}, 0", f"v_mov_b32 v{V_WP+11}, 0", f"v_mov_b32 v{V_WP+22}, 0", f"v_mov_b32 v{V_WP+23}, 0"]
        mf = []
        for j in range(4):
            b = A_OP[j]
            for a_ in range(2):
                for tau in range(2):
                    c = V_ACC + 16*(2*tau+a_)
                    mf.append(f"v_mfma_f32_32x32x16_bf16 v[{c}:{c+15}], v[{b+8+4*a_}:{b+11+4*a_}], v[{b+4*tau}:{b+3+4*tau}], v[{c}:{c+15}]")
        mfma_block(A, mf, fill)
    group_skew_end(A)

V_QB = [104, 116]
V_PV = [128, 134]
V_E = 40
def a_epilogue(A, prof, opts, est):
    EP, EN, PH = 224, 40, 140
    T = 24
    AK = 60
    for c in range(5):
        A(f"v_xor_b32 v{T}, {16*c}, v{V_ES16}")
        A(f"v_add_u32 v{AK+c}, v{V_EROW}, v{T}")
    A(f"v_lshrrev_b32 v{T+1}, 5, v{V_LANE}")
    A(f"v_add_u32 v{T}, 5, v{T+1}")
    A(f"v_lshlrev_b32 v{T}, 4, v{T}")
    A(f"v_xor_b32 v{T}, v{T}, v{V_ES16}")
    A(f"v_add_u32 v{AK+5}, v{V_EROW}, v{T}")
    A(f"v_xor_b32 v{T}, {16*7}, v{V_ES16}")
    A(f"v_add_u32 v{T}, v{V_EROW}, v{T}")
    A(f"v_lshl_add_u32 v{AK+6}, v{T+1}, 3, v{T}")
    A(f"v_lshlrev_b32 v{AK+7}, 4, v{V_LANE}")
    A(f"v_lshlrev_b32 v{AK+9}, 3, v{V_LANE}")
    A(f"v_lshlrev_b32 v{T}, 12, v{T+1}")
    for c in range(5): A(f"v_add_u32 v{AK+c}, v{AK+c}, v{T}")
    A(f"s_lshl_b32 s{S_T0}, s{S_RB}, 1")
    A(f"s_add_u32 s{S_T0}, s{S_T0}, s{S_WT}")
    A(f"s_lshl_b32 s{S_T0}, s{S_T0}, 5")
    A(f"s_lshl_b32 s{S_T1}, s{S_CB}, 2")
    A(f"s_add_u32 s{S_T0}, s{S_T0}, s{S_T1}")
    A(f"s_add_u32 s{S_T0}, s{S_T0}, s{S_WC}")
    A(f"s_mul_i32 s{S_T0}, s{S_T0}, 2560")
    A(f"s_add_u32 s{S_T4}, s{S_T0}, {WS_PQ}")
    A(f"v_mov_b32 v68, {L2E}")
    for tau in range(2):
        a0, a1 = V_ACC + 32*tau, V_ACC + 32*tau + 16
        QB, PV = V_QB[tau], V_PV[tau]
        for j in range(8): A(f"v_cvt_pk_bf16_f32 v{QB+j}, v{a0+2*j}, v{a0+2*j+1}")
        for j in range(2): A(f"v_cvt_pk_bf16_f32 v{QB+8+j}, v{a1+2*j}, v{a1+2*j+1}")
        A(f"v_mov_b32 v{QB+10}, 0"); A(f"v_mov_b32 v{QB+11}, 0")
        for j in range(6): A(f"v_cvt_pk_bf16_f32 v{PV+j}, v{a1+4+2*j}, v{a1+5+2*j}")
        A("s_mov_b32 exec_lo, 0")
        A(f"v_mov_b32 v{PV+4}, 0x3f80")
        A(f"v_mov_b32 v{PV+5}, 0")
        A("s_mov_b32 exec_lo, -1")
        for o, P in ((0, a0), (1, a1)):
            for s_ in range(3):
                c = "0" if s_ == 0 else f"v[{P}:{P+15}]"
                A(f"v_mfma_f32_32x32x16_bf16 v[{P}:{P+15}], v[{V_WP+4*(3*o+s_)}:{V_WP+4*(3*o+s_)+3}], v[{QB+4*s_}:{QB+4*s_+3}], {c}")
        A(f"ds_write_b128 v{AK+5}, v[{PV}:{PV+3}] offset:{4096*tau}")
        A(f"ds_write_b64 v{AK+6}, v[{PV+4}:{PV+5}] offset:{4096*tau}")
    est(A, 1)
    p0 = [V_ACC+i for i in range(16)] + [V_ACC+16+i for i in range(4)]
    p1 = [V_ACC+32+i for i in range(16)] + [V_ACC+48+i for i in range(4)]
    A("s_nop 7")
    A("s_nop 3")
    for i in range(20): A(f"v_permlane32_swap_b32 v{p0[i]}, v{p1[i]}")
    PQP = 104
    A("s_nop 1")
    for i in range(10): A(f"v_cvt_pk_bf16_f32 v{PQP+i}, v{p0[2*i]}, v{p0[2*i+1]}")
    A(f"buffer_store_dwordx4 v[{PQP}:{PQP+3}], v{AK+7}, s[{SRD_WS}:{SRD_WS+3}], s{S_T4} offen")
    A(f"buffer_store_dwordx4 v[{PQP+4}:{PQP+7}], v{AK+7}, s[{SRD_WS}:{SRD_WS+3}], s{S_T4} offen offset:1024")
    A(f"buffer_store_dwordx2 v[{PQP+8}:{PQP+9}], v{AK+9}, s[{SRD_WS}:{SRD_WS+3}], s{S_T4} offen offset:2048")
    softmax_block(A, p1, EP, EN, [PH+i for i in range(20)], T, 68)
    for c in range(5):
        A(f"ds_write_b128 v{AK+c}, v[{PH+4*c}:{PH+4*c+3}]")
    est(A, 2)
    if not opts.get("noW3"):
        A("s_waitcnt vmcnt(3)")
        w3_relayout_g0(A)
    A("s_waitcnt lgkmcnt(0)")
    A("s_barrier")
    KA1, KB1 = T, T+1
    A(f"v_xor_b32 v{KA1}, 32, v{V_EKA}")
    A(f"v_add_u32 v{KA1}, 512, v{KA1}")
    A(f"v_xor_b32 v{KB1}, 32, v{V_EKB}")
    A(f"v_add_u32 v{KB1}, 512, v{KB1}")
    FR = 80
    P0 = 224
    for ks in range(8):
        r = FR + 8*ks
        A(f"ds_read_b64_tr_b16 v[{r}:{r+1}], v{V_EKA} offset:{2048*ks}")
        A(f"ds_read_b64_tr_b16 v[{r+2}:{r+3}], v{KA1} offset:{2048*ks}")
        A(f"ds_read_b64_tr_b16 v[{r+4}:{r+5}], v{V_EKB} offset:{2048*ks}")
        A(f"ds_read_b64_tr_b16 v[{r+6}:{r+7}], v{KB1} offset:{2048*ks}")
        if ks == 2:
            A(f"s_lshl_b32 s{S_T0}, s{S_RB}, 5")
            A(f"s_lshl_b32 s{S_T1}, s{S_CB}, 2")
            A(f"s_add_u32 s{S_T0}, s{S_T0}, s{S_T1}")
            A(f"s_add_u32 s{S_T0}, s{S_T0}, s{S_WC}")
            A(f"s_mul_i32 s{S_T0}, s{S_T0}, 5120")
            A(f"s_lshl_b32 s{S_T1}, s{S_WT}, 12")
            A(f"s_add_u32 s{S_T0}, s{S_T0}, s{S_T1}")
            A(f"s_add_u32 s{S_T0}, s{S_T0}, {WS_KV}")
    for ks in range(8):
        r = FR + 8*ks
        A(f"s_waitcnt lgkmcnt({min(15, 4*(7-ks))})")
        c = "0" if ks == 0 else f"v[{P0}:{P0+15}]"
        A(f"v_mfma_f32_32x32x16_bf16 v[{P0}:{P0+15}], v[{r}:{r+3}], v[{r+4}:{r+7}], {c}")
    A(f"v_lshlrev_b32 v{T+2}, 4, v{V_LANE}")
    A(f"v_and_b32 v{T+3}, 31, v{V_LANE}")
    A(f"v_cmp_gt_u32 vcc, 21, v{T+3}")
    A("s_nop 7")
    A("s_nop 1")
    A(f"s_and_saveexec_b64 s[{S_EX}:{S_EX+1}], vcc")
    A(f"buffer_store_dwordx4 v[{P0}:{P0+3}], v{T+2}, s[{SRD_WS}:{SRD_WS+3}], s{S_T0} offen")
    A(f"s_cmp_eq_u32 s{S_WT}, 0")
    l = A.newlabel("L_kvskip")
    A(f"s_cbranch_scc0 {l}")
    for g in range(1, 4):
        A(f"buffer_store_dwordx4 v[{P0+4*g}:{P0+4*g+3}], v{T+2}, s[{SRD_WS}:{SRD_WS+3}], s{S_T0} offen offset:{1024*g}")
    A.label(l)
    A(f"s_mov_b64 exec, s[{S_EX}:{S_EX+1}]")

def a_path(A, prof, opts):
    if OPT.get("cpf"):
        A.label("L_a_code")
        code_prefetch(A, None, "L_k1_end", 24, 21, 44+16)
    def mid1(A):
        srd(A, SRD_W, S_QKVP, 640*3840)
        offset_table(A, 10, 64*3840, 640*3840, 64*3840)
        srd(A, SRD_WS, S_WSP, WS_SIZE)
        x_read_addrs(A)
        T = 30
        A(f"v_lshrrev_b32 v{T}, 4, v{V_LANE}")
        A(f"v_and_b32 v27, 3, v{V_LANE}")
        A(f"v_lshl_add_u32 v{T}, v{T}, 2, v27")
        A(f"v_bfe_u32 v27, v{V_LANE}, 2, 2")
        A(f"s_lshl_b32 s{S_T0}, s{S_WV}, 2")
        A(f"v_add_u32 v27, s{S_T0}, v27")
        A(f"v_mul_u32_u24 v27, 3840, v27")
        A(f"s_mul_i32 s{S_T1}, s{S_CB}, 160")
        A(f"v_add_u32 v27, s{S_T1}, v27")
        A(f"v_cmp_gt_u32 vcc, 10, v{T}")
        A(f"v_mov_b32 v28, 1120")
        A(f"v_lshl_add_u32 v29, v{T}, 4, v27")
        A(f"v_cndmask_b32 v28, v28, 0, vcc")
        A(f"v_add_u32 v{V_WD}, v29, v28")
        A(f"v_min_u32 v24, 14, v{T}")
        A(f"v_cmp_eq_u32 vcc, 4, v{T}")
        A(f"v_mov_b32 v25, 3")
        A("s_nop 0")
        A(f"v_cndmask_b32 v24, v24, v25, vcc")
        A(f"v_cmp_gt_u32 vcc, 5, v{T}")
        A(f"v_mov_b32 v25, 2480")
        A(f"v_mov_b32 v26, 1376")
        A(f"v_cndmask_b32 v25, v25, v26, vcc")
        A(f"v_lshl_add_u32 v24, v24, 4, v27")
        A(f"v_add_u32 v{V_WD+1}, v24, v25")
        A(f"v_add_u32 v{V_WD+2}, {32*3840}, v{V_WD}")
        A(f"v_add_u32 v{V_WD+3}, {32*3840}, v{V_WD+1}")
        A(f"s_lshl_b32 s{S_LDSW}, s{S_WV}, 11")
        A(f"s_add_u32 s{S_LDSW}, s{S_LDSW}, {A_WBASE}")
        if OPT.get("atouch"):
            A(f"s_lshl_b32 s{S_T0}, s{S_RBL}, 4")
            A(f"s_lshl_b32 s{S_T1}, s{S_WV}, 1")
            A(f"s_add_u32 s{S_T0}, s{S_T0}, s{S_T1}")
            A(f"s_mul_i32 s{S_T0}, s{S_T0}, 3840")
            A(f"s_mul_i32 s{S_T1}, s{S_CB}, 160")
            A(f"s_and_b32 s{S_T1}, s{S_T1}, 0xffffff80")
            A(f"s_add_u32 s{S_T0}, s{S_T0}, s{S_T1}")
            A(f"v_and_b32 v25, 7, v{V_LANE}")
            A(f"v_min_u32 v25, 5, v25")
            A(f"v_lshrrev_b32 v24, 1, v25")
            A(f"v_mul_u32_u24 v24, 1280, v24")
            A(f"v_and_b32 v25, 1, v25")
            A(f"v_lshl_add_u32 v25, v25, 7, v24")
            A(f"v_bfe_u32 v24, v{V_LANE}, 3, 1")
            A(f"v_mul_u32_u24 v24, 3840, v24")
            A(f"v_add_u32 v25, v25, v24")
            A(f"v_add_u32 v{V_TCH}, s{S_T0}, v25")
        old = G.V_T; oldb = G.WBASE
        G.V_T = 24; G.WBASE = A_WBASE
        G.a_tr_addr(A, 0, V_WB)
        G.a_tr_addr(A, 1, V_WB+2)
        G.V_T = old; G.WBASE = oldb
        A(f"v_add_u32 v{V_WB+1}, {2*A_DSLOT}, v{V_WB}")
        A(f"v_add_u32 v{V_WB+3}, {2*A_DSLOT}, v{V_WB+2}")
    def mid2(A):
        a_addr_setup(A)
        for i in range(64): A(f"v_mov_b32 v{V_ACC+i}, 0")
        A(f"v_lshlrev_b32 v24, 4, v{V_LANE}")
        A(f"v_add_u32 v24, {A_ZERO}, v24")
        A(f"ds_write_b128 v24, v[{V_ACC}:{V_ACC+3}]")
    def after_x(A):
        for x in a_dma(0): A(x)
        srd(A, SRD_M, S_PHIP, 25600)
        A(f"v_lshlrev_b32 v24, 4, v{V_LANE}")
        A(f"s_mul_i32 s{S_T0}, s{S_CB}, 3200")
        A(f"s_lshl_b32 s{S_T1}, s{S_WC}, 10")
        A(f"s_add_u32 s{S_T0}, s{S_T0}, s{S_T1}")
        A(f"s_add_u32 m0, s{S_T1}, {A_PHI}")
        A("s_nop 0")
        A(f"buffer_load_dwordx4 v24, s[{SRD_M}:{SRD_M+3}], s{S_T0} offen lds")
        if OPT.get("tlbw"):
            A(f"v_lshlrev_b32 v24, 20, v{V_LANE}")
            A(f"v_min_u32 v24, {(24<<20)-4}, v24")
            A(f"buffer_load_dword v21, v24, s[{SRD_WS}:{SRD_WS+3}], 0 offen")
            return 6
        return 5
    x_phase(A, mid1, mid2, after_x)
    stamp(A, 1, prof)
    for g in range(2):
        for x in norm_valu(0, g): A(x)
        A(norm_write(0, g))
    for x in a_dma(1): A(x)
    for g in range(2):
        for x in norm_valu(1, g): A(x)
    A(f"s_waitcnt vmcnt(4) lgkmcnt(0)")
    stamp(A, 2, prof)
    if OPT.get("g1prio") == "all":
        l = A.newlabel("L_pr"); A(f"s_cmp_eq_u32 s{S_WT}, 0"); A(f"s_cbranch_scc1 {l}"); A("s_setprio 2"); A.label(l)
    a_loop2(A)
    if OPT.get("g1prio") == "epi":
        l = A.newlabel("L_pr"); A(f"s_cmp_eq_u32 s{S_WT}, 0"); A(f"s_cbranch_scc1 {l}"); A("s_setprio 2"); A.label(l)
    es = opts.get("estamp")
    stamp(A, 0 if es else 3, prof)
    a_epilogue(A, prof, opts, (lambda A_, i: stamp(A_, i, True)) if es else (lambda A_, i: None))
    if es: stamp(A, 3, True)
    stamp(A, 4, prof)
```

```python
from asmlib import *
import gen_k1 as K1
import importlib

NAME = "parallel_sum__linear_kernel_hedgehog__glu_gated_bilinear__prompt"

HEADER = """; Kernarg layout for this problem (88 bytes, ptrs only, base s[0:1]):
"""

def build(kernels=("k1",), prof=False, rotmul=3, rotrb=1, opts=None):
    opts = opts or {}
    A = Asm()
    launches = []
    descs = []
    body = Asm()
    if "k1u" in kernels or "k1v" in kernels or "k1w" in kernels:
        import gen_k1u as P
        if "k1v" in kernels:
            import gen_k1v as P
            K1.OPT["no_touch"] = 1
        if "k1w" in kernels:
            import gen_k1w as P
            K1.OPT["no_touch"] = 1
        launches.append(f"; @launch kernel=k1_kernel grid=(256,1,1) block=(512,1,1) lds={P.LDS_K1}")
        kernel_header(body, "k1_kernel")
        P.prologue_head(body, prof)
        body(f"s_cmp_eq_u32 s{K1.S_TYPE}, 1")
        body("s_cbranch_scc1 L_k1_A")
        P.f_path(body, prof)
        if prof: P.write_stamps(body, 5)
        body("s_endpgm")
        body.label("L_k1_A")
        P.a_path(body, prof, opts)
        if prof: P.write_stamps(body, 5)
        body("s_endpgm")
        body.label("L_k1_end")
        descs.append(kernel_desc("k1_kernel", 256, 100, 256))
        rotmul = opts.get("rotmul", 5)
    if "k1p" in kernels:
        import gen_k1p as P
        launches.append(f"; @launch kernel=k1_kernel grid=(256,1,1) block=(512,1,1) lds={P.LDS_K1}")
        kernel_header(body, "k1_kernel")
        P.prologue_head(body, prof)
        body(f"s_cmp_eq_u32 s{K1.S_TYPE}, 1")
        body("s_cbranch_scc1 L_k1_A")
        P.f_path(body, prof)
        if prof: P.write_stamps(body, 5)
        body("s_endpgm")
        body.label("L_k1_A")
        P.a_path(body, prof, opts)
        if prof: P.write_stamps(body, 5)
        body("s_endpgm")
        descs.append(kernel_desc("k1_kernel", 256, 96, 256))
    if "k1" in kernels:
        launches.append(f"; @launch kernel=k1_kernel grid=(256,1,1) block=(512,1,1) lds={K1.LDS_K1}")
        kernel_header(body, "k1_kernel")
        K1.prologue_common(body, prof)
        body(f"s_cmp_eq_u32 s{K1.S_TYPE}, 1")
        body("s_cbranch_scc1 L_k1_A")
        K1.f_path(body, prof)
        if prof: K1.write_stamps(body, 5)
        body("s_endpgm")
        body.label("L_k1_A")
        if hasattr(K1, "a_path") and not opts.get("noA"):
            K1.a_path(body, prof, opts)
            if prof: K1.write_stamps(body, 5)
        body("s_endpgm")
        descs.append(kernel_desc("k1_kernel", 256, 96, 256))
    for extra in ("k2", "k2b", "k3", "k3f", "k3g", "k3h", "k3s", "k3i"):
        if extra in kernels:
            mod = importlib.import_module("gen_" + extra)
            launches.append(mod.launch_line())
            kernel_header(body, extra[:2] + "_kernel")
            mod.emit(body, prof, opts)
            descs.append(mod.desc())
    txt = HEADER + "\n".join(launches) + "\n"
    txt += '.amdgcn_target "amdgcn-amd-amdhsa--gfx950"\n'
    txt += f".set ROTMUL, {rotmul}\n.set ROTRB, {rotrb}\n"
    body.label("L_text_end")
    txt += ".text\n" + body.text()
    txt += '.section .rodata,"a"\n' + "".join(descs)
    return txt

if __name__ == "__main__":
    import sys
    open(sys.argv[1], "w").write(build())
```

```python
from asmlib import *
import gen_k1 as G
from gen_k1 import (WS_H, WS_O, WS_PQ, WS_KV, WS_W3, WS_SIZE, WS_DBG, S_XP, S_QKVP, SRD_X, SRD_W, SRD_WS, SRD_M,
    S_PHIP, S_WOP, S_WGP, S_WUP, S_WDP, S_WSP, S_WV, S_RB, S_CB, S_ROT, S_TYPE, S_LDSW, S_T0, S_T1, S_MASK, S_ONES,
    S_T2, S_T3, S_WT, S_WC, S_T4, S_EX, V_LANE, V_T, V_N, V_X, V_ACC, V_R, V_B, XSLOT, WBASE, F_SLOT, F_UP, F_R, flat)

OPT = G.OPT
S_RBL, S_T5 = 41, 42
S_TAB = 64
S_ST = 84
LDS_K1 = 163840
A_R2 = 3
A_DSLOT = 32768
G.A_PHI = WBASE + A_R2*A_DSLOT
G.A_ZERO = G.A_PHI + 4096
G.A_W3ST = 65536
A_OP = [40, 56, 224, 240]
F_OP = [40, 60]
V_WD = 2
V_WB = 6
V_XR = 10
V_XW = 14
V_RR, V_BB = 16, 36
V_TCH, V_DUM = 22, 21
VR = [18, 19]; VB = [20, 23]
U = 24
PK = [32, 36]

def stamp(A, i, en):
    if en:
        if OPT.get("rt"): A(f"s_memrealtime s[{S_ST+2*i}:{S_ST+2*i+1}]")
        else: A(f"s_memtime s[{S_ST+2*i}:{S_ST+2*i+1}]")

def norm_valu(t, g):
    x = V_X + 8*t + 4*g
    L = []
    for r in range(4):
        L.append(f"v_lshlrev_b32 v{U+2*r}, 16, v{x+r}")
        L.append(f"v_and_b32 v{U+2*r+1}, s{S_MASK}, v{x+r}")
    for r in range(8):
        L.append(f"v_fma_f32 v{U+r}, v{U+r}, v{VR[g]}, v{VB[g]}")
    for r in range(4):
        L.append(f"v_cvt_pk_bf16_f32 v{PK[g]+r}, v{U+2*r}, v{U+2*r+1}")
    return L
def norm_write(t, g):
    return f"ds_write_b128 v{V_XW+g}, v[{PK[g]}:{PK[g]+3}] offset:{(t&1)*XSLOT}"

def xr(dst, t, t4):
    o = (t&1)*XSLOT
    return [f"ds_read_b128 v[{dst}:{dst+3}], v{V_XR+t4} offset:{o}", f"ds_read_b128 v[{dst+4}:{dst+7}], v{V_XR+t4} offset:{o+4096}"]

def f_dma(s):
    if s >= 20: return []
    L = []
    for i in range(3):
        L.append([f"s_add_u32 m0, s{S_LDSW}, {(s % F_R)*F_SLOT + i*1024}"])
        L.append([f"buffer_load_dwordx4 v{V_WD+i}, s[{SRD_W}:{SRD_W+3}], s{S_TAB+s} offen lds"])
    out = []
    for i in range(3):
        out += [L[2*i][0], "s_nop 0", L[2*i+1][0]]
    return out
def f_touch(s):
    if s >= 20: return []
    return [f"buffer_load_dword v{V_DUM}, v{V_TCH}, s[{SRD_W}:{SRD_W+3}], s{S_TAB+s} offen"]
def f_wreads(s, j, b):
    sl = s % F_R
    base = V_WB + (sl >> 1)
    o = (sl & 1)*F_SLOT
    return [f"ds_read_b64_tr_b16 v[{b+8+4*ft+2*e2}:{b+8+4*ft+2*e2+1}], v{base} offset:{o+j*6144+e2*1536+ft*512}" for ft in range(3) for e2 in range(2)]

TD = 6
def vm_ops_F(s):
    return (3 if 0 <= s+4 < 20 else 0) + (1 if (s+TD < 20 and not OPT.get("no_touch")) else 0)

def a_dma(S):
    if S >= 10: return []
    out = []
    for b in range(2):
        for i in range(2):
            out += [f"s_add_u32 m0, s{S_LDSW}, {(S % A_R2)*A_DSLOT + b*16384 + i*1024}", "s_nop 0",
                    f"buffer_load_dwordx4 v{V_WD+2*b+i}, s[{SRD_W}:{SRD_W+3}], s{S_TAB+S} offen lds"]
    return out
def a_touch(S):
    if S >= 10: return []
    return [f"buffer_load_dword v{V_DUM}, v{V_TCH}, s[{SRD_W}:{SRD_W+3}], s{S_TAB+S} offen"]
def a_wreads(S, j, b):
    sl = S % A_R2
    L = []
    for a_ in range(2):
        base = V_WB + 2*a_ + (1 if sl == 2 else 0)
        o = (sl & 1)*A_DSLOT if sl < 2 else 0
        for e2 in range(2):
            L.append(f"ds_read_b64_tr_b16 v[{b+8+4*a_+2*e2}:{b+8+4*a_+2*e2+1}], v{base} offset:{o+(j>>1)*16384+(j&1)*8192+e2*2048}")
    return L
ATD = 4
def vm_ops_A(S):
    return (4 if 0 <= S+2 < 10 else 0) + (1 if (S+ATD < 10 and not OPT.get("no_touch")) else 0)

def mfma_block(A, mf, fill):
    if OPT.get("prio"): A("s_setprio 1")
    if OPT.get("no_norm"): fill = []
    interleave(A, mf, fill)
    if OPT.get("prio"): A("s_setprio 0")

def group_skew_begin(A):
    l1 = A.newlabel("L_g0")
    A(f"s_cmp_eq_u32 s{S_WT}, 0")
    A(f"s_cbranch_scc1 {l1}")
    A("s_barrier")
    A.label(l1)
def group_skew_end(A):
    l2 = A.newlabel("L_g1")
    A(f"s_cmp_eq_u32 s{S_WT}, 0")
    A(f"s_cbranch_scc0 {l2}")
    A("s_barrier")
    A.label(l2)

def f_loop(A):
    group_skew_begin(A)
    for s in range(20):
        t, par = s >> 1, s & 1
        A("s_barrier")
        reads = []
        for j in range(2):
            reads += xr(F_OP[j], t, 2*par+j) + f_wreads(s, j, F_OP[j])
        writes = [norm_write(t+1, par)] if (t+1 < 10 and not OPT.get("no_norm")) else []
        dma = [] if OPT.get("no_dma") else f_dma(s+4)
        mode = OPT.get("fL", "rwd")
        if mode == "rwd": seq = reads + writes + dma
        elif mode == "drw": seq = dma + reads + writes
        else:
            grp = [dma[i:i+3] for i in range(0, len(dma), 3)]
            seq = []
            for i in range(0, len(reads), 6):
                if grp: seq += grp.pop(0)
                seq += reads[i:i+6]
            for g in grp: seq += g
            seq += writes
        for x in seq: A(x)
        if s+TD < 20 and not OPT.get("no_touch"):
            for x in f_touch(s+TD): A(x)
        if s+1 < 20:
            n = (1 if (s-3+TD < 20 and not OPT.get("no_touch")) else 0) + sum(vm_ops_F(q) for q in range(s-2, s+1))
            A(f"s_waitcnt vmcnt({n}) lgkmcnt(0)")
        else:
            A("s_waitcnt lgkmcnt(0)")
        A("s_barrier")
        tn, gn = (t+1, 1) if par == 0 else (t+2, 0)
        fill = norm_valu(tn, gn) if tn < 10 else []
        mf = []
        for j in range(2):
            b = F_OP[j]
            for ft in range(3):
                for tau in range(2):
                    c = V_ACC + 16*(3*tau+ft)
                    mf.append(f"v_mfma_f32_32x32x16_bf16 v[{c}:{c+15}], v[{b+8+4*ft}:{b+11+4*ft}], v[{b+4*tau}:{b+3+4*tau}], v[{c}:{c+15}]")
        mfma_block(A, mf, fill)
    group_skew_end(A)

def a_loop(A):
    group_skew_begin(A)
    for S in range(10):
        A("s_barrier")
        for j in range(4):
            for x in xr(A_OP[j], S, j) + a_wreads(S, j, A_OP[j]): A(x)
        if S+1 < 10 and not OPT.get("no_norm"):
            A(norm_write(S+1, 0)); A(norm_write(S+1, 1))
        if not OPT.get("no_dma"):
            for x in a_dma(S+2): A(x)
        if S+ATD < 10 and not OPT.get("no_touch"):
            for x in a_touch(S+ATD): A(x)
        if S+1 < 10:
            n = (1 if (S-1+ATD < 10 and not OPT.get("no_touch")) else 0) + vm_ops_A(S)
            A(f"s_waitcnt vmcnt({n}) lgkmcnt(0)")
        else:
            A("s_waitcnt lgkmcnt(0)")
        A("s_barrier")
        fill = (norm_valu(S+2, 0) + norm_valu(S+2, 1)) if S+2 < 10 else []
        mf = []
        for j in range(4):
            b = A_OP[j]
            for a_ in range(2):
                for tau in range(2):
                    c = V_ACC + 16*(2*tau+a_)
                    mf.append(f"v_mfma_f32_32x32x16_bf16 v[{c}:{c+15}], v[{b+8+4*a_}:{b+11+4*a_}], v[{b+4*tau}:{b+3+4*tau}], v[{c}:{c+15}]")
        mfma_block(A, mf, fill)
    group_skew_end(A)

def prologue_head(A, prof):
    A("s_cmp_ge_u32 s2, 256")
    A("s_cbranch_scc0 L_k1_go")
    A("s_endpgm")
    A.label("L_k1_go")
    stamp(A, 0, prof)
    A(f"s_load_dwordx4 s[{S_XP}:{S_XP+3}], s[0:1], 0")
    A(f"s_load_dwordx4 s[{S_PHIP}:{S_PHIP+3}], s[0:1], 16")
    A(f"s_load_dwordx4 s[{S_WGP}:{S_WGP+3}], s[0:1], 40")
    A(f"s_load_dwordx2 s[{S_WDP}:{S_WDP+1}], s[0:1], 56")
    A(f"s_load_dwordx2 s[{S_WSP}:{S_WSP+1}], s[0:1], 80")
    T = V_T
    A(f"v_and_b32 v{V_LANE}, 63, v0")
    A(f"v_lshrrev_b32 v{T}, 6, v0")
    A(f"s_and_b32 s{S_T0}, s2, 7")
    A(f"v_readfirstlane_b32 s{S_WV}, v{T}")
    A(f"s_lshr_b32 s{S_T1}, s2, 3")
    A(f"s_lshr_b32 s{S_TYPE}, s{S_T1}, 4")
    if OPT.get("map", "tok") == "tok":
        A(f"s_and_b32 s{S_RBL}, s{S_T1}, 1")
        A(f"s_lshl_b32 s{S_RB}, s{S_T0}, 1")
        A(f"s_add_u32 s{S_RB}, s{S_RB}, s{S_RBL}")
        A(f"s_bfe_u32 s{S_CB}, s{S_T1}, 0x30001")
        A(f"s_lshr_b32 s{S_T4}, s{S_T1}, 1")
        A(f"s_mul_i32 s{S_T4}, s{S_T4}, ROTMUL")
        A(f"s_lshr_b32 s{S_ROT}, s{S_T4}, 3")
    elif OPT.get("map") == "m8":
        A(f"s_and_b32 s{S_RBL}, s{S_T1}, 7")
        A(f"s_bfe_u32 s{S_T3}, s{S_T1}, 0x10003")
        A(f"s_and_b32 s{S_RB}, s{S_T0}, 1")
        A(f"s_lshl_b32 s{S_RB}, s{S_RB}, 3")
        A(f"s_add_u32 s{S_RB}, s{S_RB}, s{S_RBL}")
        A(f"s_lshr_b32 s{S_CB}, s{S_T0}, 1")
        A(f"s_lshl_b32 s{S_CB}, s{S_CB}, 1")
        A(f"s_add_u32 s{S_CB}, s{S_CB}, s{S_T3}")
        A(f"s_lshr_b32 s{S_T4}, s{S_T1}, 3")
        A(f"s_mul_i32 s{S_T4}, s{S_T4}, {OPT.get('rs4', 3)}")
        A(f"s_mul_i32 s{S_ROT}, s{S_RBL}, {OPT.get('rrb', 1)}")
        A(f"s_add_u32 s{S_ROT}, s{S_ROT}, s{S_T4}")
        for _ in range(2):
            A(f"s_cmp_ge_u32 s{S_ROT}, 10")
            A(f"s_cselect_b32 s{S_T4}, 10, 0")
            A(f"s_sub_u32 s{S_ROT}, s{S_ROT}, s{S_T4}")
    else:
        A(f"s_and_b32 s{S_RBL}, s{S_T1}, 3")
        A(f"s_bfe_u32 s{S_T3}, s{S_T1}, 0x20002")
        A(f"s_and_b32 s{S_RB}, s{S_T0}, 3")
        A(f"s_lshl_b32 s{S_RB}, s{S_RB}, 2")
        A(f"s_add_u32 s{S_RB}, s{S_RB}, s{S_RBL}")
        A(f"s_lshr_b32 s{S_CB}, s{S_T0}, 2")
        A(f"s_lshl_b32 s{S_CB}, s{S_CB}, 2")
        A(f"s_add_u32 s{S_CB}, s{S_CB}, s{S_T3}")
        A(f"s_lshr_b32 s{S_T4}, s{S_T1}, 2")
        A(f"s_mul_i32 s{S_T4}, s{S_T4}, ROTMUL")
        A(f"s_lshr_b32 s{S_ROT}, s{S_T4}, 2")
        if OPT.get("rrb"):
            A(f"s_mul_i32 s{S_T4}, s{S_RBL}, {OPT['rrb']}")
            A(f"s_add_u32 s{S_ROT}, s{S_ROT}, s{S_T4}")
            for _ in range(2):
                A(f"s_cmp_ge_u32 s{S_ROT}, 10")
                A(f"s_cselect_b32 s{S_T4}, 10, 0")
                A(f"s_sub_u32 s{S_ROT}, s{S_ROT}, s{S_T4}")
    A(f"s_mov_b32 s{S_MASK}, 0xffff0000")
    A(f"s_mov_b32 s{S_ONES}, 0x3f803f80")
    A(f"s_lshr_b32 s{S_WT}, s{S_WV}, 2")
    A(f"s_and_b32 s{S_WC}, s{S_WV}, 3")
    A(f"v_lshrrev_b32 v{T}, 3, v{V_LANE}")
    A(f"s_lshl_b32 s{S_T0}, s{S_WV}, 4")
    A(f"v_add_u32 v{T}, s{S_T0}, v{T}")
    A(f"v_mul_u32_u24 v24, 1280, v{T}")
    A(f"v_and_b32 v25, 7, v{V_LANE}")
    A(f"v_lshl_add_u32 v38, v25, 4, v24")
    A(f"v_add_u32 v39, 10240, v38")
    A(f"v_bfe_u32 v24, v{T}, 1, 3")
    A(f"v_xor_b32 v24, v24, v25")
    A(f"v_lshlrev_b32 v24, 4, v24")
    A(f"v_lshl_add_u32 v{V_XW}, v{T}, 7, v24")
    A(f"v_xor_b32 v{V_XW+1}, 64, v{V_XW}")
    A(f"v_add_u32 v{V_XW+1}, 1024, v{V_XW+1}")
    A("s_waitcnt lgkmcnt(0)")
    srd(A, SRD_X, S_XP, 2048*1280)

def x_loads(A, t0, t1):
    if t0 == 0:
        A(f"s_mul_i32 s{S_T3}, s{S_RB}, 163840")
        A(f"s_lshl_b32 s{S_T4}, s{S_ROT}, 7")
    for t in range(t0, t1):
        A(f"s_add_u32 s{S_T2}, s{S_T3}, s{S_T4}")
        for g in range(2):
            r = V_X + 8*t + 4*g
            A(f"buffer_load_dwordx4 v[{r}:{r+3}], v{38+g}, s[{SRD_X}:{SRD_X+3}], s{S_T2} offen")
        A(f"s_add_u32 s{S_T4}, s{S_T4}, 128")
        A(f"s_cmp_eq_u32 s{S_T4}, 1280")
        A(f"s_cselect_b32 s{S_T4}, 0, s{S_T4}")

def offset_table(A, n, step, lim, rotmul):
    A(f"s_mul_i32 s{S_TAB}, s{S_ROT}, {rotmul}")
    for i in range(1, n):
        A(f"s_add_u32 s{S_TAB+i}, s{S_TAB+i-1}, {step}")
        A(f"s_cmp_eq_u32 s{S_TAB+i}, {lim}")
        A(f"s_cselect_b32 s{S_TAB+i}, 0, s{S_TAB+i}")

def x_read_addrs(A):
    T = V_T
    A(f"v_and_b32 v{T}, 31, v{V_LANE}")
    A(f"v_lshrrev_b32 v24, 5, v{V_LANE}")
    A(f"v_bfe_u32 v25, v{T}, 1, 3")
    A(f"v_xor_b32 v25, v25, v24")
    A(f"v_lshlrev_b32 v25, 4, v25")
    A(f"s_lshl_b32 s{S_T0}, s{S_WT}, 13")
    A(f"v_lshl_add_u32 v25, v{T}, 7, v25")
    A(f"v_add_u32 v{V_XR}, s{S_T0}, v25")
    for t4 in range(1, 4):
        A(f"v_xor_b32 v{V_XR+t4}, {32*t4}, v{V_XR}")

def stats(A, n_after):
    S0 = U
    for i in range(8): A(f"v_mov_b32 v{S0+i}, 0")
    for t in range(10):
        A(f"s_waitcnt vmcnt({n_after + 2*(9-t)})")
        for g in range(2):
            for r in range(4):
                x = V_X + 8*t + 4*g + r
                A(f"v_dot2_f32_bf16 v{S0+4*g+(r&1)}, v{x}, s{S_ONES}, v{S0+4*g+(r&1)}")
                A(f"v_dot2_f32_bf16 v{S0+4*g+2+(r&1)}, v{x}, v{x}, v{S0+4*g+2+(r&1)}")
    for g in range(2):
        A(f"v_add_f32 v{S0+4*g}, v{S0+4*g}, v{S0+4*g+1}")
        A(f"v_add_f32 v{S0+4*g+2}, v{S0+4*g+2}, v{S0+4*g+3}")
    regs = [S0, S0+2, S0+4, S0+6]
    for mode in ("quad_perm:[1,0,3,2]", "quad_perm:[2,3,0,1]", "row_half_mirror"):
        A("s_nop 1")
        for r in regs:
            A(f"v_add_f32_dpp v{r}, v{r}, v{r} {mode} row_mask:0xf bank_mask:0xf")
    A(f"s_mov_b32 s{S_T0}, 0x3acccccd")
    A(f"s_mov_b32 s{S_T1}, 0x3727c5ac")
    for g in range(2):
        m, q = S0+4*g, S0+4*g+2
        A(f"v_mul_f32 v{m}, s{S_T0}, v{m}")
        A(f"v_mul_f32 v{q}, s{S_T0}, v{q}")
        A(f"v_fma_f32 v{q}, -v{m}, v{m}, v{q}")
        A(f"v_max_f32 v{q}, 0, v{q}")
        A(f"v_add_f32 v{q}, s{S_T1}, v{q}")
        A(f"v_rsq_f32 v{VR[g]}, v{q}")
        A("s_nop 0")
        A(f"v_mul_f32 v{VB[g]}, v{m}, v{VR[g]}")
        A(f"v_sub_f32 v{VB[g]}, 0, v{VB[g]}")

def f_path(A, prof):
    T = V_T
    A(f"s_cmp_lt_u32 s{S_WV}, 4")
    A(f"s_cselect_b32 s{S_T0}, s{S_WGP}, s{S_WUP}")
    A(f"s_cselect_b32 s{S_T1}, s{S_WGP+1}, s{S_WUP+1}")
    A(f"s_mov_b32 s{SRD_W}, s{S_T0}")
    A(f"s_and_b32 s{SRD_W+1}, s{S_T1}, 0xffff")
    A(f"s_mov_b32 s{SRD_W+2}, {640*3072}")
    A(f"s_mov_b32 s{SRD_W+3}, 0x20000")
    A(f"s_lshl_b32 s{S_T0}, s{S_RBL}, 3")
    A(f"s_lshl_b32 s{S_T1}, s{S_WC}, 1")
    A(f"s_add_u32 s{S_T0}, s{S_T0}, s{S_T1}")
    A(f"s_mul_i32 s{S_T0}, s{S_T0}, 3072")
    A(f"s_mul_i32 s{S_T1}, s{S_CB}, 384")
    A(f"s_add_u32 s{S_T0}, s{S_T0}, s{S_T1}")
    A(f"v_and_b32 v{T}, 3, v{V_LANE}")
    A(f"v_min_u32 v{T}, 2, v{T}")
    A(f"v_lshlrev_b32 v{T}, 7, v{T}")
    A(f"v_bfe_u32 v24, v{V_LANE}, 2, 1")
    A(f"v_mul_u32_u24 v24, 3072, v24")
    A(f"v_add_u32 v{T}, v{T}, v24")
    A(f"v_add_u32 v{V_TCH}, s{S_T0}, v{T}")
    A(f"s_mul_i32 s{S_TAB}, s{S_ROT}, {64*3072}")
    A(f"s_add_u32 s{S_TAB+1}, s{S_TAB}, {32*3072}")
    nt0 = OPT.get("ntouch0", 2)
    for s in range(nt0):
        if s >= 2:
            A(f"s_add_u32 s{S_TAB+s}, s{S_TAB+s-1}, {32*3072}\ns_cmp_eq_u32 s{S_TAB+s}, {640*3072}\ns_cselect_b32 s{S_TAB+s}, 0, s{S_TAB+s}")
        for x in f_touch(s): A(x)
    x_loads(A, 0, 10)
    offset_table(A, 20, 32*3072, 640*3072, 64*3072)
    srd(A, SRD_WS, S_WSP, WS_SIZE)
    for s in range(nt0, TD-4+0):
        for x in f_touch(s): A(x)
    x_read_addrs(A)
    A(f"v_lshrrev_b32 v{T}, 4, v{V_LANE}")
    A(f"v_bfe_u32 v26, v{V_LANE}, 2, 2")
    A(f"v_and_b32 v27, 3, v{V_LANE}")
    A(f"s_mul_i32 s{S_T0}, s{S_WC}, 12")
    A(f"s_mul_i32 s{S_T1}, s{S_CB}, 384")
    for i in range(3):
        A(f"v_add_u32 v28, s{S_T0}, v{T}")
        if i: A(f"v_add_u32 v28, {4*i}, v28")
        A(f"v_mul_u32_u24 v24, 43, v28")
        A(f"v_lshrrev_b32 v24, 8, v24")
        A(f"v_mul_u32_u24 v25, 6, v24")
        A(f"v_sub_u32 v25, v28, v25")
        A(f"v_lshl_add_u32 v24, v24, 2, v26")
        A(f"v_mul_u32_u24 v24, 3072, v24")
        A(f"v_lshl_add_u32 v24, v25, 6, v24")
        A(f"v_lshl_add_u32 v24, v27, 4, v24")
        A(f"v_add_u32 v{V_WD+i}, s{S_T1}, v24")
    A(f"s_mul_i32 s{S_T0}, s{S_WT}, {F_UP}")
    A(f"s_mul_i32 s{S_T1}, s{S_WC}, 3072")
    A(f"s_add_u32 s{S_LDSW}, s{S_T0}, s{S_T1}")
    A(f"s_add_u32 s{S_LDSW}, s{S_LDSW}, {WBASE}")
    A(f"v_bfe_u32 v{T}, v{V_LANE}, 4, 1")
    A(f"v_mul_u32_u24 v{T}, {F_UP}, v{T}")
    A(f"v_lshrrev_b32 v24, 5, v{V_LANE}")
    A(f"v_mul_u32_u24 v24, 3072, v24")
    A(f"v_add_u32 v{T}, v{T}, v24")
    A(f"v_bfe_u32 v24, v{V_LANE}, 2, 2")
    A(f"v_lshl_add_u32 v{T}, v24, 6, v{T}")
    A(f"v_and_b32 v24, 3, v{V_LANE}")
    A(f"v_lshl_add_u32 v{T}, v24, 3, v{T}")
    A(f"s_lshr_b32 s{S_T0}, s{S_WC}, 1")
    A(f"s_lshl_b32 s{S_T0}, s{S_T0}, 8")
    A(f"s_and_b32 s{S_T1}, s{S_WC}, 1")
    A(f"s_lshl_b32 s{S_T1}, s{S_T1}, 5")
    A(f"s_add_u32 s{S_T0}, s{S_T0}, s{S_T1}")
    A(f"s_add_u32 s{S_T0}, s{S_T0}, {WBASE}")
    A(f"v_add_u32 v{V_WB}, s{S_T0}, v{T}")
    A(f"v_add_u32 v{V_WB+1}, {2*F_SLOT}, v{V_WB}")
    A(f"v_add_u32 v{V_WB+2}, {4*F_SLOT}, v{V_WB}")
    for i in range(96): A(f"v_mov_b32 v{V_ACC+i}, 0")
    nafter = 0
    for q in (-4, -3):
        for x in f_dma(q+4): A(x)
        if q+TD < 20 and not OPT.get("no_touch"):
            for x in f_touch(q+TD): A(x)
        nafter += vm_ops_F(q)
    nafter += max(0, (TD-4) - nt0)
    stamp(A, 1, prof)
    stats(A, nafter)
    for g in range(2):
        for x in norm_valu(0, g): A(x)
        A(norm_write(0, g))
    for x in norm_valu(1, 0): A(x)
    for q in (-2, -1):
        for x in f_dma(q+4): A(x)
        if q+TD < 20 and not OPT.get("no_touch"):
            for x in f_touch(q+TD): A(x)
    n = (1 if not OPT.get("no_touch") else 0) + sum(vm_ops_F(q) for q in (-3, -2, -1))
    A(f"s_waitcnt vmcnt({n}) lgkmcnt(0)")
    stamp(A, 2, prof)
    f_loop(A)
    stamp(A, 3, prof)
    f_epilogue(A)
    stamp(A, 4, prof)

def f_epilogue(A):
    T = V_T
    A(f"v_bfe_u32 v{T}, v{V_LANE}, 4, 1")
    A(f"v_lshlrev_b32 v{T}, 10, v{T}")
    A(f"v_lshrrev_b32 v40, 5, v{V_LANE}")
    A(f"v_lshl_add_u32 v{T}, v40, 8, v{T}")
    A(f"v_and_b32 v40, 15, v{V_LANE}")
    A(f"v_lshl_add_u32 v{T}, v40, 4, v{T}")
    A(f"s_lshl_b32 s{S_T0}, s{S_RB}, 1")
    A(f"s_add_u32 s{S_T0}, s{S_T0}, s{S_WT}")
    A(f"s_mul_i32 s{S_T0}, s{S_T0}, 48")
    A(f"s_mul_i32 s{S_T1}, s{S_CB}, 6")
    A(f"s_add_u32 s{S_T0}, s{S_T0}, s{S_T1}")
    A(f"s_lshr_b32 s{S_T1}, s{S_WC}, 1")
    A(f"s_add_u32 s{S_T0}, s{S_T0}, s{S_T1}")
    A(f"s_lshl_b32 s{S_T0}, s{S_T0}, 12")
    A(f"s_and_b32 s{S_T1}, s{S_WC}, 1")
    A(f"s_lshl_b32 s{S_T1}, s{S_T1}, 9")
    A(f"s_add_u32 s{S_T0}, s{S_T0}, s{S_T1}")
    if WS_H: A(f"s_add_u32 s{S_T0}, s{S_T0}, {WS_H}")
    A("s_nop 7")
    A("s_nop 3")
    st = OPT.get("stflags", "")
    for tau in range(2):
        for ft in range(3):
            c = V_ACC + 16*(3*tau+ft)
            P = V_N + 4*((3*tau+ft) & 3)
            for r in range(8):
                A(f"v_mul_f32 v{c+r}, v{c+r}, v{c+8+r}")
            for r in range(4):
                A(f"v_cvt_pk_bf16_f32 v{P+r}, v{c+2*r}, v{c+2*r+1}")
            A(f"s_add_u32 s{S_T1}, s{S_T0}, {tau*2048 + ft*8192}")
            A(f"buffer_store_dwordx4 v[{P}:{P+3}], v{T}, s[{SRD_WS}:{SRD_WS+3}], s{S_T1} offen {st}")

def a_path(A, prof, opts):
    T = V_T
    srd(A, SRD_W, S_QKVP, 640*3840)
    A(f"s_lshl_b32 s{S_T0}, s{S_RBL}, 4")
    A(f"s_lshl_b32 s{S_T1}, s{S_WV}, 1")
    A(f"s_add_u32 s{S_T0}, s{S_T0}, s{S_T1}")
    A(f"s_mul_i32 s{S_T0}, s{S_T0}, 3840")
    A(f"s_mul_i32 s{S_T1}, s{S_CB}, 160")
    A(f"s_and_b32 s{S_T1}, s{S_T1}, 0xffffff80")
    A(f"s_add_u32 s{S_T0}, s{S_T0}, s{S_T1}")
    A(f"v_and_b32 v{T}, 7, v{V_LANE}")
    A(f"v_min_u32 v{T}, 5, v{T}")
    A(f"v_lshrrev_b32 v24, 1, v{T}")
    A(f"v_mul_u32_u24 v24, 1280, v24")
    A(f"v_and_b32 v{T}, 1, v{T}")
    A(f"v_lshl_add_u32 v{T}, v{T}, 7, v24")
    A(f"v_bfe_u32 v24, v{V_LANE}, 3, 1")
    A(f"v_mul_u32_u24 v24, 3840, v24")
    A(f"v_add_u32 v{T}, v{T}, v24")
    A(f"v_add_u32 v{V_TCH}, s{S_T0}, v{T}")
    A(f"s_mul_i32 s{S_TAB}, s{S_ROT}, {64*3840}")
    for x in a_touch(0): A(x)
    x_loads(A, 0, 10)
    offset_table(A, 10, 64*3840, 640*3840, 64*3840)
    srd(A, SRD_WS, S_WSP, WS_SIZE)
    for x in a_touch(1): A(x)
    x_read_addrs(A)
    srd(A, SRD_M, S_PHIP, 25600)
    A(f"v_lshlrev_b32 v{T}, 4, v{V_LANE}")
    A(f"s_mul_i32 s{S_T0}, s{S_CB}, 3200")
    A(f"s_lshl_b32 s{S_T1}, s{S_WC}, 10")
    A(f"s_add_u32 s{S_T0}, s{S_T0}, s{S_T1}")
    A(f"s_add_u32 m0, s{S_T1}, {G.A_PHI}")
    A("s_nop 0")
    A(f"buffer_load_dwordx4 v{T}, s[{SRD_M}:{SRD_M+3}], s{S_T0} offen lds")
    A(f"v_lshrrev_b32 v{T}, 4, v{V_LANE}")
    A(f"v_and_b32 v27, 3, v{V_LANE}")
    A(f"v_lshl_add_u32 v{T}, v{T}, 2, v27")
    A(f"v_bfe_u32 v27, v{V_LANE}, 2, 2")
    A(f"s_lshl_b32 s{S_T0}, s{S_WV}, 2")
    A(f"v_add_u32 v27, s{S_T0}, v27")
    A(f"v_mul_u32_u24 v27, 3840, v27")
    A(f"s_mul_i32 s{S_T1}, s{S_CB}, 160")
    A(f"v_add_u32 v27, s{S_T1}, v27")
    A(f"v_cmp_gt_u32 vcc, 10, v{T}")
    A(f"v_mov_b32 v28, 1120")
    A(f"v_lshl_add_u32 v29, v{T}, 4, v27")
    A(f"v_cndmask_b32 v28, v28, 0, vcc")
    A(f"v_add_u32 v{V_WD}, v29, v28")
    A(f"v_min_u32 v24, 14, v{T}")
    A(f"v_cmp_eq_u32 vcc, 4, v{T}")
    A(f"v_mov_b32 v25, 3")
    A("s_nop 0")
    A(f"v_cndmask_b32 v24, v24, v25, vcc")
    A(f"v_cmp_gt_u32 vcc, 5, v{T}")
    A(f"v_mov_b32 v25, 2480")
    A(f"v_mov_b32 v26, 1376")
    A(f"v_cndmask_b32 v25, v25, v26, vcc")
    A(f"v_lshl_add_u32 v24, v24, 4, v27")
    A(f"v_add_u32 v{V_WD+1}, v24, v25")
    A(f"v_add_u32 v{V_WD+2}, {32*3840}, v{V_WD}")
    A(f"v_add_u32 v{V_WD+3}, {32*3840}, v{V_WD+1}")
    A(f"s_lshl_b32 s{S_LDSW}, s{S_WV}, 11")
    A(f"s_add_u32 s{S_LDSW}, s{S_LDSW}, {WBASE}")
    old = G.V_T
    G.V_T = 24
    G.a_tr_addr(A, 0, V_WB)
    G.a_tr_addr(A, 1, V_WB+2)
    G.V_T = old
    A(f"v_add_u32 v{V_WB+1}, {2*A_DSLOT}, v{V_WB}")
    A(f"v_add_u32 v{V_WB+3}, {2*A_DSLOT}, v{V_WB+2}")
    for i in range(64): A(f"v_mov_b32 v{V_ACC+i}, 0")
    A(f"v_lshlrev_b32 v{T}, 4, v{V_LANE}")
    A(f"v_add_u32 v{T}, {G.A_ZERO}, v{T}")
    A(f"ds_write_b128 v{T}, v[{V_ACC}:{V_ACC+3}]")
    nafter = 2
    q = -2
    for x in a_dma(0): A(x)
    if not OPT.get("no_touch"):
        for x in a_touch(q+ATD): A(x)
    nafter += vm_ops_A(q)
    stamp(A, 1, prof)
    stats(A, nafter)
    for g in range(2):
        for x in norm_valu(0, g): A(x)
        A(norm_write(0, g))
    for g in range(2):
        for x in norm_valu(1, g): A(x)
    q = -1
    for x in a_dma(1): A(x)
    if not OPT.get("no_touch"):
        for x in a_touch(q+ATD): A(x)
    n = (1 if not OPT.get("no_touch") else 0) + vm_ops_A(-1)
    A(f"s_waitcnt vmcnt({n}) lgkmcnt(0)")
    stamp(A, 2, prof)
    a_loop(A)
    stamp(A, 0 if opts.get("estamp") else 3, prof)
    A("s_waitcnt vmcnt(0)")
    A("s_barrier")
    if not opts.get("noW3"):
        G.w3_stage_loads(A)
    if opts.get("estamp"):
        opts["est"] = lambda A_, i: stamp(A_, i, True)
    G.a_epilogue(A, prof, opts)
    if opts.get("estamp"): stamp(A, 3, True)
    if not opts.get("noW3"):
        A("s_waitcnt vmcnt(0)")
        A("s_barrier")
        G.w3_relayout(A)
    stamp(A, 4, prof)

def write_stamps(A, n):
    A("s_waitcnt vmcnt(0) lgkmcnt(0)")
    A(f"s_and_b32 s{S_T1}, s{S_WV}, 3")
    A(f"s_cmp_eq_u32 s{S_T1}, 0")
    l = A.newlabel("L_st")
    A(f"s_cbranch_scc0 {l}")
    A(f"s_lshl_b32 s{S_T0}, s2, 6")
    A(f"s_lshl_b32 s{S_T1}, s{S_WT}, 5")
    A(f"s_add_u32 s{S_T0}, s{S_T0}, s{S_T1}")
    A(f"s_add_u32 s{S_T0}, s{S_T0}, {WS_DBG}")
    A(f"v_mov_b32 v{V_T}, 0")
    A(f"v_cmp_eq_u32 vcc, 0, v{V_LANE}")
    A(f"s_and_saveexec_b64 s[{S_EX}:{S_EX+1}], vcc")
    for i in range(n):
        A(f"v_mov_b32 v{V_N}, s{S_ST+2*i}")
        A(f"buffer_store_dword v{V_N}, v{V_T}, s[{SRD_WS}:{SRD_WS+3}], s{S_T0} offen offset:{4*i}")
        A("s_nop 1")
    A("s_waitcnt vmcnt(0)")
    A.label(l)
```

```python
from asmlib import *
import gen_k1u as Uu
import gen_k1v as Vv
from gen_k1v import *
import gen_k1 as G

class VM:
    def __init__(self): self.seq = []
    def add(self, tag, n=1): self.seq += [tag]*n
    def wait(self, *tags):
        idx = [k for k, e in enumerate(self.seq) if e in tags]
        if not idx: return None
        return len(self.seq) - 1 - max(idx)

XV = [21, 22]
def xload(A, vm, t):
    A(f"s_add_u32 s{S_T2}, s{S_T3}, s{S_T4}")
    for g in range(2):
        r = V_X + 8*t + 4*g
        A(f"buffer_load_dwordx4 v[{r}:{r+3}], v{XV[g]}, s[{SRD_X}:{SRD_X+3}], s{S_T2} offen")
    A(f"s_add_u32 s{S_T4}, s{S_T4}, 128")
    A(f"s_cmp_eq_u32 s{S_T4}, 1280")
    A(f"s_cselect_b32 s{S_T4}, 0, s{S_T4}")
    vm.add(("X", t), 2)

def raw_write(t, g):
    x = V_X + 8*t + 4*g
    return f"ds_write_b128 v{V_XW+g}, v[{x}:{x+3}] offset:{(t&1)*XSLOT}"

SA = 32
def stat_valu(t):
    L = []
    for g in range(2):
        for r in range(4):
            x = V_X + 8*t + 4*g + r
            lo, hi = U + 2*(r & 1), U + 2*(r & 1) + 1
            L += [f"v_lshlrev_b32 v{lo}, 16, v{x}", f"v_and_b32 v{hi}, s{S_MASK}, v{x}",
                  f"v_add_f32 v{SA+4*g}, v{SA+4*g}, v{lo}", f"v_add_f32 v{SA+4*g+1}, v{SA+4*g+1}, v{hi}",
                  f"v_fmac_f32 v{SA+4*g+2}, v{lo}, v{lo}", f"v_fmac_f32 v{SA+4*g+3}, v{hi}, v{hi}"]
    return L
def stat_dot(A, t):
    for g in range(2):
        for r in range(4):
            x = V_X + 8*t + 4*g + r
            A(f"v_dot2_f32_bf16 v{SA+4*g+(r&1)}, v{x}, s{S_ONES}, v{SA+4*g+(r&1)}")
            A(f"v_dot2_f32_bf16 v{SA+4*g+2+(r&1)}, v{x}, v{x}, v{SA+4*g+2+(r&1)}")

def stat_finish(statbase):
    L = []
    for g in range(2):
        L.append(f"v_add_f32 v{SA+4*g}, v{SA+4*g}, v{SA+4*g+1}")
        L.append(f"v_add_f32 v{SA+4*g+2}, v{SA+4*g+2}, v{SA+4*g+3}")
    regs = [SA, SA+2, SA+4, SA+6]
    for mode in ("quad_perm:[1,0,3,2]", "quad_perm:[2,3,0,1]", "row_half_mirror"):
        L.append("s_nop 1")
        for r in regs:
            L.append(f"v_add_f32_dpp v{r}, v{r}, v{r} {mode} row_mask:0xf bank_mask:0xf")
    L += [f"s_mov_b32 s{S_T0}, 0x3acccccd", f"s_mov_b32 s{S_T1}, 0x3727c5ac"]
    for g in range(2):
        L += [f"v_mul_f32 v{SA+4*g}, s{S_T0}, v{SA+4*g}", f"v_mul_f32 v{SA+4*g+2}, s{S_T0}, v{SA+4*g+2}"]
    for g in range(2): L.append(f"v_fma_f32 v{SA+4*g+2}, -v{SA+4*g}, v{SA+4*g}, v{SA+4*g+2}")
    for g in range(2): L.append(f"v_max_f32 v{SA+4*g+2}, 0, v{SA+4*g+2}")
    for g in range(2): L.append(f"v_add_f32 v{SA+4*g+2}, s{S_T1}, v{SA+4*g+2}")
    for g in range(2): L.append(f"v_rsq_f32 v{SA+4*g+2}, v{SA+4*g+2}")
    for g in range(2): L.append(f"v_sub_f32 v{VB[g]}, 0, v{SA+4*g}")
    L += [f"v_lshrrev_b32 v{U}, 3, v{V_LANE}", f"s_lshl_b32 s{S_T0}, s{S_WV}, 4", f"v_add_u32 v{U}, s{S_T0}, v{U}",
          f"v_lshlrev_b32 v{U}, 3, v{U}", f"v_add_u32 v{U}, {statbase}, v{U}"]
    for g in range(2):
        L += [f"v_mov_b32 v{U+2+2*g}, v{SA+4*g+2}", f"v_mov_b32 v{U+3+2*g}, v{VB[g]}"]
    for g in range(2):
        L += [f"ds_write_b64 v{U}, v[{U+2+2*g}:{U+3+2*g}] offset:{64*g}"]
    return L

def center_valu(t, g):
    x = V_X + 8*t + 4*g
    L = []
    for r in range(4):
        L.append(f"v_lshlrev_b32 v{U+2*r}, 16, v{x+r}")
        L.append(f"v_and_b32 v{U+2*r+1}, s{S_MASK}, v{x+r}")
    for r in range(8):
        L.append(f"v_add_f32 v{U+r}, v{U+r}, v{VB[g]}")
    for r in range(4):
        L.append(f"v_cvt_pk_bf16_f32 v{PK[g]+r}, v{U+2*r}, v{U+2*r+1}")
    return L

def cs_publish(A, ntile, csbase, CS, tmp):
    l = A.newlabel("L_cs")
    A(f"s_cmp_eq_u32 s{S_WT}, 0")
    A(f"s_cbranch_scc0 {l}")
    A(f"v_and_b32 v{tmp}, 15, v{V_LANE}")
    A(f"v_lshrrev_b32 v{tmp+1}, 4, v{V_LANE}")
    A(f"v_lshlrev_b32 v{tmp}, 6, v{tmp}")
    A(f"v_lshl_add_u32 v{tmp}, v{tmp+1}, 4, v{tmp}")
    A(f"s_mul_i32 s{S_T0}, s{S_WC}, {128*ntile}")
    A(f"s_add_u32 s{S_T0}, s{S_T0}, {csbase}")
    A(f"v_add_u32 v{tmp}, s{S_T0}, v{tmp}")
    A(f"s_mov_b32 exec_lo, 0x00030003")
    A(f"s_mov_b32 exec_hi, 0x00030003")
    for ft in range(ntile):
        A(f"ds_write_b128 v{tmp}, v[{CS[ft]}:{CS[ft]+3}] offset:{128*ft}")
    A("s_mov_b64 exec, -1")
    A.label(l)

def epi_reads(A, ntile, csbase, statbase, RB, CSR, tmp):
    A(f"v_and_b32 v{tmp}, 31, v{V_LANE}")
    A(f"s_lshl_b32 s{S_T0}, s{S_WT}, 6")
    A(f"v_add_u32 v{tmp}, s{S_T0}, v{tmp}")
    A(f"v_lshlrev_b32 v{tmp}, 3, v{tmp}")
    A(f"v_add_u32 v{tmp}, {statbase}, v{tmp}")
    A(f"ds_read_b64 v[{RB}:{RB+1}], v{tmp}")
    A(f"ds_read_b64 v[{RB+2}:{RB+3}], v{tmp} offset:256")
    A(f"v_lshrrev_b32 v{tmp+1}, 5, v{V_LANE}")
    A(f"v_lshlrev_b32 v{tmp+1}, 4, v{tmp+1}")
    A(f"s_mul_i32 s{S_T0}, s{S_WC}, {128*ntile}")
    A(f"s_add_u32 s{S_T0}, s{S_T0}, {csbase}")
    A(f"v_add_u32 v{tmp+1}, s{S_T0}, v{tmp+1}")
    for ft in range(ntile):
        for g in range(4):
            A(f"ds_read_b128 v[{CSR+16*ft+4*g}:{CSR+16*ft+4*g+3}], v{tmp+1} offset:{128*ft+32*g}")

def sel_init(A, SEL):
    A(f"v_and_b32 v{U}, 15, v{V_LANE}")
    A(f"v_bfe_u32 v{U+1}, v{V_LANE}, 4, 1")
    A(f"v_cmp_eq_u32 vcc, v{U}, v{U+1}")
    A(f"v_mov_b32 v{U+2}, s{S_ONES}")
    A("s_nop 0")
    A(f"v_cndmask_b32 v{SEL}, 0, v{U+2}, vcc")
    for i in range(1, 4): A(f"v_mov_b32 v{SEL+i}, v{SEL}")

F_CSB = WBASE + F_R*F_SLOT
F_STB = F_CSB + 1536

def plan(nstage_per_x, nseg, xissue, per_slot):
    avail = {}
    for s_, ts in xissue.items():
        for t in ts: avail[t] = s_ + 1
    sched = {}
    todo = sorted(avail)
    slots = []
    for s_ in range(nseg):
        slots.append(("C", s_)); slots.append(("L", s_+1))
    last = 0
    for kind, s_ in slots:
        if not todo: break
        n = 0
        while todo and n < per_slot[kind]:
            t = todo[0]
            ok = (avail[t] <= s_) if kind == "C" else (avail[t] <= s_ - 1)
            if not ok: break
            sched.setdefault((kind, s_), []).append(todo.pop(0)); n += 1
            last = (kind, s_)
    fin = last[1] + 1 if last[0] == "C" else last[1]
    return sched, fin

def f_path(A, prof):
    vm = VM()
    SEL, CS = 80, [84, 88, 92]
    xissue = OPT.get("fxi", {-1: [2], 0: [3], 1: [4], 2: [5], 3: [6], 4: [7], 5: [8], 6: [9]})
    sched, S_FIN = plan(2, 20, xissue, {"C": 1, "L": 1})
    KX = (S_FIN + 3)//2 + 1 if (S_FIN + 3) % 2 == 0 else (S_FIN + 4)//2
    while 2*KX - 3 <= S_FIN: KX += 1
    K0 = 2*KX
    A(f"v_mov_b32 v{XV[0]}, v38\nv_mov_b32 v{XV[1]}, v39")
    A(f"s_mul_i32 s{S_T3}, s{S_RB}, 163840")
    A(f"s_lshl_b32 s{S_T4}, s{S_ROT}, 7")
    xload(A, vm, 0); xload(A, vm, 1)
    def dma(s):
        d = f_dma(s)
        for x in d: A(x)
        if d: vm.add(("W", s), 3)
    f_addr(A, 0)
    dma(0); dma(1)
    f_addr(A, 1)
    for i in range(96): A(f"v_mov_b32 v{V_ACC+i}, 0")
    for i in range(8): A(f"v_mov_b32 v{SA+i}, 0")
    A(f"s_waitcnt vmcnt({vm.wait(('X', 0))})")
    A(raw_write(0, 0)); A(raw_write(0, 1))
    stat_dot(A, 0)
    for tt in xissue.get(-1, []): xload(A, vm, tt)
    dma(2); dma(3)
    A(f"s_waitcnt vmcnt({vm.wait(('X', 1))})")
    stat_dot(A, 1)
    if not OPT.get("fst"): stamp(A, 1, prof)
    A(f"s_waitcnt vmcnt({vm.wait(('W', 0))}) lgkmcnt(0)")
    sel_init(A, SEL)
    for i in range(4): A(f"v_mov_b32 v{CS[0]+i}, 0")
    if not OPT.get("fst"): stamp(A, 2, prof)
    group_skew_begin(A)
    for s in range(20):
        t, par = s >> 1, s & 1
        A("s_barrier")
        if OPT.get("fst") and s in OPT["fst"]: stamp(A, 1 + OPT["fst"].index(s), True)
        reads = []
        for j in range(2):
            reads += xr(F_OP[j], t, 2*par+j) + f_wreads(s, j, F_OP[j])
        for x in reads: A(x)
        if t+1 < 10:
            if t+1 < KX:
                if par == 0:
                    w = vm.wait(("X", t+1))
                    A(f"s_waitcnt vmcnt({w})")
                    A(raw_write(t+1, 0)); A(raw_write(t+1, 1))
            else:
                A(norm_write(t+1, par))
        for tt in xissue.get(s, []): xload(A, vm, tt)
        dma(s+4)
        for tt in sched.get(("L", s), []):
            A(f"s_waitcnt vmcnt({vm.wait(('X', tt))})")
            for x in stat_valu(tt): A(x)
        if s == K0: cs_publish(A, 3, F_CSB, CS, U)
        w = vm.wait(("W", s+1)) if s+1 < 20 else None
        A(f"s_waitcnt vmcnt({w}) lgkmcnt(0)" if w is not None else "s_waitcnt lgkmcnt(0)")
        if s == 0:
            for i in range(88, 96): A(f"v_mov_b32 v{i}, 0")
        A("s_barrier")
        fill = []
        for tt in sched.get(("C", s), []):
            A(f"s_waitcnt vmcnt({vm.wait(('X', tt))})")
            fill += stat_valu(tt)
        if s == S_FIN:
            fill += stat_finish(F_STB)
        tn, gn = (t+1, 1) if par == 0 else (t+2, 0)
        if tn < 10 and tn >= KX:
            fill = fill + center_valu(tn, gn)
        mf = []
        for j in range(2):
            b = F_OP[j]
            for ft in range(3):
                for tau in range(2):
                    c = V_ACC + 16*(3*tau+ft)
                    mf.append(f"v_mfma_f32_32x32x16_bf16 v[{c}:{c+15}], v[{b+8+4*ft}:{b+11+4*ft}], v[{b+4*tau}:{b+3+4*tau}], v[{c}:{c+15}]")
        mfma_block(A, mf, fill)
        if s < K0:
            l = A.newlabel("L_csm")
            A(f"s_cmp_eq_u32 s{S_WT}, 0")
            A(f"s_cbranch_scc0 {l}")
            for j in range(2):
                b = F_OP[j]
                for ft in range(3):
                    A(f"v_mfma_f32_16x16x32_bf16 v[{CS[ft]}:{CS[ft]+3}], v[{b+8+4*ft}:{b+11+4*ft}], v[{SEL}:{SEL+3}], v[{CS[ft]}:{CS[ft]+3}]")
            A.label(l)
        if s == S_FIN: A("s_waitcnt lgkmcnt(0)")
    group_skew_end(A)
    if not OPT.get("fst"): stamp(A, 3, prof)
    f_epilogue2(A)
    lz = A.newlabel("L_zf")
    A(f"s_or_b32 s{S_T0}, s2, s{S_WV}")
    A(f"s_cmp_eq_u32 s{S_T0}, 0")
    A(f"s_cbranch_scc0 {lz}")
    A(f"v_mov_b32 v40, 0\nv_mov_b32 v41, 0\nv_mov_b32 v42, 0\nv_mov_b32 v43, 0")
    A(f"v_lshlrev_b32 v44, 4, v{V_LANE}")
    A(f"s_mov_b32 s{S_T1}, {WS_FLAG}")
    A(f"buffer_store_dwordx4 v[40:43], v44, s[{SRD_WS}:{SRD_WS+3}], s{S_T1} offen")
    A.label(lz)
    stamp(A, 4, prof)

def f_epilogue2(A):
    T = 17
    RB, CSR = 40, 80
    epi_reads(A, 3, F_CSB, F_STB, RB, CSR, 44)
    A(f"v_bfe_u32 v{T}, v{V_LANE}, 4, 1")
    A(f"v_lshlrev_b32 v{T}, 10, v{T}")
    A(f"v_lshrrev_b32 v46, 5, v{V_LANE}")
    A(f"v_lshl_add_u32 v{T}, v46, 8, v{T}")
    A(f"v_and_b32 v46, 15, v{V_LANE}")
    A(f"v_lshl_add_u32 v{T}, v46, 4, v{T}")
    A(f"s_lshl_b32 s{S_T0}, s{S_RB}, 1")
    A(f"s_add_u32 s{S_T0}, s{S_T0}, s{S_WT}")
    A(f"s_mul_i32 s{S_T0}, s{S_T0}, 48")
    A(f"s_mul_i32 s{S_T1}, s{S_CB}, 6")
    A(f"s_add_u32 s{S_T0}, s{S_T0}, s{S_T1}")
    A(f"s_lshr_b32 s{S_T1}, s{S_WC}, 1")
    A(f"s_add_u32 s{S_T0}, s{S_T0}, s{S_T1}")
    A(f"s_lshl_b32 s{S_T0}, s{S_T0}, 12")
    A(f"s_and_b32 s{S_T1}, s{S_WC}, 1")
    A(f"s_lshl_b32 s{S_T1}, s{S_T1}, 9")
    A(f"s_add_u32 s{S_T0}, s{S_T0}, s{S_T1}")
    if WS_H: A(f"s_add_u32 s{S_T0}, s{S_T0}, {WS_H}")
    A("s_waitcnt lgkmcnt(0)")
    A(f"v_mul_f32 v{RB}, v{RB}, v{RB}")
    A(f"v_mul_f32 v{RB+2}, v{RB+2}, v{RB+2}")
    for tau in range(2):
        for ft in range(3):
            c = V_ACC + 16*(3*tau+ft)
            P = V_N + 4*((3*tau+ft) & 3)
            for r in range(16):
                A(f"v_fmac_f32 v{c+r}, v{CSR+16*ft+r}, v{RB+2*tau+1}")
            for r in range(8):
                A(f"v_mul_f32 v{c+r}, v{c+r}, v{c+8+r}")
            for r in range(8):
                A(f"v_mul_f32 v{c+r}, v{c+r}, v{RB+2*tau}")
            for r in range(4):
                A(f"v_cvt_pk_bf16_f32 v{P+r}, v{c+2*r}, v{c+2*r+1}")
            A(f"s_add_u32 s{S_T1}, s{S_T0}, {tau*2048 + ft*8192}")
            A(f"buffer_store_dwordx4 v[{P}:{P+3}], v{T}, s[{SRD_WS}:{SRD_WS+3}], s{S_T1} offen")

def f_addr(A, part):
    if part == 1: return f_addr1(A)
    A(f"s_cmp_lt_u32 s{S_WV}, 4")
    A(f"s_cselect_b32 s{S_T0}, s{S_WGP}, s{S_WUP}")
    A(f"s_cselect_b32 s{S_T1}, s{S_WGP+1}, s{S_WUP+1}")
    A(f"s_mov_b32 s{SRD_W}, s{S_T0}")
    A(f"s_and_b32 s{SRD_W+1}, s{S_T1}, 0xffff")
    A(f"s_mov_b32 s{SRD_W+2}, {640*3072}")
    A(f"s_mov_b32 s{SRD_W+3}, 0x20000")
    offset_table(A, 4, 32*3072, 640*3072, 64*3072)
    A(f"v_lshrrev_b32 v29, 4, v{V_LANE}")
    A(f"v_bfe_u32 v26, v{V_LANE}, 2, 2")
    A(f"v_and_b32 v27, 3, v{V_LANE}")
    A(f"s_mul_i32 s{S_T0}, s{S_WC}, 12")
    A(f"s_mul_i32 s{S_T1}, s{S_CB}, 384")
    for i in range(3):
        A(f"v_add_u32 v28, s{S_T0}, v29")
        if i: A(f"v_add_u32 v28, {4*i}, v28")
        A(f"v_mul_u32_u24 v24, 43, v28")
        A(f"v_lshrrev_b32 v24, 8, v24")
        A(f"v_mul_u32_u24 v25, 6, v24")
        A(f"v_sub_u32 v25, v28, v25")
        A(f"v_lshl_add_u32 v24, v24, 2, v26")
        A(f"v_mul_u32_u24 v24, 3072, v24")
        A(f"v_lshl_add_u32 v24, v25, 6, v24")
        A(f"v_lshl_add_u32 v24, v27, 4, v24")
        A(f"v_add_u32 v{V_WD+i}, s{S_T1}, v24")
    A(f"s_mul_i32 s{S_T0}, s{S_WT}, {F_UP}")
    A(f"s_mul_i32 s{S_T1}, s{S_WC}, 3072")
    A(f"s_add_u32 s{S_LDSW}, s{S_T0}, s{S_T1}")
    A(f"s_add_u32 s{S_LDSW}, s{S_LDSW}, {WBASE}")

def f_addr1(A):
    for i in range(4, 20):
        A(f"s_add_u32 s{S_TAB+i}, s{S_TAB+i-1}, {32*3072}")
        A(f"s_cmp_eq_u32 s{S_TAB+i}, {640*3072}")
        A(f"s_cselect_b32 s{S_TAB+i}, 0, s{S_TAB+i}")
    srd(A, SRD_WS, S_WSP, WS_SIZE)
    x_read_addrs(A)
    A(f"v_bfe_u32 v25, v{V_LANE}, 4, 1")
    A(f"v_mul_u32_u24 v25, {F_UP}, v25")
    A(f"v_lshrrev_b32 v24, 5, v{V_LANE}")
    A(f"v_mul_u32_u24 v24, 3072, v24")
    A(f"v_add_u32 v25, v25, v24")
    A(f"v_bfe_u32 v24, v{V_LANE}, 2, 2")
    A(f"v_lshl_add_u32 v25, v24, 6, v25")
    A(f"v_and_b32 v24, 3, v{V_LANE}")
    A(f"v_lshl_add_u32 v25, v24, 3, v25")
    A(f"s_lshr_b32 s{S_T0}, s{S_WC}, 1")
    A(f"s_lshl_b32 s{S_T0}, s{S_T0}, 8")
    A(f"s_and_b32 s{S_T1}, s{S_WC}, 1")
    A(f"s_lshl_b32 s{S_T1}, s{S_T1}, 5")
    A(f"s_add_u32 s{S_T0}, s{S_T0}, s{S_T1}")
    A(f"s_add_u32 s{S_T0}, s{S_T0}, {WBASE}")
    A(f"v_add_u32 v{V_WB}, s{S_T0}, v25")
    A(f"v_add_u32 v{V_WB+1}, {2*F_SLOT}, v{V_WB}")
    A(f"v_add_u32 v{V_WB+2}, {4*F_SLOT}, v{V_WB}")
```

```python
from asmlib import *
import gen_k1 as K1
import importlib

NAME = "parallel_sum__linear_kernel_hedgehog__glu_gated_bilinear__prompt"

HEADER = """; Kernarg layout for this problem (88 bytes, ptrs only, base s[0:1]):
"""

def diag(A, typ):
    l = A.newlabel("L_dg")
    A(f"s_cmp_eq_u32 s2, {128*typ}\ns_cbranch_scc0 {l}")
    A(f"s_cmp_eq_u32 s{K1.S_WV}, 4\ns_cbranch_scc0 {l}")
    A("s_waitcnt vmcnt(0) lgkmcnt(0)")
    A("s_memrealtime s[92:93]\ns_memtime s[94:95]\ns_waitcnt lgkmcnt(0)")
    A("s_sub_u32 s93, s92, s96\ns_sub_u32 s94, s94, s98")
    A(f"v_mov_b32 v4, s93\nv_mov_b32 v5, s94\nv_mov_b32 v6, s96\nv_mov_b32 v7, s92\nv_mov_b32 v8, {K1.WS_DBG + 16*typ}")
    A("s_mov_b64 exec, 1")
    A(f"buffer_store_dwordx4 v[4:7], v8, s[{K1.SRD_WS}:{K1.SRD_WS+3}], 0 offen\ns_waitcnt vmcnt(0)")
    A.label(l)

def build(kernels=("k1",), prof=False, rotmul=3, rotrb=1, opts=None):
    opts = opts or {}
    A = Asm()
    launches = []
    descs = []
    body = Asm()
    if "k1u" in kernels or "k1v" in kernels or "k1w" in kernels:
        import gen_k1u as P
        if "k1v" in kernels:
            import gen_k1v as P
            K1.OPT["no_touch"] = 1
        if "k1w" in kernels:
            import gen_k1w as P
            K1.OPT["no_touch"] = 1
        launches.append(f"; @launch kernel=k1_kernel grid=(256,1,1) block=(512,1,1) lds={P.LDS_K1}")
        kernel_header(body, "k1_kernel")
        if K1.OPT.get("diag"):
            body("s_memrealtime s[96:97]\ns_memtime s[98:99]")
        P.prologue_head(body, prof)
        body(f"s_cmp_eq_u32 s{K1.S_TYPE}, 1")
        body("s_cbranch_scc1 L_k1_A")
        P.f_path(body, prof)
        if prof: P.write_stamps(body, 5)
        if K1.OPT.get("diag"): diag(body, 0)
        body("s_endpgm")
        body.label("L_k1_A")
        P.a_path(body, prof, opts)
        if prof: P.write_stamps(body, 5)
        if K1.OPT.get("diag"): diag(body, 1)
        body("s_endpgm")
        body.label("L_k1_end")
        descs.append(kernel_desc("k1_kernel", 256, 100, 256))
        rotmul = opts.get("rotmul", 5)
    if "k1p" in kernels:
        import gen_k1p as P
        launches.append(f"; @launch kernel=k1_kernel grid=(256,1,1) block=(512,1,1) lds={P.LDS_K1}")
        kernel_header(body, "k1_kernel")
        if K1.OPT.get("diag"):
            body("s_memrealtime s[96:97]\ns_memtime s[98:99]")
        P.prologue_head(body, prof)
        body(f"s_cmp_eq_u32 s{K1.S_TYPE}, 1")
        body("s_cbranch_scc1 L_k1_A")
        P.f_path(body, prof)
        if prof: P.write_stamps(body, 5)
        body("s_endpgm")
        body.label("L_k1_A")
        P.a_path(body, prof, opts)
        if prof: P.write_stamps(body, 5)
        body("s_endpgm")
        descs.append(kernel_desc("k1_kernel", 256, 96, 256))
    if "k1" in kernels:
        launches.append(f"; @launch kernel=k1_kernel grid=(256,1,1) block=(512,1,1) lds={K1.LDS_K1}")
        kernel_header(body, "k1_kernel")
        K1.prologue_common(body, prof)
        body(f"s_cmp_eq_u32 s{K1.S_TYPE}, 1")
        body("s_cbranch_scc1 L_k1_A")
        K1.f_path(body, prof)
        if prof: K1.write_stamps(body, 5)
        body("s_endpgm")
        body.label("L_k1_A")
        if hasattr(K1, "a_path") and not opts.get("noA"):
            K1.a_path(body, prof, opts)
            if prof: K1.write_stamps(body, 5)
        body("s_endpgm")
        descs.append(kernel_desc("k1_kernel", 256, 96, 256))
    for extra in ("k2", "k2b", "k3", "k3f", "k3g", "k3h", "k3s", "k3i"):
        if extra in kernels:
            mod = importlib.import_module("gen_" + extra)
            launches.append(mod.launch_line())
            kernel_header(body, extra[:2] + "_kernel")
            mod.emit(body, prof, opts)
            descs.append(mod.desc())
    txt = HEADER + "\n".join(launches) + "\n"
    txt += '.amdgcn_target "amdgcn-amd-amdhsa--gfx950"\n'
    txt += f".set ROTMUL, {rotmul}\n.set ROTRB, {rotrb}\n"
    body.label("L_text_end")
    txt += ".text\n" + body.text()
    txt += '.section .rodata,"a"\n' + "".join(descs)
    return txt

if __name__ == "__main__":
    import sys
    open(sys.argv[1], "w").write(build())
```

```python
from asmlib import *
import gen_k1u as Uu
from gen_k1u import *
import gen_k1 as G
from gen_k1 import WS_FLAG

L2E = 0x3fb8aa3b
A_PHI, A_ZERO, A_W3ST = G.A_PHI, G.A_ZERO, 65536
A_WBASE = WBASE
V_EWP0, V_EWP1, V_EROW, V_ES16, V_EKA, V_EKB = 72, 73, 74, 75, 76, 77
TT = 24

def x_load_t(A, t):
    A(f"s_add_u32 s{S_T2}, s{S_T3}, s{S_T4}")
    for g in range(2):
        r = V_X + 8*t + 4*g
        A(f"buffer_load_dwordx4 v[{r}:{r+3}], v{38+g}, s[{SRD_X}:{SRD_X+3}], s{S_T2} offen")
    A(f"s_add_u32 s{S_T4}, s{S_T4}, 128")
    A(f"s_cmp_eq_u32 s{S_T4}, 1280")
    A(f"s_cselect_b32 s{S_T4}, 0, s{S_T4}")

S0 = 28
def dot_t(A, t):
    for g in range(2):
        for r in range(4):
            x = V_X + 8*t + 4*g + r
            A(f"v_dot2_f32_bf16 v{S0+4*g+(r&1)}, v{x}, s{S_ONES}, v{S0+4*g+(r&1)}")
            A(f"v_dot2_f32_bf16 v{S0+4*g+2+(r&1)}, v{x}, v{x}, v{S0+4*g+2+(r&1)}")

def stats_finish(A):
    for g in range(2):
        A(f"v_add_f32 v{S0+4*g}, v{S0+4*g}, v{S0+4*g+1}")
        A(f"v_add_f32 v{S0+4*g+2}, v{S0+4*g+2}, v{S0+4*g+3}")
    regs = [S0, S0+2, S0+4, S0+6]
    for mode in ("quad_perm:[1,0,3,2]", "quad_perm:[2,3,0,1]", "row_half_mirror"):
        A("s_nop 1")
        for r in regs:
            A(f"v_add_f32_dpp v{r}, v{r}, v{r} {mode} row_mask:0xf bank_mask:0xf")
    A(f"s_mov_b32 s{S_T0}, 0x3acccccd")
    A(f"s_mov_b32 s{S_T1}, 0x3727c5ac")
    for g in range(2):
        m, q = S0+4*g, S0+4*g+2
        A(f"v_mul_f32 v{m}, s{S_T0}, v{m}")
        A(f"v_mul_f32 v{q}, s{S_T0}, v{q}")
    for g in range(2):
        m, q = S0+4*g, S0+4*g+2
        A(f"v_fma_f32 v{q}, -v{m}, v{m}, v{q}")
    for g in range(2):
        A(f"v_max_f32 v{S0+4*g+2}, 0, v{S0+4*g+2}")
    for g in range(2):
        A(f"v_add_f32 v{S0+4*g+2}, s{S_T1}, v{S0+4*g+2}")
    for g in range(2):
        A(f"v_rsq_f32 v{VR[g]}, v{S0+4*g+2}")
    A("s_nop 0")
    for g in range(2):
        A(f"v_mul_f32 v{VB[g]}, v{S0+4*g}, v{VR[g]}")
    for g in range(2):
        A(f"v_sub_f32 v{VB[g]}, 0, v{VB[g]}")

def code_prefetch(A, target, nlines, vtmp, vdum, spair, cond_waves=(0, 4)):
    l = A.newlabel("L_cpf"); h = A.newlabel("L_pc")
    A(f"s_and_b32 s{S_T0}, s{S_WV}, 3")
    A(f"s_cmp_eq_u32 s{S_T0}, 0")
    A(f"s_cbranch_scc0 {l}")
    A(f"s_getpc_b64 s[{spair}:{spair+1}]")
    A.label(h)
    if target is None:
        target = h
    else:
        A(f"s_add_u32 s{spair}, s{spair}, {target}-{h}")
        A(f"s_addc_u32 s{spair+1}, s{spair+1}, 0")
    A(f"v_lshlrev_b32 v{vtmp}, 7, v{V_LANE}")
    A(f"s_lshl_b32 s{S_T0}, s{S_WT}, 13")
    A(f"v_add_u32 v{vtmp}, s{S_T0}, v{vtmp}")
    A(f"v_min_u32 v{vtmp}, {nlines}-{target}-4, v{vtmp}")
    A(f"global_load_dword v{vdum}, v{vtmp}, s[{spair}:{spair+1}]")
    A.label(l)

def x_phase(A, mid1, mid2, after_x):
    A(f"s_mul_i32 s{S_T3}, s{S_RB}, 163840")
    A(f"s_lshl_b32 s{S_T4}, s{S_ROT}, 7")
    XS = OPT.get("xs", 0)
    if XS:
        for t in range(0, XS): x_load_t(A, t)
        mid1(A)
        mid2(A)
        for i in range(8): A(f"v_mov_b32 v{S0+i}, 0")
        A("s_waitcnt vmcnt(0)")
        lead = OPT.get("xlead", 4)
        nxt = XS
        for t in range(nxt, min(10, nxt + lead)): x_load_t(A, t)
        nxt = min(10, nxt + lead)
        done = 0
        while done < XS:
            dot_t(A, done); done += 1
            if nxt < 10: x_load_t(A, nxt); nxt += 1
        while nxt < 10:
            A(f"s_waitcnt vmcnt({2*(nxt - done - 1)})")
            dot_t(A, done); done += 1
            x_load_t(A, nxt); nxt += 1
        n = after_x(A)
        for t in range(done, 10):
            A(f"s_waitcnt vmcnt({n + 2*(9-t)})")
            dot_t(A, t)
        stats_finish(A)
        return
    for t in range(0, 4): x_load_t(A, t)
    mid1(A)
    for t in range(4, 7): x_load_t(A, t)
    mid2(A)
    for i in range(8): A(f"v_mov_b32 v{S0+i}, 0")
    A(f"s_waitcnt vmcnt({2*(7-1)})")
    dot_t(A, 0)
    x_load_t(A, 7)
    A(f"s_waitcnt vmcnt({2*(8-2)})")
    dot_t(A, 1)
    x_load_t(A, 8)
    A(f"s_waitcnt vmcnt({2*(9-3)})")
    dot_t(A, 2)
    x_load_t(A, 9)
    n = after_x(A)
    for t in range(3, 10):
        A(f"s_waitcnt vmcnt({n + 2*(9-t)})")
        dot_t(A, t)
    stats_finish(A)

def f_path(A, prof):
    T = TT
    if OPT.get("cpf"):
        A.label("L_f_code")
        code_prefetch(A, None, "L_k1_A", 24, 21, 44+16)
    def mid1(A):
        A(f"s_cmp_lt_u32 s{S_WV}, 4")
        A(f"s_cselect_b32 s{S_T0}, s{S_WGP}, s{S_WUP}")
        A(f"s_cselect_b32 s{S_T1}, s{S_WGP+1}, s{S_WUP+1}")
        A(f"s_mov_b32 s{SRD_W}, s{S_T0}")
        A(f"s_and_b32 s{SRD_W+1}, s{S_T1}, 0xffff")
        A(f"s_mov_b32 s{SRD_W+2}, {640*3072}")
        A(f"s_mov_b32 s{SRD_W+3}, 0x20000")
        offset_table(A, 20, 32*3072, 640*3072, 64*3072)
        srd(A, SRD_WS, S_WSP, WS_SIZE)
        x_read_addrs(A)
        A(f"v_lshrrev_b32 v29, 4, v{V_LANE}")
        A(f"v_bfe_u32 v26, v{V_LANE}, 2, 2")
        A(f"v_and_b32 v27, 3, v{V_LANE}")
        A(f"s_mul_i32 s{S_T0}, s{S_WC}, 12")
        A(f"s_mul_i32 s{S_T1}, s{S_CB}, 384")
        for i in range(3):
            A(f"v_add_u32 v28, s{S_T0}, v29")
            if i: A(f"v_add_u32 v28, {4*i}, v28")
            A(f"v_mul_u32_u24 v24, 43, v28")
            A(f"v_lshrrev_b32 v24, 8, v24")
            A(f"v_mul_u32_u24 v25, 6, v24")
            A(f"v_sub_u32 v25, v28, v25")
            A(f"v_lshl_add_u32 v24, v24, 2, v26")
            A(f"v_mul_u32_u24 v24, 3072, v24")
            A(f"v_lshl_add_u32 v24, v25, 6, v24")
            A(f"v_lshl_add_u32 v24, v27, 4, v24")
            A(f"v_add_u32 v{V_WD+i}, s{S_T1}, v24")
        A(f"s_mul_i32 s{S_T0}, s{S_WT}, {F_UP}")
        A(f"s_mul_i32 s{S_T1}, s{S_WC}, 3072")
        A(f"s_add_u32 s{S_LDSW}, s{S_T0}, s{S_T1}")
        A(f"s_add_u32 s{S_LDSW}, s{S_LDSW}, {WBASE}")
        A(f"v_bfe_u32 v25, v{V_LANE}, 4, 1")
        A(f"v_mul_u32_u24 v25, {F_UP}, v25")
        A(f"v_lshrrev_b32 v24, 5, v{V_LANE}")
        A(f"v_mul_u32_u24 v24, 3072, v24")
        A(f"v_add_u32 v25, v25, v24")
        A(f"v_bfe_u32 v24, v{V_LANE}, 2, 2")
        A(f"v_lshl_add_u32 v25, v24, 6, v25")
        A(f"v_and_b32 v24, 3, v{V_LANE}")
        A(f"v_lshl_add_u32 v25, v24, 3, v25")
        A(f"s_lshr_b32 s{S_T0}, s{S_WC}, 1")
        A(f"s_lshl_b32 s{S_T0}, s{S_T0}, 8")
        A(f"s_and_b32 s{S_T1}, s{S_WC}, 1")
        A(f"s_lshl_b32 s{S_T1}, s{S_T1}, 5")
        A(f"s_add_u32 s{S_T0}, s{S_T0}, s{S_T1}")
        A(f"s_add_u32 s{S_T0}, s{S_T0}, {WBASE}")
        A(f"v_add_u32 v{V_WB}, s{S_T0}, v25")
        A(f"v_add_u32 v{V_WB+1}, {2*F_SLOT}, v{V_WB}")
        A(f"v_add_u32 v{V_WB+2}, {4*F_SLOT}, v{V_WB}")
    def mid2(A):
        for i in range(96): A(f"v_mov_b32 v{V_ACC+i}, 0")
    def after_x(A):
        for x in f_dma(0): A(x)
        if OPT.get("tlbw"):
            A(f"v_lshlrev_b32 v24, 20, v{V_LANE}")
            A(f"v_min_u32 v24, {(24<<20)-4}, v24")
            A(f"buffer_load_dword v21, v24, s[{SRD_WS}:{SRD_WS+3}], 0 offen")
            return 4
        return 3
    x_phase(A, mid1, mid2, after_x)
    stamp(A, 1, prof)
    for g in range(2):
        for x in norm_valu(0, g): A(x)
        A(norm_write(0, g))
    for q in (1, 2, 3):
        for x in f_dma(q): A(x)
    for x in norm_valu(1, 0): A(x)
    A(f"s_waitcnt vmcnt(9) lgkmcnt(0)")
    stamp(A, 2, prof)
    if OPT.get("g1prio") == "all":
        l = A.newlabel("L_pr"); A(f"s_cmp_eq_u32 s{S_WT}, 0"); A(f"s_cbranch_scc1 {l}"); A("s_setprio 2"); A.label(l)
    f_loop(A)
    stamp(A, 3, prof)
    f_epilogue(A)
    if OPT.get("cpf"):
        code_prefetch(A, "k3_kernel", "L_text_end", 44, 45, 44+16)
    lz = A.newlabel("L_zf")
    A(f"s_or_b32 s{S_T0}, s2, s{S_WV}")
    A(f"s_cmp_eq_u32 s{S_T0}, 0")
    A(f"s_cbranch_scc0 {lz}")
    A(f"v_mov_b32 v40, 0\nv_mov_b32 v41, 0\nv_mov_b32 v42, 0\nv_mov_b32 v43, 0")
    A(f"v_lshlrev_b32 v44, 4, v{V_LANE}")
    A(f"s_mov_b32 s{S_T1}, {WS_FLAG}")
    A(f"buffer_store_dwordx4 v[40:43], v44, s[{SRD_WS}:{SRD_WS+3}], s{S_T1} offen")
    A.label(lz)
    stamp(A, 4, prof)

def a_addr_setup(A):
    T = 24
    A(f"v_and_b32 v{T}, 3, v{V_LANE}")
    A(f"v_bfe_u32 v{T+1}, v{V_LANE}, 4, 1")
    A(f"v_lshrrev_b32 v{T+2}, 1, v{T}")
    A(f"v_lshl_add_u32 v{T+2}, v{T+1}, 1, v{T+2}")
    A(f"v_and_b32 v{T+3}, 1, v{T}")
    A(f"v_lshrrev_b32 v{T+4}, 5, v{V_LANE}")
    A(f"v_bfe_u32 v{T+5}, v{V_LANE}, 2, 2")
    A(f"v_mul_u32_u24 v{T+5}, 40, v{T+5}")
    A(f"v_lshl_add_u32 v{T+5}, v{T+2}, 3, v{T+5}")
    A(f"s_mul_i32 s{S_T0}, s{S_WC}, 800")
    A(f"s_add_u32 s{S_T0}, s{S_T0}, {A_PHI}")
    A(f"v_add_u32 v{T+5}, s{S_T0}, v{T+5}")
    A(f"v_mov_b32 v{T+6}, {A_ZERO}")
    A(f"v_cmp_eq_u32 vcc, v{T+3}, v{T+4}")
    A("s_nop 1")
    A(f"v_cndmask_b32 v{V_EWP0}, v{T+6}, v{T+5}, vcc")
    A(f"v_cmp_eq_u32 vcc, 0, v{T+2}")
    A("s_nop 1")
    A(f"v_cndmask_b32 v{V_EWP1}, v{T+6}, v{V_EWP0}, vcc")
    A(f"v_and_b32 v{T}, 31, v{V_LANE}")
    A(f"v_bfe_u32 v{T+1}, v{T}, 1, 1")
    A(f"v_lshlrev_b32 v{T+1}, 2, v{T+1}")
    A(f"v_bfe_u32 v{T+2}, v{T}, 2, 1")
    A(f"v_lshl_or_b32 v{T+1}, v{T+2}, 1, v{T+1}")
    A(f"v_and_b32 v{T+2}, 1, v{T}")
    A(f"v_or_b32 v{T+1}, v{T+1}, v{T+2}")
    A(f"v_lshlrev_b32 v{V_ES16}, 4, v{T+1}")
    A(f"s_lshl_b32 s{S_T0}, s{S_WC}, 14")
    A(f"s_lshl_b32 s{S_T1}, s{S_WT}, 13")
    A(f"s_add_u32 s{S_T0}, s{S_T0}, s{S_T1}")
    A(f"v_lshlrev_b32 v{T+2}, 7, v{T}")
    A(f"v_add_u32 v{V_EROW}, s{S_T0}, v{T+2}")
    A(f"v_bfe_u32 v{T}, v{V_LANE}, 2, 2")
    A(f"v_lshrrev_b32 v{T+1}, 1, v{T}")
    A(f"v_lshlrev_b32 v{T+1}, 2, v{T+1}")
    A(f"v_and_b32 v{T+2}, 1, v{T}")
    A(f"v_or_b32 v{T+1}, v{T+1}, v{T+2}")
    A(f"v_lshrrev_b32 v{T+2}, 5, v{V_LANE}")
    A(f"v_lshl_add_u32 v{T+2}, v{T+2}, 3, v{T}")
    A(f"v_lshlrev_b32 v{T+2}, 7, v{T+2}")
    A(f"s_lshl_b32 s{S_T0}, s{S_WC}, 14")
    A(f"v_add_u32 v{T+2}, s{S_T0}, v{T+2}")
    A(f"v_bfe_u32 v{T+3}, v{V_LANE}, 4, 1")
    A(f"v_and_b32 v{T+4}, 3, v{V_LANE}")
    A(f"v_lshl_add_u32 v{T+3}, v{T+3}, 2, v{T+4}")
    A(f"v_and_b32 v{T+4}, 4, v{T+3}")
    A(f"v_and_b32 v{T+5}, 1, v{T+3}")
    A(f"v_lshl_add_u32 v{T+4}, v{T+5}, 1, v{T+4}")
    A(f"v_bfe_u32 v{T+5}, v{T+3}, 1, 1")
    A(f"v_add_u32 v{T+4}, v{T+4}, v{T+5}")
    A(f"v_and_b32 v{T+5}, 1, v{T+3}")
    A(f"v_add_u32 v{T+5}, 8, v{T+5}")
    A(f"s_cmp_eq_u32 s{S_WT}, 0")
    A(f"s_cselect_b64 vcc, -1, 0")
    A(f"v_cndmask_b32 v{T+4}, v{T+5}, v{T+4}, vcc")
    A(f"v_lshrrev_b32 v{T+5}, 1, v{T+4}")
    A(f"v_and_b32 v{T+4}, 1, v{T+4}")
    A(f"v_xor_b32 v{T+6}, v{T+5}, v{T+1}")
    A(f"v_lshlrev_b32 v{T+6}, 4, v{T+6}")
    A(f"v_lshl_add_u32 v{T+6}, v{T+4}, 3, v{T+6}")
    A(f"v_add_u32 v{V_EKA}, v{T+2}, v{T+6}")
    A(f"s_mov_b32 s{S_T1}, 0xfffdceba")
    A(f"v_lshlrev_b32 v{T+4}, 2, v{T+3}")
    A(f"v_lshrrev_b32 v{T+4}, v{T+4}, s{S_T1}")
    A(f"v_and_b32 v{T+4}, 15, v{T+4}")
    A(f"v_lshrrev_b32 v{T+5}, 1, v{T+4}")
    A(f"v_and_b32 v{T+4}, 1, v{T+4}")
    A(f"v_xor_b32 v{T+6}, v{T+5}, v{T+1}")
    A(f"v_lshlrev_b32 v{T+6}, 4, v{T+6}")
    A(f"v_lshl_add_u32 v{T+6}, v{T+4}, 3, v{T+6}")
    A(f"v_add_u32 v{V_EKB}, v{T+2}, v{T+6}")

V_WP = 80
W3R = 104

NKAP = 72
W3WAVE = 13312
def w3_params(A):
    A(f"s_lshl_b32 s{S_T0}, s{S_CB}, 4")
    A(f"s_add_u32 s{S_T5}, s{S_T0}, s{S_RB}")
    A(f"s_cmp_lt_u32 s{S_T5}, 48")
    A(f"s_cselect_b32 s{S_T0}, s{S_WDP}, s{S_WOP}")
    A(f"s_cselect_b32 s{S_T1}, s{S_WDP+1}, s{S_WOP+1}")
    A(f"s_mov_b32 s{S_T2}, {640*1280}")
    A(f"s_cselect_b32 s{S_T2}, {1536*1280}, s{S_T2}")
    A(f"s_mov_b32 s{SRD_M}, s{S_T0}")
    A(f"s_and_b32 s{SRD_M+1}, s{S_T1}, 0xffff")
    A(f"s_mov_b32 s{SRD_M+2}, s{S_T2}")
    A(f"s_mov_b32 s{SRD_M+3}, 0x20000")
    A(f"s_sub_u32 s{S_T0}, s{S_T5}, 48")
    A(f"s_lshl_b32 s{S_T0}, s{S_T0}, 2")
    A(f"s_mul_i32 s{S_T0}, s{S_T0}, 43")
    A(f"s_lshr_b32 s{S_T2}, s{S_T0}, 7")
    A(f"s_mul_i32 s{S_T0}, s{S_T2}, 20")
    A(f"s_lshl_b32 s{S_T1}, s{S_T5}, 5")
    A(f"s_cmp_lt_u32 s{S_T5}, 48")
    A(f"s_cselect_b32 s{S_T0}, s{S_T1}, s{S_T0}")
    A(f"s_mul_i32 s{S_T3}, s{S_T0}, 1280")

def w3_voffs():
    L = []
    for i in range(5):
        L += [f"v_add_u32 v{W3R+5}, {64*i}, v{V_LANE}",
              f"v_mul_u32_u24 v{W3R+6}, 3277, v{W3R+5}",
              f"v_lshrrev_b32 v{W3R+6}, 16, v{W3R+6}",
              f"v_mul_u32_u24 v{W3R+7}, 20, v{W3R+6}",
              f"v_sub_u32 v{W3R+7}, v{W3R+5}, v{W3R+7}",
              f"v_mul_u32_u24 v{W3R+6}, 1280, v{W3R+6}",
              f"v_lshl_add_u32 v{W3R+i}, v{W3R+7}, 4, v{W3R+6}"]
    return L

def w3_loads_g0(A):
    l = A.newlabel("L_w3l")
    A(f"s_cmp_eq_u32 s{S_WT}, 0")
    A(f"s_cbranch_scc0 {l}")
    w3_params(A)
    A(f"s_cmp_ge_u32 s{S_T5}, {NKAP}")
    A(f"s_cselect_b32 s{S_T3}, 0x7f000000, s{S_T3}")
    A(f"s_mul_i32 s{S_T1}, s{S_WC}, 320")
    A(f"s_add_u32 s{S_T0}, s{S_T3}, s{S_T1}")
    A(f"s_mul_i32 s{S_T1}, s{S_WC}, {W3WAVE}")
    A(f"s_add_u32 s{S_T1}, s{S_T1}, {A_W3ST}")
    for i in range(13):
        A(f"s_add_u32 m0, s{S_T1}, {1024*i}")
        A(f"s_add_u32 s{S_T2}, s{S_T0}, {(i//5)*16*1280}")
        A(f"buffer_load_dwordx4 v{W3R+(i%5)}, s[{SRD_M}:{SRD_M+3}], s{S_T2} offen lds")
    A.label(l)

def w3_relayout_g0(A):
    l = A.newlabel("L_w3r")
    A(f"s_cmp_eq_u32 s{S_WT}, 0")
    A(f"s_cbranch_scc0 {l}")
    A(f"s_lshl_b32 s{S_T0}, s{S_CB}, 4")
    A(f"s_add_u32 s{S_T5}, s{S_T0}, s{S_RB}")
    A(f"s_cmp_ge_u32 s{S_T5}, {NKAP}")
    A(f"s_cbranch_scc1 {l}")
    T = 24
    A(f"v_lshrrev_b32 v{T}, 4, v{V_LANE}")
    A(f"v_bfe_u32 v{T+1}, v{V_LANE}, 2, 2")
    A(f"v_lshrrev_b32 v{T+2}, 1, v{T}")
    A(f"v_lshlrev_b32 v{T+2}, 4, v{T+2}")
    A(f"v_and_b32 v{T+3}, 1, v{T}")
    A(f"v_lshl_add_u32 v{T+2}, v{T+3}, 2, v{T+2}")
    A(f"v_add_u32 v{T+3}, 8, v{T+2}")
    A(f"s_sub_u32 s{S_T0}, s{S_T5}, 48")
    A(f"s_lshl_b32 s{S_T0}, s{S_T0}, 2")
    A(f"s_mul_i32 s{S_T1}, s{S_T0}, 43")
    A(f"s_lshr_b32 s{S_T1}, s{S_T1}, 7")
    A(f"v_add_u32 v{T+4}, s{S_T0}, v{T}")
    A(f"v_mul_u32_u24 v{T+5}, 43, v{T+4}")
    A(f"v_lshrrev_b32 v{T+5}, 7, v{T+5}")
    A(f"v_mul_u32_u24 v{T+6}, 3, v{T+5}")
    A(f"v_sub_u32 v{T+4}, v{T+4}, v{T+6}")
    A(f"v_subrev_u32 v{T+5}, s{S_T1}, v{T+5}")
    A(f"v_mul_u32_u24 v{T+5}, 20, v{T+5}")
    A(f"v_lshlrev_b32 v{T+6}, 2, v{T+4}")
    A(f"v_cmp_eq_u32 vcc, 2, v{T+4}")
    A(f"v_mov_b32 v{T+7}, 16")
    A("s_nop 0")
    A(f"v_cndmask_b32 v{T+6}, v{T+6}, v{T+7}, vcc")
    A(f"v_add_u32 v{T+6}, v{T+5}, v{T+6}")
    A(f"v_add_u32 v{T+7}, 8, v{T+6}")
    A(f"s_mov_b64 s[{S_EX}:{S_EX+1}], vcc")
    A(f"s_cmp_lt_u32 s{S_T5}, 48")
    A(f"s_cselect_b64 vcc, -1, 0")
    A(f"s_cselect_b64 s[{S_EX}:{S_EX+1}], 0, s[{S_EX}:{S_EX+1}]")
    A(f"v_cndmask_b32 v{T+2}, v{T+6}, v{T+2}, vcc")
    A(f"v_cndmask_b32 v{T+3}, v{T+7}, v{T+3}, vcc")
    A(f"v_and_b32 v{T+4}, 3, v{V_LANE}")
    A(f"v_lshlrev_b32 v{T+4}, 3, v{T+4}")
    A(f"s_mul_i32 s{S_T0}, s{S_WC}, {W3WAVE}")
    A(f"s_add_u32 s{S_T0}, s{S_T0}, {A_W3ST}")
    for k in (2, 3):
        A(f"v_add_u32 v{T+k}, v{T+k}, v{T+1}")
        A(f"v_mul_u32_u24 v{T+k}, 320, v{T+k}")
        A(f"v_add_u32 v{T+k}, v{T+k}, v{T+4}")
        A(f"v_add_u32 v{T+k}, s{S_T0}, v{T+k}")
    A(f"v_mov_b32 v{T+5}, {A_ZERO}")
    A("s_nop 0")
    A(f"v_cndmask_b32 v{T+3}, v{T+3}, v{T+5}, s[{S_EX}:{S_EX+1}]")
    R = 80
    for f in range(10):
        r = R + 4*f
        A(f"ds_read_b64_tr_b16 v[{r}:{r+1}], v{T+2} offset:{32*f}")
        A(f"ds_read_b64_tr_b16 v[{r+2}:{r+3}], v{T+3} offset:{32*f}")
    A(f"s_mul_i32 s{S_T0}, s{S_WC}, {2*NKAP}")
    A(f"s_add_u32 s{S_T0}, s{S_T0}, s{S_T5}")
    A(f"s_mul_i32 s{S_T0}, s{S_T0}, 5120")
    A(f"s_add_u32 s{S_T0}, s{S_T0}, {WS_W3}")
    A(f"v_lshlrev_b32 v{T}, 4, v{V_LANE}")
    for f in range(10):
        r = R + 4*f
        if f in (0, 5): A(f"s_waitcnt lgkmcnt({10 if f == 0 else 0})")
        A(f"s_add_u32 s{S_T1}, s{S_T0}, {(f//5)*NKAP*5120 + (f%5)*1024}")
        A(f"buffer_store_dwordx4 v[{r}:{r+3}], v{T}, s[{SRD_WS}:{SRD_WS+3}], s{S_T1} offen {OPT.get('astflags', '')}")
    A.label(l)

def wp_reads():
    L = []
    for o in range(2):
        for s_ in range(3):
            r = V_WP + 4*(3*o+s_)
            L.append(f"ds_read_b64_tr_b16 v[{r}:{r+1}], v{[V_EWP0,V_EWP1][o]} offset:{320*s_+32*o}")
            if s_ < 2:
                L.append(f"ds_read_b64_tr_b16 v[{r+2}:{r+3}], v{[V_EWP0,V_EWP1][o]} offset:{320*s_+160+32*o}")
    return L

def a_loop2(A):
    group_skew_begin(A)
    for S in range(10):
        A("s_barrier")
        reads = []
        for j in range(4):
            reads += xr(A_OP[j], S, j) + a_wreads(S, j, A_OP[j])
        writes = []
        if S+1 < 10 and not OPT.get("no_norm"):
            writes = [norm_write(S+1, 0), norm_write(S+1, 1)]
        dma = [] if OPT.get("no_dma") else a_dma(S+2)
        grp = [dma[i:i+3] for i in range(0, len(dma), 3)]
        mode = OPT.get("aL", "rwd")
        if mode == "rwd":
            seq = reads + writes + dma
        elif mode == "wrd":
            seq = writes + reads + dma
        elif mode == "drw":
            seq = dma + reads + writes
        else:
            seq = []
            per = 6
            for i in range(0, len(reads), per):
                if grp: seq += grp.pop(0)
                seq += reads[i:i+per]
            for g in grp: seq += g
            seq += writes
        for x in seq: A(x)
        TDA = OPT.get("atouch", 0)
        if TDA and S+TDA < 10:
            A(f"buffer_load_dword v{V_DUM}, v{V_TCH}, s[{SRD_W}:{SRD_W+3}], s{S_TAB+S+TDA} offen")
        if S == 9:
            for x in wp_reads(): A(x)
            w3_loads_g0(A)
        if S+1 < 10:
            n = 4 if S+2 < 10 else 0
            if TDA:
                n += (1 if S+TDA < 10 else 0) + (1 if (S >= 1 and S-1+TDA < 10) else 0)
            A(f"s_waitcnt vmcnt({n}) lgkmcnt(0)")
        else:
            A("s_waitcnt lgkmcnt(0)")
        A("s_barrier")
        fill = (norm_valu(S+2, 0) + norm_valu(S+2, 1)) if S+2 < 10 else []
        if S == 8:
            fill = w3_voffs()
        if S == 9:
            fill = [f"v_mov_b32 v{V_WP+10}, 0", f"v_mov_b32 v{V_WP+11}, 0", f"v_mov_b32 v{V_WP+22}, 0", f"v_mov_b32 v{V_WP+23}, 0"]
        mf = []
        for j in range(4):
            b = A_OP[j]
            for a_ in range(2):
                for tau in range(2):
                    c = V_ACC + 16*(2*tau+a_)
                    mf.append(f"v_mfma_f32_32x32x16_bf16 v[{c}:{c+15}], v[{b+8+4*a_}:{b+11+4*a_}], v[{b+4*tau}:{b+3+4*tau}], v[{c}:{c+15}]")
        mfma_block(A, mf, fill)
    group_skew_end(A)

V_QB = [104, 116]
V_PV = [128, 134]
V_E = 40
def a_epilogue(A, prof, opts, est):
    EP, EN, PH = 224, 40, 140
    T = 24
    AK = 60
    for c in range(5):
        A(f"v_xor_b32 v{T}, {16*c}, v{V_ES16}")
        A(f"v_add_u32 v{AK+c}, v{V_EROW}, v{T}")
    A(f"v_lshrrev_b32 v{T+1}, 5, v{V_LANE}")
    A(f"v_add_u32 v{T}, 5, v{T+1}")
    A(f"v_lshlrev_b32 v{T}, 4, v{T}")
    A(f"v_xor_b32 v{T}, v{T}, v{V_ES16}")
    A(f"v_add_u32 v{AK+5}, v{V_EROW}, v{T}")
    A(f"v_xor_b32 v{T}, {16*7}, v{V_ES16}")
    A(f"v_add_u32 v{T}, v{V_EROW}, v{T}")
    A(f"v_lshl_add_u32 v{AK+6}, v{T+1}, 3, v{T}")
    A(f"v_lshlrev_b32 v{AK+7}, 4, v{V_LANE}")
    A(f"v_lshlrev_b32 v{AK+9}, 3, v{V_LANE}")
    A(f"v_lshlrev_b32 v{T}, 12, v{T+1}")
    for c in range(5): A(f"v_add_u32 v{AK+c}, v{AK+c}, v{T}")
    A(f"s_lshl_b32 s{S_T0}, s{S_RB}, 1")
    A(f"s_add_u32 s{S_T0}, s{S_T0}, s{S_WT}")
    A(f"s_lshl_b32 s{S_T0}, s{S_T0}, 5")
    A(f"s_lshl_b32 s{S_T1}, s{S_CB}, 2")
    A(f"s_add_u32 s{S_T0}, s{S_T0}, s{S_T1}")
    A(f"s_add_u32 s{S_T0}, s{S_T0}, s{S_WC}")
    A(f"s_mul_i32 s{S_T0}, s{S_T0}, 2560")
    A(f"s_add_u32 s{S_T4}, s{S_T0}, {WS_PQ}")
    A(f"v_mov_b32 v68, {L2E}")
    for tau in range(2):
        a0, a1 = V_ACC + 32*tau, V_ACC + 32*tau + 16
        QB, PV = V_QB[tau], V_PV[tau]
        for j in range(8): A(f"v_cvt_pk_bf16_f32 v{QB+j}, v{a0+2*j}, v{a0+2*j+1}")
        for j in range(2): A(f"v_cvt_pk_bf16_f32 v{QB+8+j}, v{a1+2*j}, v{a1+2*j+1}")
        A(f"v_mov_b32 v{QB+10}, 0"); A(f"v_mov_b32 v{QB+11}, 0")
        for j in range(6): A(f"v_cvt_pk_bf16_f32 v{PV+j}, v{a1+4+2*j}, v{a1+5+2*j}")
        A("s_mov_b32 exec_lo, 0")
        A(f"v_mov_b32 v{PV+4}, 0x3f80")
        A(f"v_mov_b32 v{PV+5}, 0")
        A("s_mov_b32 exec_lo, -1")
        for o, P in ((0, a0), (1, a1)):
            for s_ in range(3):
                c = "0" if s_ == 0 else f"v[{P}:{P+15}]"
                A(f"v_mfma_f32_32x32x16_bf16 v[{P}:{P+15}], v[{V_WP+4*(3*o+s_)}:{V_WP+4*(3*o+s_)+3}], v[{QB+4*s_}:{QB+4*s_+3}], {c}")
        A(f"ds_write_b128 v{AK+5}, v[{PV}:{PV+3}] offset:{4096*tau}")
        A(f"ds_write_b64 v{AK+6}, v[{PV+4}:{PV+5}] offset:{4096*tau}")
    est(A, 1)
    p0 = [V_ACC+i for i in range(16)] + [V_ACC+16+i for i in range(4)]
    p1 = [V_ACC+32+i for i in range(16)] + [V_ACC+48+i for i in range(4)]
    A("s_nop 7")
    A("s_nop 3")
    for i in range(20): A(f"v_permlane32_swap_b32 v{p0[i]}, v{p1[i]}")
    PQP = 104
    A("s_nop 1")
    for i in range(10): A(f"v_cvt_pk_bf16_f32 v{PQP+i}, v{p0[2*i]}, v{p0[2*i+1]}")
    A(f"buffer_store_dwordx4 v[{PQP}:{PQP+3}], v{AK+7}, s[{SRD_WS}:{SRD_WS+3}], s{S_T4} offen {OPT.get('astflags', '')}")
    A(f"buffer_store_dwordx4 v[{PQP+4}:{PQP+7}], v{AK+7}, s[{SRD_WS}:{SRD_WS+3}], s{S_T4} offen offset:1024 {OPT.get('astflags', '')}")
    A(f"buffer_store_dwordx2 v[{PQP+8}:{PQP+9}], v{AK+9}, s[{SRD_WS}:{SRD_WS+3}], s{S_T4} offen offset:2048 {OPT.get('astflags', '')}")
    softmax_block(A, p1, EP, EN, [PH+i for i in range(20)], T, 68)
    for c in range(5):
        A(f"ds_write_b128 v{AK+c}, v[{PH+4*c}:{PH+4*c+3}]")
    est(A, 2)
    if not opts.get("noW3"):
        A("s_waitcnt vmcnt(3)")
        w3_relayout_g0(A)
    A("s_waitcnt lgkmcnt(0)")
    A("s_barrier")
    KA1, KB1 = T, T+1
    A(f"v_xor_b32 v{KA1}, 32, v{V_EKA}")
    A(f"v_add_u32 v{KA1}, 512, v{KA1}")
    A(f"v_xor_b32 v{KB1}, 32, v{V_EKB}")
    A(f"v_add_u32 v{KB1}, 512, v{KB1}")
    FR = 80
    P0 = 224
    for ks in range(8):
        r = FR + 8*ks
        A(f"ds_read_b64_tr_b16 v[{r}:{r+1}], v{V_EKA} offset:{2048*ks}")
        A(f"ds_read_b64_tr_b16 v[{r+2}:{r+3}], v{KA1} offset:{2048*ks}")
        A(f"ds_read_b64_tr_b16 v[{r+4}:{r+5}], v{V_EKB} offset:{2048*ks}")
        A(f"ds_read_b64_tr_b16 v[{r+6}:{r+7}], v{KB1} offset:{2048*ks}")
        if ks == 2:
            A(f"s_lshl_b32 s{S_T0}, s{S_RB}, 5")
            A(f"s_lshl_b32 s{S_T1}, s{S_CB}, 2")
            A(f"s_add_u32 s{S_T0}, s{S_T0}, s{S_T1}")
            A(f"s_add_u32 s{S_T0}, s{S_T0}, s{S_WC}")
            A(f"s_mul_i32 s{S_T0}, s{S_T0}, 5120")
            A(f"s_lshl_b32 s{S_T1}, s{S_WT}, 12")
            A(f"s_add_u32 s{S_T0}, s{S_T0}, s{S_T1}")
            A(f"s_add_u32 s{S_T0}, s{S_T0}, {WS_KV}")
    for ks in range(8):
        r = FR + 8*ks
        A(f"s_waitcnt lgkmcnt({min(15, 4*(7-ks))})")
        c = "0" if ks == 0 else f"v[{P0}:{P0+15}]"
        A(f"v_mfma_f32_32x32x16_bf16 v[{P0}:{P0+15}], v[{r}:{r+3}], v[{r+4}:{r+7}], {c}")
    A(f"v_lshlrev_b32 v{T+2}, 4, v{V_LANE}")
    A(f"v_and_b32 v{T+3}, 31, v{V_LANE}")
    A(f"v_cmp_gt_u32 vcc, 21, v{T+3}")
    A("s_nop 7")
    A("s_nop 1")
    A(f"s_and_saveexec_b64 s[{S_EX}:{S_EX+1}], vcc")
    A(f"buffer_store_dwordx4 v[{P0}:{P0+3}], v{T+2}, s[{SRD_WS}:{SRD_WS+3}], s{S_T0} offen {OPT.get('astflags', '')}")
    A(f"s_cmp_eq_u32 s{S_WT}, 0")
    l = A.newlabel("L_kvskip")
    A(f"s_cbranch_scc0 {l}")
    for g in range(1, 4):
        A(f"buffer_store_dwordx4 v[{P0+4*g}:{P0+4*g+3}], v{T+2}, s[{SRD_WS}:{SRD_WS+3}], s{S_T0} offen offset:{1024*g} {OPT.get('astflags', '')}")
    A.label(l)
    A(f"s_mov_b64 exec, s[{S_EX}:{S_EX+1}]")

def a_path(A, prof, opts):
    if OPT.get("cpf"):
        A.label("L_a_code")
        code_prefetch(A, None, "L_k1_end", 24, 21, 44+16)
    def mid1(A):
        srd(A, SRD_W, S_QKVP, 640*3840)
        offset_table(A, 10, 64*3840, 640*3840, 64*3840)
        srd(A, SRD_WS, S_WSP, WS_SIZE)
        x_read_addrs(A)
        T = 30
        A(f"v_lshrrev_b32 v{T}, 4, v{V_LANE}")
        A(f"v_and_b32 v27, 3, v{V_LANE}")
        A(f"v_lshl_add_u32 v{T}, v{T}, 2, v27")
        A(f"v_bfe_u32 v27, v{V_LANE}, 2, 2")
        A(f"s_lshl_b32 s{S_T0}, s{S_WV}, 2")
        A(f"v_add_u32 v27, s{S_T0}, v27")
        A(f"v_mul_u32_u24 v27, 3840, v27")
        A(f"s_mul_i32 s{S_T1}, s{S_CB}, 160")
        A(f"v_add_u32 v27, s{S_T1}, v27")
        A(f"v_cmp_gt_u32 vcc, 10, v{T}")
        A(f"v_mov_b32 v28, 1120")
        A(f"v_lshl_add_u32 v29, v{T}, 4, v27")
        A(f"v_cndmask_b32 v28, v28, 0, vcc")
        A(f"v_add_u32 v{V_WD}, v29, v28")
        A(f"v_min_u32 v24, 14, v{T}")
        A(f"v_cmp_eq_u32 vcc, 4, v{T}")
        A(f"v_mov_b32 v25, 3")
        A("s_nop 0")
        A(f"v_cndmask_b32 v24, v24, v25, vcc")
        A(f"v_cmp_gt_u32 vcc, 5, v{T}")
        A(f"v_mov_b32 v25, 2480")
        A(f"v_mov_b32 v26, 1376")
        A(f"v_cndmask_b32 v25, v25, v26, vcc")
        A(f"v_lshl_add_u32 v24, v24, 4, v27")
        A(f"v_add_u32 v{V_WD+1}, v24, v25")
        A(f"v_add_u32 v{V_WD+2}, {32*3840}, v{V_WD}")
        A(f"v_add_u32 v{V_WD+3}, {32*3840}, v{V_WD+1}")
        A(f"s_lshl_b32 s{S_LDSW}, s{S_WV}, 11")
        A(f"s_add_u32 s{S_LDSW}, s{S_LDSW}, {A_WBASE}")
        if OPT.get("atouch"):
            A(f"s_lshl_b32 s{S_T0}, s{S_RBL}, 4")
            A(f"s_lshl_b32 s{S_T1}, s{S_WV}, 1")
            A(f"s_add_u32 s{S_T0}, s{S_T0}, s{S_T1}")
            A(f"s_mul_i32 s{S_T0}, s{S_T0}, 3840")
            A(f"s_mul_i32 s{S_T1}, s{S_CB}, 160")
            A(f"s_and_b32 s{S_T1}, s{S_T1}, 0xffffff80")
            A(f"s_add_u32 s{S_T0}, s{S_T0}, s{S_T1}")
            A(f"v_and_b32 v25, 7, v{V_LANE}")
            A(f"v_min_u32 v25, 5, v25")
            A(f"v_lshrrev_b32 v24, 1, v25")
            A(f"v_mul_u32_u24 v24, 1280, v24")
            A(f"v_and_b32 v25, 1, v25")
            A(f"v_lshl_add_u32 v25, v25, 7, v24")
            A(f"v_bfe_u32 v24, v{V_LANE}, 3, 1")
            A(f"v_mul_u32_u24 v24, 3840, v24")
            A(f"v_add_u32 v25, v25, v24")
            A(f"v_add_u32 v{V_TCH}, s{S_T0}, v25")
        old = G.V_T; oldb = G.WBASE
        G.V_T = 24; G.WBASE = A_WBASE
        G.a_tr_addr(A, 0, V_WB)
        G.a_tr_addr(A, 1, V_WB+2)
        G.V_T = old; G.WBASE = oldb
        A(f"v_add_u32 v{V_WB+1}, {2*A_DSLOT}, v{V_WB}")
        A(f"v_add_u32 v{V_WB+3}, {2*A_DSLOT}, v{V_WB+2}")
    def mid2(A):
        a_addr_setup(A)
        for i in range(64): A(f"v_mov_b32 v{V_ACC+i}, 0")
        A(f"v_lshlrev_b32 v24, 4, v{V_LANE}")
        A(f"v_add_u32 v24, {A_ZERO}, v24")
        A(f"ds_write_b128 v24, v[{V_ACC}:{V_ACC+3}]")
    def after_x(A):
        for x in a_dma(0): A(x)
        srd(A, SRD_M, S_PHIP, 25600)
        A(f"v_lshlrev_b32 v24, 4, v{V_LANE}")
        A(f"s_mul_i32 s{S_T0}, s{S_CB}, 3200")
        A(f"s_lshl_b32 s{S_T1}, s{S_WC}, 10")
        A(f"s_add_u32 s{S_T0}, s{S_T0}, s{S_T1}")
        A(f"s_add_u32 m0, s{S_T1}, {A_PHI}")
        A("s_nop 0")
        A(f"buffer_load_dwordx4 v24, s[{SRD_M}:{SRD_M+3}], s{S_T0} offen lds")
        if OPT.get("tlbw"):
            A(f"v_lshlrev_b32 v24, 20, v{V_LANE}")
            A(f"v_min_u32 v24, {(24<<20)-4}, v24")
            A(f"buffer_load_dword v21, v24, s[{SRD_WS}:{SRD_WS+3}], 0 offen")
            return 6
        return 5
    x_phase(A, mid1, mid2, after_x)
    stamp(A, 1, prof)
    for g in range(2):
        for x in norm_valu(0, g): A(x)
        A(norm_write(0, g))
    for x in a_dma(1): A(x)
    for g in range(2):
        for x in norm_valu(1, g): A(x)
    A(f"s_waitcnt vmcnt(4) lgkmcnt(0)")
    stamp(A, 2, prof)
    if OPT.get("g1prio") == "all":
        l = A.newlabel("L_pr"); A(f"s_cmp_eq_u32 s{S_WT}, 0"); A(f"s_cbranch_scc1 {l}"); A("s_setprio 2"); A.label(l)
    a_loop2(A)
    if OPT.get("g1prio") == "epi":
        l = A.newlabel("L_pr"); A(f"s_cmp_eq_u32 s{S_WT}, 0"); A(f"s_cbranch_scc1 {l}"); A("s_setprio 2"); A.label(l)
    es = opts.get("estamp")
    stamp(A, 0 if es else 3, prof)
    a_epilogue(A, prof, opts, (lambda A_, i: stamp(A_, i, True)) if es else (lambda A_, i: None))
    if es: stamp(A, 3, True)
    stamp(A, 4, prof)
```

```python
from asmlib import *
import gen_k1u as Uu
from gen_k1u import *
import gen_k1 as G
from gen_k1 import WS_FLAG

L2E = 0x3fb8aa3b
A_PHI, A_ZERO, A_W3ST = G.A_PHI, G.A_ZERO, 65536
A_WBASE = WBASE
V_EWP0, V_EWP1, V_EROW, V_ES16, V_EKA, V_EKB = 72, 73, 74, 75, 76, 77
TT = 24

def x_load_t(A, t):
    A(f"s_add_u32 s{S_T2}, s{S_T3}, s{S_T4}")
    for g in range(2):
        r = V_X + 8*t + 4*g
        A(f"buffer_load_dwordx4 v[{r}:{r+3}], v{38+g}, s[{SRD_X}:{SRD_X+3}], s{S_T2} offen")
    A(f"s_add_u32 s{S_T4}, s{S_T4}, 128")
    A(f"s_cmp_eq_u32 s{S_T4}, 1280")
    A(f"s_cselect_b32 s{S_T4}, 0, s{S_T4}")

S0 = 28
def dot_t(A, t):
    for g in range(2):
        for r in range(4):
            x = V_X + 8*t + 4*g + r
            A(f"v_dot2_f32_bf16 v{S0+4*g+(r&1)}, v{x}, s{S_ONES}, v{S0+4*g+(r&1)}")
            A(f"v_dot2_f32_bf16 v{S0+4*g+2+(r&1)}, v{x}, v{x}, v{S0+4*g+2+(r&1)}")

def stats_finish(A):
    for g in range(2):
        A(f"v_add_f32 v{S0+4*g}, v{S0+4*g}, v{S0+4*g+1}")
        A(f"v_add_f32 v{S0+4*g+2}, v{S0+4*g+2}, v{S0+4*g+3}")
    regs = [S0, S0+2, S0+4, S0+6]
    for mode in ("quad_perm:[1,0,3,2]", "quad_perm:[2,3,0,1]", "row_half_mirror"):
        A("s_nop 1")
        for r in regs:
            A(f"v_add_f32_dpp v{r}, v{r}, v{r} {mode} row_mask:0xf bank_mask:0xf")
    A(f"s_mov_b32 s{S_T0}, 0x3acccccd")
    A(f"s_mov_b32 s{S_T1}, 0x3727c5ac")
    for g in range(2):
        m, q = S0+4*g, S0+4*g+2
        A(f"v_mul_f32 v{m}, s{S_T0}, v{m}")
        A(f"v_mul_f32 v{q}, s{S_T0}, v{q}")
    for g in range(2):
        m, q = S0+4*g, S0+4*g+2
        A(f"v_fma_f32 v{q}, -v{m}, v{m}, v{q}")
    for g in range(2):
        A(f"v_max_f32 v{S0+4*g+2}, 0, v{S0+4*g+2}")
    for g in range(2):
        A(f"v_add_f32 v{S0+4*g+2}, s{S_T1}, v{S0+4*g+2}")
    for g in range(2):
        A(f"v_rsq_f32 v{VR[g]}, v{S0+4*g+2}")
    A("s_nop 0")
    for g in range(2):
        A(f"v_mul_f32 v{VB[g]}, v{S0+4*g}, v{VR[g]}")
    for g in range(2):
        A(f"v_sub_f32 v{VB[g]}, 0, v{VB[g]}")

def code_prefetch(A, target, nlines, vtmp, vdum, spair, cond_waves=(0, 4)):
    l = A.newlabel("L_cpf"); h = A.newlabel("L_pc")
    A(f"s_and_b32 s{S_T0}, s{S_WV}, 3")
    A(f"s_cmp_eq_u32 s{S_T0}, 0")
    A(f"s_cbranch_scc0 {l}")
    A(f"s_getpc_b64 s[{spair}:{spair+1}]")
    A.label(h)
    if target is None:
        target = h
    else:
        A(f"s_add_u32 s{spair}, s{spair}, {target}-{h}")
        A(f"s_addc_u32 s{spair+1}, s{spair+1}, 0")
    A(f"v_lshlrev_b32 v{vtmp}, 7, v{V_LANE}")
    A(f"s_lshl_b32 s{S_T0}, s{S_WT}, 13")
    A(f"v_add_u32 v{vtmp}, s{S_T0}, v{vtmp}")
    A(f"v_min_u32 v{vtmp}, {nlines}-{target}-4, v{vtmp}")
    A(f"global_load_dword v{vdum}, v{vtmp}, s[{spair}:{spair+1}]")
    A.label(l)

def x_phase(A, mid1, mid2, after_x):
    A(f"s_mul_i32 s{S_T3}, s{S_RB}, 163840")
    A(f"s_lshl_b32 s{S_T4}, s{S_ROT}, 7")
    XS = OPT.get("xs", 0)
    if XS:
        for t in range(0, XS): x_load_t(A, t)
        mid1(A)
        mid2(A)
        for i in range(8): A(f"v_mov_b32 v{S0+i}, 0")
        A("s_waitcnt vmcnt(0)")
        lead = OPT.get("xlead", 4)
        nxt = XS
        for t in range(nxt, min(10, nxt + lead)): x_load_t(A, t)
        nxt = min(10, nxt + lead)
        done = 0
        while done < XS:
            dot_t(A, done); done += 1
            if nxt < 10: x_load_t(A, nxt); nxt += 1
        while nxt < 10:
            A(f"s_waitcnt vmcnt({2*(nxt - done - 1)})")
            dot_t(A, done); done += 1
            x_load_t(A, nxt); nxt += 1
        n = after_x(A)
        for t in range(done, 10):
            A(f"s_waitcnt vmcnt({n + 2*(9-t)})")
            dot_t(A, t)
        stats_finish(A)
        return
    for t in range(0, 4): x_load_t(A, t)
    mid1(A)
    for t in range(4, 7): x_load_t(A, t)
    mid2(A)
    for i in range(8): A(f"v_mov_b32 v{S0+i}, 0")
    A(f"s_waitcnt vmcnt({2*(7-1)})")
    dot_t(A, 0)
    x_load_t(A, 7)
    A(f"s_waitcnt vmcnt({2*(8-2)})")
    dot_t(A, 1)
    x_load_t(A, 8)
    A(f"s_waitcnt vmcnt({2*(9-3)})")
    dot_t(A, 2)
    x_load_t(A, 9)
    n = after_x(A)
    for t in range(3, 10):
        A(f"s_waitcnt vmcnt({n + 2*(9-t)})")
        dot_t(A, t)
    stats_finish(A)

def f_path(A, prof):
    T = TT
    if OPT.get("cpf"):
        A.label("L_f_code")
        code_prefetch(A, None, "L_k1_A", 24, 21, 44+16)
    def mid1(A):
        A(f"s_cmp_lt_u32 s{S_WV}, 4")
        A(f"s_cselect_b32 s{S_T0}, s{S_WGP}, s{S_WUP}")
        A(f"s_cselect_b32 s{S_T1}, s{S_WGP+1}, s{S_WUP+1}")
        A(f"s_mov_b32 s{SRD_W}, s{S_T0}")
        A(f"s_and_b32 s{SRD_W+1}, s{S_T1}, 0xffff")
        A(f"s_mov_b32 s{SRD_W+2}, {640*3072}")
        A(f"s_mov_b32 s{SRD_W+3}, 0x20000")
        offset_table(A, 20, 32*3072, 640*3072, 64*3072)
        srd(A, SRD_WS, S_WSP, WS_SIZE)
        x_read_addrs(A)
        A(f"v_lshrrev_b32 v29, 4, v{V_LANE}")
        A(f"v_bfe_u32 v26, v{V_LANE}, 2, 2")
        A(f"v_and_b32 v27, 3, v{V_LANE}")
        A(f"s_mul_i32 s{S_T0}, s{S_WC}, 12")
        A(f"s_mul_i32 s{S_T1}, s{S_CB}, 384")
        for i in range(3):
            A(f"v_add_u32 v28, s{S_T0}, v29")
            if i: A(f"v_add_u32 v28, {4*i}, v28")
            A(f"v_mul_u32_u24 v24, 43, v28")
            A(f"v_lshrrev_b32 v24, 8, v24")
            A(f"v_mul_u32_u24 v25, 6, v24")
            A(f"v_sub_u32 v25, v28, v25")
            A(f"v_lshl_add_u32 v24, v24, 2, v26")
            A(f"v_mul_u32_u24 v24, 3072, v24")
            A(f"v_lshl_add_u32 v24, v25, 6, v24")
            A(f"v_lshl_add_u32 v24, v27, 4, v24")
            A(f"v_add_u32 v{V_WD+i}, s{S_T1}, v24")
        A(f"s_mul_i32 s{S_T0}, s{S_WT}, {F_UP}")
        A(f"s_mul_i32 s{S_T1}, s{S_WC}, 3072")
        A(f"s_add_u32 s{S_LDSW}, s{S_T0}, s{S_T1}")
        A(f"s_add_u32 s{S_LDSW}, s{S_LDSW}, {WBASE}")
        A(f"v_bfe_u32 v25, v{V_LANE}, 4, 1")
        A(f"v_mul_u32_u24 v25, {F_UP}, v25")
        A(f"v_lshrrev_b32 v24, 5, v{V_LANE}")
        A(f"v_mul_u32_u24 v24, 3072, v24")
        A(f"v_add_u32 v25, v25, v24")
        A(f"v_bfe_u32 v24, v{V_LANE}, 2, 2")
        A(f"v_lshl_add_u32 v25, v24, 6, v25")
        A(f"v_and_b32 v24, 3, v{V_LANE}")
        A(f"v_lshl_add_u32 v25, v24, 3, v25")
        A(f"s_lshr_b32 s{S_T0}, s{S_WC}, 1")
        A(f"s_lshl_b32 s{S_T0}, s{S_T0}, 8")
        A(f"s_and_b32 s{S_T1}, s{S_WC}, 1")
        A(f"s_lshl_b32 s{S_T1}, s{S_T1}, 5")
        A(f"s_add_u32 s{S_T0}, s{S_T0}, s{S_T1}")
        A(f"s_add_u32 s{S_T0}, s{S_T0}, {WBASE}")
        A(f"v_add_u32 v{V_WB}, s{S_T0}, v25")
        A(f"v_add_u32 v{V_WB+1}, {2*F_SLOT}, v{V_WB}")
        A(f"v_add_u32 v{V_WB+2}, {4*F_SLOT}, v{V_WB}")
    def mid2(A):
        for i in range(96): A(f"v_mov_b32 v{V_ACC+i}, 0")
    def after_x(A):
        for x in f_dma(0): A(x)
        if OPT.get("tlbw"):
            A(f"v_lshlrev_b32 v24, 20, v{V_LANE}")
            A(f"v_min_u32 v24, {(24<<20)-4}, v24")
            A(f"buffer_load_dword v21, v24, s[{SRD_WS}:{SRD_WS+3}], 0 offen")
            return 4
        return 3
    x_phase(A, mid1, mid2, after_x)
    stamp(A, 1, prof)
    for g in range(2):
        for x in norm_valu(0, g): A(x)
        A(norm_write(0, g))
    for q in (1, 2, 3):
        for x in f_dma(q): A(x)
    for x in norm_valu(1, 0): A(x)
    A(f"s_waitcnt vmcnt(9) lgkmcnt(0)")
    stamp(A, 2, prof)
    if OPT.get("g1prio") == "all":
        l = A.newlabel("L_pr"); A(f"s_cmp_eq_u32 s{S_WT}, 0"); A(f"s_cbranch_scc1 {l}"); A("s_setprio 2"); A.label(l)
    f_loop(A)
    stamp(A, 3, prof)
    f_epilogue(A)
    if OPT.get("cpf"):
        code_prefetch(A, "k3_kernel", "L_text_end", 44, 45, 44+16)
    lz = A.newlabel("L_zf")
    A(f"s_or_b32 s{S_T0}, s2, s{S_WV}")
    A(f"s_cmp_eq_u32 s{S_T0}, 0")
    A(f"s_cbranch_scc0 {lz}")
    A(f"v_mov_b32 v40, 0\nv_mov_b32 v41, 0\nv_mov_b32 v42, 0\nv_mov_b32 v43, 0")
    A(f"v_lshlrev_b32 v44, 4, v{V_LANE}")
    A(f"s_mov_b32 s{S_T1}, {WS_FLAG}")
    A(f"buffer_store_dwordx4 v[40:43], v44, s[{SRD_WS}:{SRD_WS+3}], s{S_T1} offen sc0 sc1")
    A.label(lz)
    stamp(A, 4, prof)

def a_addr_setup(A):
    T = 24
    A(f"v_and_b32 v{T}, 3, v{V_LANE}")
    A(f"v_bfe_u32 v{T+1}, v{V_LANE}, 4, 1")
    A(f"v_lshrrev_b32 v{T+2}, 1, v{T}")
    A(f"v_lshl_add_u32 v{T+2}, v{T+1}, 1, v{T+2}")
    A(f"v_and_b32 v{T+3}, 1, v{T}")
    A(f"v_lshrrev_b32 v{T+4}, 5, v{V_LANE}")
    A(f"v_bfe_u32 v{T+5}, v{V_LANE}, 2, 2")
    A(f"v_mul_u32_u24 v{T+5}, 40, v{T+5}")
    A(f"v_lshl_add_u32 v{T+5}, v{T+2}, 3, v{T+5}")
    A(f"s_mul_i32 s{S_T0}, s{S_WC}, 800")
    A(f"s_add_u32 s{S_T0}, s{S_T0}, {A_PHI}")
    A(f"v_add_u32 v{T+5}, s{S_T0}, v{T+5}")
    A(f"v_mov_b32 v{T+6}, {A_ZERO}")
    A(f"v_cmp_eq_u32 vcc, v{T+3}, v{T+4}")
    A("s_nop 1")
    A(f"v_cndmask_b32 v{V_EWP0}, v{T+6}, v{T+5}, vcc")
    A(f"v_cmp_eq_u32 vcc, 0, v{T+2}")
    A("s_nop 1")
    A(f"v_cndmask_b32 v{V_EWP1}, v{T+6}, v{V_EWP0}, vcc")
    A(f"v_and_b32 v{T}, 31, v{V_LANE}")
    A(f"v_bfe_u32 v{T+1}, v{T}, 1, 1")
    A(f"v_lshlrev_b32 v{T+1}, 2, v{T+1}")
    A(f"v_bfe_u32 v{T+2}, v{T}, 2, 1")
    A(f"v_lshl_or_b32 v{T+1}, v{T+2}, 1, v{T+1}")
    A(f"v_and_b32 v{T+2}, 1, v{T}")
    A(f"v_or_b32 v{T+1}, v{T+1}, v{T+2}")
    A(f"v_lshlrev_b32 v{V_ES16}, 4, v{T+1}")
    A(f"s_lshl_b32 s{S_T0}, s{S_WC}, 14")
    A(f"s_lshl_b32 s{S_T1}, s{S_WT}, 13")
    A(f"s_add_u32 s{S_T0}, s{S_T0}, s{S_T1}")
    A(f"v_lshlrev_b32 v{T+2}, 7, v{T}")
    A(f"v_add_u32 v{V_EROW}, s{S_T0}, v{T+2}")
    A(f"v_bfe_u32 v{T}, v{V_LANE}, 2, 2")
    A(f"v_lshrrev_b32 v{T+1}, 1, v{T}")
    A(f"v_lshlrev_b32 v{T+1}, 2, v{T+1}")
    A(f"v_and_b32 v{T+2}, 1, v{T}")
    A(f"v_or_b32 v{T+1}, v{T+1}, v{T+2}")
    A(f"v_lshrrev_b32 v{T+2}, 5, v{V_LANE}")
    A(f"v_lshl_add_u32 v{T+2}, v{T+2}, 3, v{T}")
    A(f"v_lshlrev_b32 v{T+2}, 7, v{T+2}")
    A(f"s_lshl_b32 s{S_T0}, s{S_WC}, 14")
    A(f"v_add_u32 v{T+2}, s{S_T0}, v{T+2}")
    A(f"v_bfe_u32 v{T+3}, v{V_LANE}, 4, 1")
    A(f"v_and_b32 v{T+4}, 3, v{V_LANE}")
    A(f"v_lshl_add_u32 v{T+3}, v{T+3}, 2, v{T+4}")
    A(f"v_and_b32 v{T+4}, 4, v{T+3}")
    A(f"v_and_b32 v{T+5}, 1, v{T+3}")
    A(f"v_lshl_add_u32 v{T+4}, v{T+5}, 1, v{T+4}")
    A(f"v_bfe_u32 v{T+5}, v{T+3}, 1, 1")
    A(f"v_add_u32 v{T+4}, v{T+4}, v{T+5}")
    A(f"v_and_b32 v{T+5}, 1, v{T+3}")
    A(f"v_add_u32 v{T+5}, 8, v{T+5}")
    A(f"s_cmp_eq_u32 s{S_WT}, 0")
    A(f"s_cselect_b64 vcc, -1, 0")
    A(f"v_cndmask_b32 v{T+4}, v{T+5}, v{T+4}, vcc")
    A(f"v_lshrrev_b32 v{T+5}, 1, v{T+4}")
    A(f"v_and_b32 v{T+4}, 1, v{T+4}")
    A(f"v_xor_b32 v{T+6}, v{T+5}, v{T+1}")
    A(f"v_lshlrev_b32 v{T+6}, 4, v{T+6}")
    A(f"v_lshl_add_u32 v{T+6}, v{T+4}, 3, v{T+6}")
    A(f"v_add_u32 v{V_EKA}, v{T+2}, v{T+6}")
    A(f"s_mov_b32 s{S_T1}, 0xfffdceba")
    A(f"v_lshlrev_b32 v{T+4}, 2, v{T+3}")
    A(f"v_lshrrev_b32 v{T+4}, v{T+4}, s{S_T1}")
    A(f"v_and_b32 v{T+4}, 15, v{T+4}")
    A(f"v_lshrrev_b32 v{T+5}, 1, v{T+4}")
    A(f"v_and_b32 v{T+4}, 1, v{T+4}")
    A(f"v_xor_b32 v{T+6}, v{T+5}, v{T+1}")
    A(f"v_lshlrev_b32 v{T+6}, 4, v{T+6}")
    A(f"v_lshl_add_u32 v{T+6}, v{T+4}, 3, v{T+6}")
    A(f"v_add_u32 v{V_EKB}, v{T+2}, v{T+6}")

V_WP = 80
W3R = 104

NKAP = 72
W3WAVE = 13312
def w3_params(A):
    A(f"s_lshl_b32 s{S_T0}, s{S_CB}, 4")
    A(f"s_add_u32 s{S_T5}, s{S_T0}, s{S_RB}")
    A(f"s_cmp_lt_u32 s{S_T5}, 48")
    A(f"s_cselect_b32 s{S_T0}, s{S_WDP}, s{S_WOP}")
    A(f"s_cselect_b32 s{S_T1}, s{S_WDP+1}, s{S_WOP+1}")
    A(f"s_mov_b32 s{S_T2}, {640*1280}")
    A(f"s_cselect_b32 s{S_T2}, {1536*1280}, s{S_T2}")
    A(f"s_mov_b32 s{SRD_M}, s{S_T0}")
    A(f"s_and_b32 s{SRD_M+1}, s{S_T1}, 0xffff")
    A(f"s_mov_b32 s{SRD_M+2}, s{S_T2}")
    A(f"s_mov_b32 s{SRD_M+3}, 0x20000")
    A(f"s_sub_u32 s{S_T0}, s{S_T5}, 48")
    A(f"s_lshl_b32 s{S_T0}, s{S_T0}, 2")
    A(f"s_mul_i32 s{S_T0}, s{S_T0}, 43")
    A(f"s_lshr_b32 s{S_T2}, s{S_T0}, 7")
    A(f"s_mul_i32 s{S_T0}, s{S_T2}, 20")
    A(f"s_lshl_b32 s{S_T1}, s{S_T5}, 5")
    A(f"s_cmp_lt_u32 s{S_T5}, 48")
    A(f"s_cselect_b32 s{S_T0}, s{S_T1}, s{S_T0}")
    A(f"s_mul_i32 s{S_T3}, s{S_T0}, 1280")

def w3_voffs():
    L = []
    for i in range(5):
        L += [f"v_add_u32 v{W3R+5}, {64*i}, v{V_LANE}",
              f"v_mul_u32_u24 v{W3R+6}, 3277, v{W3R+5}",
              f"v_lshrrev_b32 v{W3R+6}, 16, v{W3R+6}",
              f"v_mul_u32_u24 v{W3R+7}, 20, v{W3R+6}",
              f"v_sub_u32 v{W3R+7}, v{W3R+5}, v{W3R+7}",
              f"v_mul_u32_u24 v{W3R+6}, 1280, v{W3R+6}",
              f"v_lshl_add_u32 v{W3R+i}, v{W3R+7}, 4, v{W3R+6}"]
    return L

def w3_loads_g0(A):
    l = A.newlabel("L_w3l")
    A(f"s_cmp_eq_u32 s{S_WT}, 0")
    A(f"s_cbranch_scc0 {l}")
    w3_params(A)
    A(f"s_cmp_ge_u32 s{S_T5}, {NKAP}")
    A(f"s_cselect_b32 s{S_T3}, 0x7f000000, s{S_T3}")
    A(f"s_mul_i32 s{S_T1}, s{S_WC}, 320")
    A(f"s_add_u32 s{S_T0}, s{S_T3}, s{S_T1}")
    A(f"s_mul_i32 s{S_T1}, s{S_WC}, {W3WAVE}")
    A(f"s_add_u32 s{S_T1}, s{S_T1}, {A_W3ST}")
    for i in range(13):
        A(f"s_add_u32 m0, s{S_T1}, {1024*i}")
        A(f"s_add_u32 s{S_T2}, s{S_T0}, {(i//5)*16*1280}")
        A(f"buffer_load_dwordx4 v{W3R+(i%5)}, s[{SRD_M}:{SRD_M+3}], s{S_T2} offen lds")
    A.label(l)

def w3_relayout_g0(A):
    l = A.newlabel("L_w3r")
    A(f"s_cmp_eq_u32 s{S_WT}, 0")
    A(f"s_cbranch_scc0 {l}")
    A(f"s_lshl_b32 s{S_T0}, s{S_CB}, 4")
    A(f"s_add_u32 s{S_T5}, s{S_T0}, s{S_RB}")
    A(f"s_cmp_ge_u32 s{S_T5}, {NKAP}")
    A(f"s_cbranch_scc1 {l}")
    T = 24
    A(f"v_lshrrev_b32 v{T}, 4, v{V_LANE}")
    A(f"v_bfe_u32 v{T+1}, v{V_LANE}, 2, 2")
    A(f"v_lshrrev_b32 v{T+2}, 1, v{T}")
    A(f"v_lshlrev_b32 v{T+2}, 4, v{T+2}")
    A(f"v_and_b32 v{T+3}, 1, v{T}")
    A(f"v_lshl_add_u32 v{T+2}, v{T+3}, 2, v{T+2}")
    A(f"v_add_u32 v{T+3}, 8, v{T+2}")
    A(f"s_sub_u32 s{S_T0}, s{S_T5}, 48")
    A(f"s_lshl_b32 s{S_T0}, s{S_T0}, 2")
    A(f"s_mul_i32 s{S_T1}, s{S_T0}, 43")
    A(f"s_lshr_b32 s{S_T1}, s{S_T1}, 7")
    A(f"v_add_u32 v{T+4}, s{S_T0}, v{T}")
    A(f"v_mul_u32_u24 v{T+5}, 43, v{T+4}")
    A(f"v_lshrrev_b32 v{T+5}, 7, v{T+5}")
    A(f"v_mul_u32_u24 v{T+6}, 3, v{T+5}")
    A(f"v_sub_u32 v{T+4}, v{T+4}, v{T+6}")
    A(f"v_subrev_u32 v{T+5}, s{S_T1}, v{T+5}")
    A(f"v_mul_u32_u24 v{T+5}, 20, v{T+5}")
    A(f"v_lshlrev_b32 v{T+6}, 2, v{T+4}")
    A(f"v_cmp_eq_u32 vcc, 2, v{T+4}")
    A(f"v_mov_b32 v{T+7}, 16")
    A("s_nop 0")
    A(f"v_cndmask_b32 v{T+6}, v{T+6}, v{T+7}, vcc")
    A(f"v_add_u32 v{T+6}, v{T+5}, v{T+6}")
    A(f"v_add_u32 v{T+7}, 8, v{T+6}")
    A(f"s_mov_b64 s[{S_EX}:{S_EX+1}], vcc")
    A(f"s_cmp_lt_u32 s{S_T5}, 48")
    A(f"s_cselect_b64 vcc, -1, 0")
    A(f"s_cselect_b64 s[{S_EX}:{S_EX+1}], 0, s[{S_EX}:{S_EX+1}]")
    A(f"v_cndmask_b32 v{T+2}, v{T+6}, v{T+2}, vcc")
    A(f"v_cndmask_b32 v{T+3}, v{T+7}, v{T+3}, vcc")
    A(f"v_and_b32 v{T+4}, 3, v{V_LANE}")
    A(f"v_lshlrev_b32 v{T+4}, 3, v{T+4}")
    A(f"s_mul_i32 s{S_T0}, s{S_WC}, {W3WAVE}")
    A(f"s_add_u32 s{S_T0}, s{S_T0}, {A_W3ST}")
    for k in (2, 3):
        A(f"v_add_u32 v{T+k}, v{T+k}, v{T+1}")
        A(f"v_mul_u32_u24 v{T+k}, 320, v{T+k}")
        A(f"v_add_u32 v{T+k}, v{T+k}, v{T+4}")
        A(f"v_add_u32 v{T+k}, s{S_T0}, v{T+k}")
    A(f"v_mov_b32 v{T+5}, {A_ZERO}")
    A("s_nop 0")
    A(f"v_cndmask_b32 v{T+3}, v{T+3}, v{T+5}, s[{S_EX}:{S_EX+1}]")
    R = 80
    for f in range(10):
        r = R + 4*f
        A(f"ds_read_b64_tr_b16 v[{r}:{r+1}], v{T+2} offset:{32*f}")
        A(f"ds_read_b64_tr_b16 v[{r+2}:{r+3}], v{T+3} offset:{32*f}")
    A(f"s_mul_i32 s{S_T0}, s{S_WC}, {2*NKAP}")
    A(f"s_add_u32 s{S_T0}, s{S_T0}, s{S_T5}")
    A(f"s_mul_i32 s{S_T0}, s{S_T0}, 5120")
    A(f"s_add_u32 s{S_T0}, s{S_T0}, {WS_W3}")
    A(f"v_lshlrev_b32 v{T}, 4, v{V_LANE}")
    for f in range(10):
        r = R + 4*f
        if f in (0, 5): A(f"s_waitcnt lgkmcnt({10 if f == 0 else 0})")
        A(f"s_add_u32 s{S_T1}, s{S_T0}, {(f//5)*NKAP*5120 + (f%5)*1024}")
        A(f"buffer_store_dwordx4 v[{r}:{r+3}], v{T}, s[{SRD_WS}:{SRD_WS+3}], s{S_T1} offen {OPT.get('astflags', '')}")
    A.label(l)

def wp_reads():
    L = []
    for o in range(2):
        for s_ in range(3):
            r = V_WP + 4*(3*o+s_)
            L.append(f"ds_read_b64_tr_b16 v[{r}:{r+1}], v{[V_EWP0,V_EWP1][o]} offset:{320*s_+32*o}")
            if s_ < 2:
                L.append(f"ds_read_b64_tr_b16 v[{r+2}:{r+3}], v{[V_EWP0,V_EWP1][o]} offset:{320*s_+160+32*o}")
    return L

def a_loop2(A):
    group_skew_begin(A)
    for S in range(10):
        A("s_barrier")
        reads = []
        for j in range(4):
            reads += xr(A_OP[j], S, j) + a_wreads(S, j, A_OP[j])
        writes = []
        if S+1 < 10 and not OPT.get("no_norm"):
            writes = [norm_write(S+1, 0), norm_write(S+1, 1)]
        dma = [] if OPT.get("no_dma") else a_dma(S+2)
        grp = [dma[i:i+3] for i in range(0, len(dma), 3)]
        mode = OPT.get("aL", "rwd")
        if mode == "rwd":
            seq = reads + writes + dma
        elif mode == "wrd":
            seq = writes + reads + dma
        elif mode == "drw":
            seq = dma + reads + writes
        else:
            seq = []
            per = 6
            for i in range(0, len(reads), per):
                if grp: seq += grp.pop(0)
                seq += reads[i:i+per]
            for g in grp: seq += g
            seq += writes
        for x in seq: A(x)
        TDA = OPT.get("atouch", 0)
        if TDA and S+TDA < 10:
            A(f"buffer_load_dword v{V_DUM}, v{V_TCH}, s[{SRD_W}:{SRD_W+3}], s{S_TAB+S+TDA} offen")
        if S == 9:
            for x in wp_reads(): A(x)
            w3_loads_g0(A)
        if S+1 < 10:
            n = 4 if S+2 < 10 else 0
            if TDA:
                n += (1 if S+TDA < 10 else 0) + (1 if (S >= 1 and S-1+TDA < 10) else 0)
            A(f"s_waitcnt vmcnt({n}) lgkmcnt(0)")
        else:
            A("s_waitcnt lgkmcnt(0)")
        A("s_barrier")
        fill = (norm_valu(S+2, 0) + norm_valu(S+2, 1)) if S+2 < 10 else []
        if S == 8:
            fill = w3_voffs()
        if S == 9:
            fill = [f"v_mov_b32 v{V_WP+10}, 0", f"v_mov_b32 v{V_WP+11}, 0", f"v_mov_b32 v{V_WP+22}, 0", f"v_mov_b32 v{V_WP+23}, 0"]
        mf = []
        for j in range(4):
            b = A_OP[j]
            for a_ in range(2):
                for tau in range(2):
                    c = V_ACC + 16*(2*tau+a_)
                    mf.append(f"v_mfma_f32_32x32x16_bf16 v[{c}:{c+15}], v[{b+8+4*a_}:{b+11+4*a_}], v[{b+4*tau}:{b+3+4*tau}], v[{c}:{c+15}]")
        mfma_block(A, mf, fill)
    group_skew_end(A)

V_QB = [104, 116]
V_PV = [128, 134]
V_E = 40
def a_epilogue(A, prof, opts, est):
    EP, EN, PH = 224, 40, 140
    T = 24
    AK = 60
    for c in range(5):
        A(f"v_xor_b32 v{T}, {16*c}, v{V_ES16}")
        A(f"v_add_u32 v{AK+c}, v{V_EROW}, v{T}")
    A(f"v_lshrrev_b32 v{T+1}, 5, v{V_LANE}")
    A(f"v_add_u32 v{T}, 5, v{T+1}")
    A(f"v_lshlrev_b32 v{T}, 4, v{T}")
    A(f"v_xor_b32 v{T}, v{T}, v{V_ES16}")
    A(f"v_add_u32 v{AK+5}, v{V_EROW}, v{T}")
    A(f"v_xor_b32 v{T}, {16*7}, v{V_ES16}")
    A(f"v_add_u32 v{T}, v{V_EROW}, v{T}")
    A(f"v_lshl_add_u32 v{AK+6}, v{T+1}, 3, v{T}")
    A(f"v_lshlrev_b32 v{AK+7}, 4, v{V_LANE}")
    A(f"v_lshlrev_b32 v{AK+9}, 3, v{V_LANE}")
    A(f"v_lshlrev_b32 v{T}, 12, v{T+1}")
    for c in range(5): A(f"v_add_u32 v{AK+c}, v{AK+c}, v{T}")
    A(f"s_lshl_b32 s{S_T0}, s{S_RB}, 1")
    A(f"s_add_u32 s{S_T0}, s{S_T0}, s{S_WT}")
    A(f"s_lshl_b32 s{S_T0}, s{S_T0}, 5")
    A(f"s_lshl_b32 s{S_T1}, s{S_CB}, 2")
    A(f"s_add_u32 s{S_T0}, s{S_T0}, s{S_T1}")
    A(f"s_add_u32 s{S_T0}, s{S_T0}, s{S_WC}")
    A(f"s_mul_i32 s{S_T0}, s{S_T0}, 2560")
    A(f"s_add_u32 s{S_T4}, s{S_T0}, {WS_PQ}")
    A(f"v_mov_b32 v68, {L2E}")
    for tau in range(2):
        a0, a1 = V_ACC + 32*tau, V_ACC + 32*tau + 16
        QB, PV = V_QB[tau], V_PV[tau]
        for j in range(8): A(f"v_cvt_pk_bf16_f32 v{QB+j}, v{a0+2*j}, v{a0+2*j+1}")
        for j in range(2): A(f"v_cvt_pk_bf16_f32 v{QB+8+j}, v{a1+2*j}, v{a1+2*j+1}")
        A(f"v_mov_b32 v{QB+10}, 0"); A(f"v_mov_b32 v{QB+11}, 0")
        for j in range(6): A(f"v_cvt_pk_bf16_f32 v{PV+j}, v{a1+4+2*j}, v{a1+5+2*j}")
        A("s_mov_b32 exec_lo, 0")
        A(f"v_mov_b32 v{PV+4}, 0x3f80")
        A(f"v_mov_b32 v{PV+5}, 0")
        A("s_mov_b32 exec_lo, -1")
        for o, P in ((0, a0), (1, a1)):
            for s_ in range(3):
                c = "0" if s_ == 0 else f"v[{P}:{P+15}]"
                A(f"v_mfma_f32_32x32x16_bf16 v[{P}:{P+15}], v[{V_WP+4*(3*o+s_)}:{V_WP+4*(3*o+s_)+3}], v[{QB+4*s_}:{QB+4*s_+3}], {c}")
        A(f"ds_write_b128 v{AK+5}, v[{PV}:{PV+3}] offset:{4096*tau}")
        A(f"ds_write_b64 v{AK+6}, v[{PV+4}:{PV+5}] offset:{4096*tau}")
    est(A, 1)
    p0 = [V_ACC+i for i in range(16)] + [V_ACC+16+i for i in range(4)]
    p1 = [V_ACC+32+i for i in range(16)] + [V_ACC+48+i for i in range(4)]
    A("s_nop 7")
    A("s_nop 3")
    for i in range(20): A(f"v_permlane32_swap_b32 v{p0[i]}, v{p1[i]}")
    PQP = 104
    A("s_nop 1")
    for i in range(10): A(f"v_cvt_pk_bf16_f32 v{PQP+i}, v{p0[2*i]}, v{p0[2*i+1]}")
    A(f"buffer_store_dwordx4 v[{PQP}:{PQP+3}], v{AK+7}, s[{SRD_WS}:{SRD_WS+3}], s{S_T4} offen {OPT.get('astflags', '')}")
    A(f"buffer_store_dwordx4 v[{PQP+4}:{PQP+7}], v{AK+7}, s[{SRD_WS}:{SRD_WS+3}], s{S_T4} offen offset:1024 {OPT.get('astflags', '')}")
    A(f"buffer_store_dwordx2 v[{PQP+8}:{PQP+9}], v{AK+9}, s[{SRD_WS}:{SRD_WS+3}], s{S_T4} offen offset:2048 {OPT.get('astflags', '')}")
    softmax_block(A, p1, EP, EN, [PH+i for i in range(20)], T, 68)
    for c in range(5):
        A(f"ds_write_b128 v{AK+c}, v[{PH+4*c}:{PH+4*c+3}]")
    est(A, 2)
    if not opts.get("noW3"):
        A("s_waitcnt vmcnt(3)")
        w3_relayout_g0(A)
    A("s_waitcnt lgkmcnt(0)")
    A("s_barrier")
    KA1, KB1 = T, T+1
    A(f"v_xor_b32 v{KA1}, 32, v{V_EKA}")
    A(f"v_add_u32 v{KA1}, 512, v{KA1}")
    A(f"v_xor_b32 v{KB1}, 32, v{V_EKB}")
    A(f"v_add_u32 v{KB1}, 512, v{KB1}")
    FR = 80
    P0 = 224
    for ks in range(8):
        r = FR + 8*ks
        A(f"ds_read_b64_tr_b16 v[{r}:{r+1}], v{V_EKA} offset:{2048*ks}")
        A(f"ds_read_b64_tr_b16 v[{r+2}:{r+3}], v{KA1} offset:{2048*ks}")
        A(f"ds_read_b64_tr_b16 v[{r+4}:{r+5}], v{V_EKB} offset:{2048*ks}")
        A(f"ds_read_b64_tr_b16 v[{r+6}:{r+7}], v{KB1} offset:{2048*ks}")
        if ks == 2:
            A(f"s_lshl_b32 s{S_T0}, s{S_RB}, 5")
            A(f"s_lshl_b32 s{S_T1}, s{S_CB}, 2")
            A(f"s_add_u32 s{S_T0}, s{S_T0}, s{S_T1}")
            A(f"s_add_u32 s{S_T0}, s{S_T0}, s{S_WC}")
            A(f"s_mul_i32 s{S_T0}, s{S_T0}, 2560")
            A(f"s_add_u32 s{S_T0}, s{S_T0}, {WS_KV}")
    for ks in range(8):
        r = FR + 8*ks
        A(f"s_waitcnt lgkmcnt({min(15, 4*(7-ks))})")
        c = "0" if ks == 0 else f"v[{P0}:{P0+15}]"
        A(f"v_mfma_f32_32x32x16_bf16 v[{P0}:{P0+15}], v[{r}:{r+3}], v[{r+4}:{r+7}], {c}")
    A(f"v_lshlrev_b32 v{T+2}, 4, v{V_LANE}")
    A(f"v_lshlrev_b32 v{T+4}, 3, v{V_LANE}")
    A(f"v_and_b32 v{T+3}, 31, v{V_LANE}")
    A(f"v_cmp_gt_u32 vcc, 21, v{T+3}")
    A("s_nop 7")
    A("s_nop 1")
    PB = 80
    fl = OPT.get('astflags', '')
    for i in range(8): A(f"v_cvt_pk_bf16_f32 v{PB+i}, v{P0+2*i}, v{P0+2*i+1}")
    A(f"s_and_saveexec_b64 s[{S_EX}:{S_EX+1}], vcc")
    A(f"s_cmp_eq_u32 s{S_WT}, 0")
    l = A.newlabel("L_kv1"); l2 = A.newlabel("L_kv2")
    A(f"s_cbranch_scc0 {l}")
    A(f"buffer_store_dwordx4 v[{PB}:{PB+3}], v{T+2}, s[{SRD_WS}:{SRD_WS+3}], s{S_T0} offen {fl}")
    A(f"buffer_store_dwordx4 v[{PB+4}:{PB+7}], v{T+2}, s[{SRD_WS}:{SRD_WS+3}], s{S_T0} offen offset:1024 {fl}")
    A(f"s_branch {l2}")
    A.label(l)
    A(f"buffer_store_dwordx2 v[{PB}:{PB+1}], v{T+4}, s[{SRD_WS}:{SRD_WS+3}], s{S_T0} offen offset:2048 {fl}")
    A.label(l2)
    A(f"s_mov_b64 exec, s[{S_EX}:{S_EX+1}]")

def a_path(A, prof, opts):
    if OPT.get("cpf"):
        A.label("L_a_code")
        code_prefetch(A, None, "L_k1_end", 24, 21, 44+16)
    def mid1(A):
        srd(A, SRD_W, S_QKVP, 640*3840)
        offset_table(A, 10, 64*3840, 640*3840, 64*3840)
        srd(A, SRD_WS, S_WSP, WS_SIZE)
        x_read_addrs(A)
        T = 30
        A(f"v_lshrrev_b32 v{T}, 4, v{V_LANE}")
        A(f"v_and_b32 v27, 3, v{V_LANE}")
        A(f"v_lshl_add_u32 v{T}, v{T}, 2, v27")
        A(f"v_bfe_u32 v27, v{V_LANE}, 2, 2")
        A(f"s_lshl_b32 s{S_T0}, s{S_WV}, 2")
        A(f"v_add_u32 v27, s{S_T0}, v27")
        A(f"v_mul_u32_u24 v27, 3840, v27")
        A(f"s_mul_i32 s{S_T1}, s{S_CB}, 160")
        A(f"v_add_u32 v27, s{S_T1}, v27")
        A(f"v_cmp_gt_u32 vcc, 10, v{T}")
        A(f"v_mov_b32 v28, 1120")
        A(f"v_lshl_add_u32 v29, v{T}, 4, v27")
        A(f"v_cndmask_b32 v28, v28, 0, vcc")
        A(f"v_add_u32 v{V_WD}, v29, v28")
        A(f"v_min_u32 v24, 14, v{T}")
        A(f"v_cmp_eq_u32 vcc, 4, v{T}")
        A(f"v_mov_b32 v25, 3")
        A("s_nop 0")
        A(f"v_cndmask_b32 v24, v24, v25, vcc")
        A(f"v_cmp_gt_u32 vcc, 5, v{T}")
        A(f"v_mov_b32 v25, 2480")
        A(f"v_mov_b32 v26, 1376")
        A(f"v_cndmask_b32 v25, v25, v26, vcc")
        A(f"v_lshl_add_u32 v24, v24, 4, v27")
        A(f"v_add_u32 v{V_WD+1}, v24, v25")
        A(f"v_add_u32 v{V_WD+2}, {32*3840}, v{V_WD}")
        A(f"v_add_u32 v{V_WD+3}, {32*3840}, v{V_WD+1}")
        A(f"s_lshl_b32 s{S_LDSW}, s{S_WV}, 11")
        A(f"s_add_u32 s{S_LDSW}, s{S_LDSW}, {A_WBASE}")
        if OPT.get("atouch"):
            A(f"s_lshl_b32 s{S_T0}, s{S_RBL}, 4")
            A(f"s_lshl_b32 s{S_T1}, s{S_WV}, 1")
            A(f"s_add_u32 s{S_T0}, s{S_T0}, s{S_T1}")
            A(f"s_mul_i32 s{S_T0}, s{S_T0}, 3840")
            A(f"s_mul_i32 s{S_T1}, s{S_CB}, 160")
            A(f"s_and_b32 s{S_T1}, s{S_T1}, 0xffffff80")
            A(f"s_add_u32 s{S_T0}, s{S_T0}, s{S_T1}")
            A(f"v_and_b32 v25, 7, v{V_LANE}")
            A(f"v_min_u32 v25, 5, v25")
            A(f"v_lshrrev_b32 v24, 1, v25")
            A(f"v_mul_u32_u24 v24, 1280, v24")
            A(f"v_and_b32 v25, 1, v25")
            A(f"v_lshl_add_u32 v25, v25, 7, v24")
            A(f"v_bfe_u32 v24, v{V_LANE}, 3, 1")
            A(f"v_mul_u32_u24 v24, 3840, v24")
            A(f"v_add_u32 v25, v25, v24")
            A(f"v_add_u32 v{V_TCH}, s{S_T0}, v25")
        old = G.V_T; oldb = G.WBASE
        G.V_T = 24; G.WBASE = A_WBASE
        G.a_tr_addr(A, 0, V_WB)
        G.a_tr_addr(A, 1, V_WB+2)
        G.V_T = old; G.WBASE = oldb
        A(f"v_add_u32 v{V_WB+1}, {2*A_DSLOT}, v{V_WB}")
        A(f"v_add_u32 v{V_WB+3}, {2*A_DSLOT}, v{V_WB+2}")
    def mid2(A):
        a_addr_setup(A)
        for i in range(64): A(f"v_mov_b32 v{V_ACC+i}, 0")
        A(f"v_lshlrev_b32 v24, 4, v{V_LANE}")
        A(f"v_add_u32 v24, {A_ZERO}, v24")
        A(f"ds_write_b128 v24, v[{V_ACC}:{V_ACC+3}]")
    def after_x(A):
        for x in a_dma(0): A(x)
        srd(A, SRD_M, S_PHIP, 25600)
        A(f"v_lshlrev_b32 v24, 4, v{V_LANE}")
        A(f"s_mul_i32 s{S_T0}, s{S_CB}, 3200")
        A(f"s_lshl_b32 s{S_T1}, s{S_WC}, 10")
        A(f"s_add_u32 s{S_T0}, s{S_T0}, s{S_T1}")
        A(f"s_add_u32 m0, s{S_T1}, {A_PHI}")
        A("s_nop 0")
        A(f"buffer_load_dwordx4 v24, s[{SRD_M}:{SRD_M+3}], s{S_T0} offen lds")
        if OPT.get("tlbw"):
            A(f"v_lshlrev_b32 v24, 20, v{V_LANE}")
            A(f"v_min_u32 v24, {(24<<20)-4}, v24")
            A(f"buffer_load_dword v21, v24, s[{SRD_WS}:{SRD_WS+3}], 0 offen")
            return 6
        return 5
    x_phase(A, mid1, mid2, after_x)
    stamp(A, 1, prof)
    for g in range(2):
        for x in norm_valu(0, g): A(x)
        A(norm_write(0, g))
    for x in a_dma(1): A(x)
    for g in range(2):
        for x in norm_valu(1, g): A(x)
    A(f"s_waitcnt vmcnt(4) lgkmcnt(0)")
    stamp(A, 2, prof)
    if OPT.get("g1prio") == "all":
        l = A.newlabel("L_pr"); A(f"s_cmp_eq_u32 s{S_WT}, 0"); A(f"s_cbranch_scc1 {l}"); A("s_setprio 2"); A.label(l)
    a_loop2(A)
    if OPT.get("g1prio") == "epi":
        l = A.newlabel("L_pr"); A(f"s_cmp_eq_u32 s{S_WT}, 0"); A(f"s_cbranch_scc1 {l}"); A("s_setprio 2"); A.label(l)
    es = opts.get("estamp")
    stamp(A, 0 if es else 3, prof)
    a_epilogue(A, prof, opts, (lambda A_, i: stamp(A_, i, True)) if es else (lambda A_, i: None))
    if es: stamp(A, 3, True)
    stamp(A, 4, prof)
```
